```python
import torch

def _softmax(x, axis=-1):
    return torch.softmax(x, dim=axis)
def _gelu(x):
    return torch.nn.functional.gelu(x, approximate="tanh")
def _silu(x):
    return torch.nn.functional.silu(x)
def _sigmoid(x):
    return torch.sigmoid(x)
def _layernorm(x, axis=-1, eps=1e-5):
    m = x.mean(dim=axis, keepdim=True)
    v = x.var(dim=axis, keepdim=True, unbiased=False)
    return (x - m) / torch.sqrt(v + eps)
def _scatter_add(tgt, idx, src, axis=0):
    return tgt.clone().index_add_(axis, idx, src)
def _segment_sum(src, seg, n):
    out = torch.zeros((n,) + src.shape[1:], dtype=src.dtype)
    return out.index_add_(0, seg, src)
def _pad(x, pw):
    flat = tuple(v for pair in reversed(pw) for v in pair)
    return torch.nn.functional.pad(x, flat)

kernel_name = 'recurrent_scan__ssm_conv_s4__moe_arch_mod__prompt'

def setup_inputs():

    _w = (lambda a: (lambda t: t.to(torch.bfloat16) if t.is_floating_point() else t)(torch.as_tensor(a)))
    def _A_setup():
        B, L, D, N = 1, 2048, 448, 256
        A_re = -(lambda _x: torch.exp(torch.as_tensor(_x)))((lambda *s: torch.randn(*s, dtype=torch.bfloat16) * 6.4)(D, N))
        A_im = torch.pi * (lambda *s: torch.randn(*s, dtype=torch.bfloat16) * 0.05)(D, N)
        B_re = (lambda *s: torch.randn(*s, dtype=torch.bfloat16) * 0.1)(D, N)
        B_im = (lambda *s: torch.randn(*s, dtype=torch.bfloat16) * 0.1)(D, N)
        C_re = (lambda *s: torch.randn(*s, dtype=torch.bfloat16) * 0.1)(D, N)
        C_im = (lambda *s: torch.randn(*s, dtype=torch.bfloat16) * 0.1)(D, N)
        log_dt = (lambda *s: torch.randn(*s, dtype=torch.bfloat16) * 0.05)(D) * 0.5 - 4.0
        Dskip = (lambda *s: torch.randn(*s, dtype=torch.bfloat16) * 0.05)(D)
        return {
            "u": _w((lambda *s: torch.randn(*s, dtype=torch.bfloat16) * 0.05)(B, L, D)),
            "A_re": _w(A_re),
            "A_im": _w(A_im),
            "B_re": _w(B_re),
            "B_im": _w(B_im),
            "C_re": _w(C_re),
            "C_im": _w(C_im),
            "log_dt": _w(log_dt),
            "Dskip": _w(Dskip),
        }
    _A_in = _A_setup()

    def _B_setup():
        B, S, D, F, C = 1, 2048, 448, 1792, 1
        return {
            "x": _w((lambda *s: torch.randn(*s, dtype=torch.bfloat16) * 0.05)(B, S, D)),
            "w_r": _w((lambda *s: torch.randn(*s, dtype=torch.bfloat16) * 6.4)(D)),
            "w_gate": _w((lambda *s: torch.randn(*s, dtype=torch.bfloat16) * 0.1)(D, F)),
            "w_up": _w((lambda *s: torch.randn(*s, dtype=torch.bfloat16) * 0.1)(D, F)),
            "w_down": _w((lambda *s: torch.randn(*s, dtype=torch.bfloat16) * 0.1)(F, D)),
        }
    _B_in = _B_setup()

    return {
        "A_u": _A_in["u"],
        "A_A_re": _A_in["A_re"],
        "A_A_im": _A_in["A_im"],
        "A_B_re": _A_in["B_re"],
        "A_B_im": _A_in["B_im"],
        "A_C_re": _A_in["C_re"],
        "A_C_im": _A_in["C_im"],
        "A_log_dt": _A_in["log_dt"],
        "A_Dskip": _A_in["Dskip"],
        "B_x": _B_in["x"],
        "B_w_r": _B_in["w_r"],
        "B_w_gate": _B_in["w_gate"],
        "B_w_up": _B_in["w_up"],
        "B_w_down": _B_in["w_down"],
    }

def reference(A_u, A_A_re, A_A_im, A_B_re, A_B_im, A_C_re, A_C_im, A_log_dt, A_Dskip, B_x, B_w_r, B_w_gate, B_w_up, B_w_down):
    def _A_ref(u, A_re, A_im, B_re, B_im, C_re, C_im, log_dt, Dskip):
        Bsz, L, D = u.shape
        dt = torch.exp(log_dt)[:, None]
        A = A_re + 1j * A_im
        Bc = B_re + 1j * B_im
        Cc = C_re + 1j * C_im
        logdA = dt * A
        dB = dt * Bc
        l = (lambda x, dt: x.to(dt))(torch.arange(L), A_re.dtype)
        P = torch.exp(logdA[:, :, None] * l[None, None, :])
        K = torch.einsum("dn,dnl,dn->dl", Cc, P, dB).real
        L2 = 2 * L
        Kp = _pad(K, ((0, 0), (0, L)))
        up = (lambda x, *d: x.permute(*d))(u, 0, 2, 1)
        up = _pad(up, ((0, 0), (0, 0), (0, L)))
        Kf = (lambda x, axes=(-2,-1): torch.fft.rfft2(x.float(), dim=axes))(Kp[:, None, :], axes=(-2, -1))
        Uf = (lambda x, axes=(-2,-1): torch.fft.rfft2(x.float(), dim=axes))(up[:, :, None, :], axes=(-2, -1))
        Yf = Uf * Kf[None, :, :, :]
        y = (lambda x, s, axes=(-2,-1): torch.fft.irfft2(x, s=s, dim=axes).to(torch.bfloat16))(Yf, (1, L2), axes=(-2, -1))[:, :, 0, :L]
        y = (lambda x, *d: x.permute(*d))(y, 0, 2, 1) + u * Dskip[None, None, :]
        return y

    def _B_ref(x, w_r, w_gate, w_up, w_down):
        B, S, D = x.shape
        C = 1
        r = x @ w_r
        idx = torch.argsort(-r, axis=-1)[:, :C]
        idx_e = (lambda x, n, axis: torch.repeat_interleave(x, n, dim=axis))(idx.reshape(B, C, 1), D, axis=2)
        x_sel = (lambda x, i, axis: torch.take_along_dim(x, i, dim=axis))(x, idx_e, axis=1)
        g = _silu(x_sel @ w_gate)
        u = x_sel @ w_up
        y = (g * u) @ w_down
        r_sel = _sigmoid((lambda x, i, axis: torch.take_along_dim(x, i, dim=axis))(r, idx, axis=1))
        y = y * r_sel.reshape(B, C, 1)
        b_off = (torch.arange(B) * S).reshape(B, 1)
        flat_idx = (idx + b_off).reshape(B * C)
        zero = (x * 0.0).reshape(B * S, D)
        upd = _scatter_add(zero, flat_idx, y.reshape(B * C, D), axis=0)
        return x + upd.reshape(B, S, D)

    x = A_u
    xn = _layernorm(x, axis=-1)
    s = _A_ref(xn, A_A_re, A_A_im, A_B_re, A_B_im, A_C_re, A_C_im, A_log_dt, A_Dskip)
    g = _silu(_B_ref(xn, B_w_r, B_w_gate, B_w_up, B_w_down))
    return x + s * g
```

```python
import re
TRANS = ("v_exp_f32","v_log_f32","v_rcp_f32","v_rsq_f32","v_sqrt_f32","v_sin_f32","v_cos_f32","v_exp_f16","v_rcp_f16")
def regs_of(op):
    op = op.strip().strip("|").lstrip("-").strip("|")
    m = re.fullmatch(r"([vsa])(\d+)", op)
    if m: return {(m.group(1), int(m.group(2)))}
    m = re.fullmatch(r"([vsa])\[(\d+):(\d+)\]", op)
    if m: return {(m.group(1), i) for i in range(int(m.group(2)), int(m.group(3))+1)}
    if op in ("vcc","vcc_lo","vcc_hi"): return {("s","vcc")}
    if op in ("exec","exec_lo","exec_hi"): return {("s","exec")}
    if op == "m0": return {("s","m0")}
    return set()
class Ins:
    def __init__(self, text):
        self.text = text
        t = text.split(";")[0].strip()
        parts = t.split(None, 1)
        self.op = parts[0]
        rest = parts[1] if len(parts) > 1 else ""
        ops = []; cur = ""; depth = 0
        for ch in rest:
            if ch == "[": depth += 1
            if ch == "]": depth -= 1
            if ch == "," and depth == 0: ops.append(cur); cur = ""
            else: cur += ch
        if cur.strip(): ops.append(cur)
        self.mods = ""
        if ops:
            last = ops[-1].strip().split(None, 1)
            ops[-1] = last[0]
            self.mods = last[1] if len(last) > 1 else ""
        self.ops = [o.strip() for o in ops]
        op = self.op
        self.mfma = op.startswith("v_mfma")
        self.valu = op.startswith("v_") and not self.mfma
        self.salu = op.startswith("s_")
        self.ds = op.startswith("ds_")
        self.vmem = op.startswith(("buffer_","global_"))
        self.dpp = "_dpp" in op
        self.trans = op.replace("_e32","").replace("_e64","") in TRANS
        self.dot = op.startswith("v_dot")
        self.vop3p = op.startswith(("v_pk_","v_fma_mix"))
        self.perml = op.startswith("v_permlane")
        self.rdlane = op.startswith(("v_readlane","v_readfirstlane"))
        R = [regs_of(o) for o in self.ops]
        self.wr = set(); self.rd = set()
        if self.valu or self.mfma:
            self.wr = set(R[0]) if R else set()
            for r in R[1:]: self.rd |= r
            if self.perml: self.wr |= R[1]; self.rd |= R[0]
            if self.dpp or op.startswith(("v_fmac","v_dot2c","v_writelane","v_pk_fmac")) or "UNUSED_PRESERVE" in self.mods: self.rd |= R[0]
            if op.startswith(("v_add_co","v_sub_co","v_addc_co")): self.wr |= R[1]
            if op.startswith("v_cmpx"): self.wr.add(("s","exec"))
        elif self.ds:
            if op.startswith(("ds_read","ds_bpermute","ds_permute","ds_swizzle")):
                self.wr = set(R[0])
                for r in R[1:]: self.rd |= r
            else:
                for r in R: self.rd |= r
        elif self.vmem:
            lds = " lds" in (" " + self.mods) or "_lds_" in op
            if "load" in op and not lds:
                self.wr = set(R[0])
                for r in R[1:]: self.rd |= r
            else:
                for r in R: self.rd |= r
            self.ldsdma = lds
        elif self.salu:
            if op.startswith(("s_cmp","s_cbranch","s_branch","s_waitcnt","s_nop","s_barrier","s_sleep","s_setprio","s_endpgm","s_bitcmp")):
                for r in R: self.rd |= r
            else:
                self.wr = set(R[0]) if R else set()
                for r in R[1:]: self.rd |= r
                if "saveexec" in op: self.wr.add(("s","exec"))
        self.passes = 0
        if self.mfma:
            self.passes = 8 if "32x32x16" in op else 4
            self.srcc = R[3]; self.srcab = R[1] | R[2]
        self.states = 1
        if op == "s_nop": self.states = int(self.ops[0]) + 1
    def vw(self): return {r for r in self.wr if r[0] in "va"}
    def sw(self): return {r for r in self.wr if r[0] == "s"}
def need(p, c):
    n = 0
    pv = p.vw(); ps = p.sw()
    if p.valu:
        if c.valu and c.dpp and (pv & c.rd): n = max(n, 2)
        if c.rdlane and (pv & c.rd): n = max(n, 1)
        if c.perml and (pv & c.rd): n = max(n, 2)
        if c.mfma and (pv & c.rd): n = max(n, 2)
        if ps:
            if c.valu and (ps & c.rd): n = max(n, 4 if (c.rdlane or c.op.startswith("v_writelane")) else 2)
            if c.valu and ("s","vcc") in ps and c.op.startswith(("v_cndmask","v_addc")): n = max(n, 2)
            if c.vmem and (ps & c.rd): n = max(n, 5)
            if c.salu and (ps & c.rd): n = max(n, 1)
            if c.salu and ("s","vcc") in ps and "vcc" in c.op: n = max(n, 1)
            if ("s","exec") in ps and (c.dpp): n = max(n, 5)
            if ("s","exec") in ps and (c.mfma or c.rdlane or c.perml): n = max(n, 4)
        if p.trans and c.valu and not c.trans and (pv & c.rd): n = max(n, 1)
        if p.trans and (c.ds or c.vmem) and (pv & c.rd): n = max(n, 1)
        if (p.vop3p or "sdwa" in p.op) and c.valu and (pv & (c.rd | c.wr)): n = max(n, 1)
        if p.dot:
            if c.op == p.op:
                ab = set()
                for o in c.ops[1:3]: ab |= regs_of(o)
                if pv & ab: n = max(n, 3)
            elif pv & (c.rd | c.wr): n = max(n, 3)
    if p.mfma:
        big = p.passes == 8
        if c.mfma:
            if pv & c.srcab: n = max(n, 12 if big else 8)
            if (pv & c.srcc) and not (c.srcc == pv and c.passes == p.passes): n = max(n, 10 if big else 6)
            if (pv & c.wr) and not (c.srcc == pv): n = max(n, 10 if big else 6)
        elif c.valu or c.ds or c.vmem:
            if pv & (c.rd | c.wr): n = max(n, 12 if big else 8)
            if c.valu and (p.srcc & c.wr): n = max(n, 7 if big else 3)
    if p.salu and ("s","m0") in ps:
        if (c.ds and "addtid" in c.op) or (c.vmem and getattr(c, "ldsdma", False)): n = max(n, 1)
    if p.vmem and "store" in p.op and ("x4" in p.op or "x3" in p.op):
        data = regs_of(p.ops[0]) if p.op.startswith("buffer") else regs_of(p.ops[1])
        if data & c.wr: n = max(n, 2 if c.valu else 1)
    return n
class Emit:
    def __init__(self):
        self.lines = []; self.hist = []; self.nops = 0
    def raw(self, s): self.lines.append(s)
    def label(self, name):
        self.lines.append(name + ":")
    def flush(self, n=0):
        self.hist = []
    def __call__(self, text):
        for t in text.split("\n"):
            t = t.strip()
            if not t or t.startswith(";"):
                if t: self.lines.append("    " + t)
                continue
            if t.endswith(":"):
                self.label(t[:-1]); continue
            c = Ins(t)
            dist = 0; pad = 0
            for p in reversed(self.hist):
                pad = max(pad, need(p, c) - dist)
                dist += p.states
                if dist >= 20: break
            while pad > 0:
                k = min(pad, 16)
                nop = Ins(f"s_nop {k-1}")
                self.lines.append(f"    s_nop {k-1}"); self.hist.append(nop); pad -= k; self.nops += 1
            self.lines.append("    " + t)
            self.hist.append(c)
            if len(self.hist) > 40: self.hist = self.hist[-30:]
    def text(self): return "\n".join(self.lines) + "\n"
```

```python
import sys, os
sys.path.insert(0, os.path.dirname(__file__))
from asm import Emit
KN = "recurrent_scan__ssm_conv_s4__moe_arch_mod__prompt_kernel"

WS_CAND = 0x1000; WS_PART = 0x2000; WS_BEST = 0x10000; WS_U = 0x50000; WS_DBG = 0x400000; WS_SZ = 0x1000000
TABW = 15232; ROW = 272
YB = 0; UB = 121856; USTR = 4640; KB = 140416; KSTR = 4160; LNB = KB; LNS = 960
MISC = 157056; M_KEYS = MISC; M_EF = MISC+32; M_SC = MISC+48; M_BEST = MISC+64; M_H = MISC+128
LDS_SZ = MISC + 256
XB = 1835008
OOB = "0x80000000"
TAGM = 0x40074007
LOG2E = 0x3fb8aa3b; INV2PI = 0x3e22f983; INV448 = 0x3b124925; EPS = 0x3727c5ac
SPIN = 200000
TILES = {0: [-6, 2, 10, 48, 56], 1: [17, 25, 33, 41]}
DPPF = "row_mask:0xf bank_mask:0xf"


def gen(opt):
    stamps = opt.get("stamps", False)
    dump = opt.get("dump", None)
    E = Emit()
    nst = [0]
    def stamp(i):
        if stamps: E(f"s_memrealtime s[{84+2*i}:{85+2*i}]")
    def dpp_reduce(op, regs, fill=()):
        fill = list(fill)
        steps = ["row_shr:1 "+DPPF, "row_shr:2 "+DPPF, "row_shr:4 "+DPPF, "row_shr:8 "+DPPF,
                 "row_bcast:15 row_mask:0xa bank_mask:0xf", "row_bcast:31 row_mask:0xc bank_mask:0xf"]
        per = 3 - len(regs)
        for s in steps:
            for r in regs: E(f"{op}_dpp {r}, {r}, {r} {s}")
            for _ in range(per):
                if fill: E(fill.pop(0))
        for f in fill: E(f)

    E.raw(f"; @launch grid=(256,1,1) block=(512,1,1) lds={LDS_SZ}")
    E.raw('.amdgcn_target "amdgcn-amd-amdhsa--gfx950"')
    E.raw(".text"); E.raw(f".globl {KN}"); E.raw(".p2align 8"); E.raw(f".type {KN},@function"); E.raw(f"{KN}:")
    stamp(0)
    E("""
    s_cmp_ge_u32 s2, 256
    s_cbranch_scc1 L_end
    s_load_dwordx16 s[16:31], s[0:1], 0
    s_load_dwordx16 s[32:47], s[0:1], 64
    s_load_dwordx2 s[48:49], s[0:1], 128
    s_getpc_b64 s[50:51]
    L_pc:
    v_lshrrev_b32 v4, 6, v0
    v_and_b32 v1, 63, v0
    v_readfirstlane_b32 s3, v4
    v_lshlrev_b32 v12, 4, v1
    v_cmp_gt_u32 vcc, 56, v1
    v_mov_b32 v13, %s
    v_cndmask_b32 v13, v13, v12, vcc
    v_cndmask_b32 v14, 0, 1.0, vcc
    v_mov_b32 v3, 0x%x
    s_and_b32 s8, s2, 7
    s_lshr_b32 s9, s2, 3
    s_mul_i32 s10, s8, 28
    s_add_u32 s10, s10, s9
    s_lshr_b32 s4, s10, 1
    s_and_b32 s5, s10, 1
    s_add_i32 s6, s2, -224
    s_lshr_b32 s10, s2, 2
    s_lshl_b32 s10, s10, 5
    s_and_b32 s11, s2, 3
    s_add_u32 s10, s10, s11
    s_lshl2_add_u32 s7, s3, s10
    s_mul_i32 s12, s7, 896
    s_mov_b32 s54, %d
    s_mov_b32 s55, 0x20000
    s_mov_b32 s58, 896
    s_mov_b32 s59, 0x20000
    s_mov_b32 s62, 0x%x
    s_mov_b32 s63, 0x20000
    s_mov_b32 s66, %d
    s_mov_b32 s67, 0x20000
    s_waitcnt lgkmcnt(0)
    s_mov_b32 s52, s16
    s_mov_b32 s53, s17
    s_mov_b32 s56, s36
    s_mov_b32 s57, s37
    buffer_load_dwordx4 v[4:7], v13, s[52:55], s12 offen
    buffer_load_dwordx4 v[8:11], v12, s[56:59], 0 offen
    s_load_dwordx4 s[68:71], s[48:49], 0
    s_mov_b32 s60, s48
    s_mov_b32 s61, s49
    s_mov_b32 s64, s44
    s_mov_b32 s65, s45
    s_cmp_ge_u32 s2, 224
    s_cbranch_scc1 L_pro_ffn
    """ % (OOB, TAGM, XB, WS_SZ, XB))
    E("""
    s_and_b32 s8, s3, 3
    s_lshl2_add_u32 s8, s4, s8
    s_lshl_b32 s8, s8, 9
    s_lshr_b32 s10, s3, 2
    s_lshl_b32 s10, s10, 8
    s_add_u32 s8, s8, s10
    v_lshl_add_u32 v15, v1, 2, s8
    s_lshl_b32 s11, s4, 3
    global_load_dword v38, v15, s[22:23]
    global_load_dword v39, v15, s[24:25]
    global_load_dword v40, v15, s[26:27]
    global_load_dword v41, v15, s[28:29]
    global_load_dword v36, v15, s[18:19]
    global_load_dword v37, v15, s[20:21]
    s_load_dwordx2 s[76:77], s[30:31], s11
    s_load_dwordx2 s[78:79], s[32:33], s11
    s_cmp_ge_u32 s3, 3
    s_cbranch_scc1 L_pf_code
    """)
    E("""
    s_and_b32 s8, s2, 7
    v_lshrrev_b32 v16, 4, v1
    v_lshl_add_u32 v16, v16, 3, s8
    v_min_u32 v16, 27, v16
    v_and_b32 v17, 15, v1
    s_lshl_b32 s10, s9, 4
    v_add_u32 v17, s10, v17
    s_cmp_eq_u32 s3, 2
    s_movk_i32 s12, 128
    s_cselect_b32 s12, s12, 3584
    s_mov_b32 s13, 57344
    s_cselect_b32 s13, s13, 128
    s_cselect_b32 s14, s42, s38
    s_cselect_b32 s15, s43, s39
    s_cmp_eq_u32 s3, 1
    s_cselect_b32 s14, s40, s14
    s_cselect_b32 s15, s41, s15
    v_mul_u32_u24 v17, s12, v17
    v_mad_u32_u24 v17, v16, s13, v17
    global_load_dword v2, v17, s[14:15]
    s_branch L_ln
    L_pf_code:
    s_add_i32 s8, s3, -3
    s_lshl_b32 s8, s8, 12
    v_lshl_add_u32 v16, v1, 6, s8
    v_min_u32 v16, L_codeend-L_pc-4, v16
    global_load_dword v2, v16, s[50:51]
    s_branch L_ln
    L_pro_ffn:
    s_cmp_ge_u32 s2, 252
    s_cbranch_scc0 L_pro_ffn2
    s_waitcnt vmcnt(0)
    s_branch L_ln
    L_pro_ffn2:
    """)
    E("""
    s_mov_b32 s80, s38
    s_mov_b32 s81, s39
    s_mov_b32 s82, 1605632
    s_mov_b32 s83, 0x20000
    v_lshrrev_b32 v16, 3, v1
    v_mul_u32_u24 v16, 3584, v16
    v_bfe_u32 v17, v1, 4, 1
    v_and_b32 v18, 7, v1
    v_xor_b32 v17, v17, v18
    s_and_b32 s8, s3, 1
    s_lshl_b32 s8, s8, 1
    v_xor_b32 v17, s8, v17
    v_lshl_add_u32 v36, v17, 4, v16
    s_mul_i32 s9, s3, 28672
    s_lshl_b32 s10, s6, 7
    s_add_u32 s9, s9, s10
    s_lshl_b32 s10, s3, 10
    s_mov_b32 s11, s9
    """)
    for i in range(7):
        E(f"s_add_u32 m0, s10, {i*8192}")
        E(f"buffer_load_dwordx4 v36, s[80:83], s11 offen lds")
        if i < 6: E(f"s_add_u32 s11, s11, {8*28672}")
    E.label("L_ln"); E.flush()
    E(f"""
    s_mov_b32 s12, 0x3f803f80
    v_min_u32 v15, 56, v1
    s_mul_i32 s13, s3, {LNS}
    s_add_u32 s13, s13, {LNB}
    v_lshl_add_u32 v15, v15, 4, s13
    s_waitcnt vmcnt(7)
    """)
    stamp(1)
    E("""
    v_dot2_f32_bf16 v12, v4, s12, 0
    v_dot2_f32_bf16 v12, v5, s12, v12
    v_dot2_f32_bf16 v12, v6, s12, v12
    v_dot2_f32_bf16 v12, v7, s12, v12
    v_lshlrev_b32 v16, 16, v4
    v_and_b32 v17, 0xffff0000, v4
    v_lshlrev_b32 v18, 16, v5
    """)
    dpp_reduce("v_add_f32", ["v12"], ["v_and_b32 v19, 0xffff0000, v5", "v_lshlrev_b32 v20, 16, v6", "v_and_b32 v21, 0xffff0000, v6",
                                      "v_lshlrev_b32 v22, 16, v7", "v_and_b32 v23, 0xffff0000, v7"])
    E(f"""
    v_mul_f32 v12, 0x{INV448:x}, v12
    v_cvt_pk_bf16_f32 v13, v12, v12
    v_and_b32 v13, 0xffff0000, v13
    v_readlane_b32 s13, v13, 63
    v_sub_f32 v12, v12, v13
    v_mul_f32 v12, v12, v12
    v_mul_f32 v14, s13, v14
    """)
    for i in range(8): E(f"v_sub_f32 v{16+i}, v{16+i}, v14")
    for i in range(4): E(f"v_cvt_pk_bf16_f32 v{24+i}, v{16+2*i}, v{17+2*i}")
    E("v_dot2_f32_bf16 v13, v24, v24, 0"); E("v_dot2_f32_bf16 v14, v24, v8, 0")
    for i in range(1,4):
        E(f"v_dot2_f32_bf16 v13, v{24+i}, v{24+i}, v13"); E(f"v_dot2_f32_bf16 v14, v{24+i}, v{8+i}, v14")
    E("v_lshlrev_b32 v16, 16, v24"); E("v_and_b32 v17, 0xffff0000, v24")
    dpp_reduce("v_add_f32", ["v13","v14"], ["v_lshlrev_b32 v18, 16, v25", "v_and_b32 v19, 0xffff0000, v25", "v_lshlrev_b32 v20, 16, v26",
                                            "v_and_b32 v21, 0xffff0000, v26", "v_lshlrev_b32 v22, 16, v27", "v_and_b32 v23, 0xffff0000, v27"])
    E(f"""
    v_mul_f32 v13, 0x{INV448:x}, v13
    v_sub_f32 v13, v13, v12
    v_max_f32 v13, 0, v13
    v_cvt_pk_bf16_f32 v13, v13, v13
    v_and_b32 v13, 0xffff0000, v13
    v_add_f32 v13, 0x{EPS:x}, v13
    v_cvt_pk_bf16_f32 v13, v13, v13
    v_and_b32 v13, 0xffff0000, v13
    v_sqrt_f32 v13, v13
    v_cvt_pk_bf16_f32 v13, v13, v13
    v_and_b32 v13, 0xffff0000, v13
    v_rcp_f32 v13, v13
    v_mul_f32 v14, v14, v13
    v_mul_f32 v13, 0x3d000000, v13
    v_cvt_pk_bf16_f32 v14, v14, v14
    v_readlane_b32 s13, v13, 63
    v_readlane_b32 s14, v14, 63
    s_sub_u32 s12, 2047, s7
    v_mov_b32 v13, s13
    s_ashr_i32 s15, s14, 31
    s_or_b32 s15, s15, 0x80000000
    s_xor_b32 s14, s14, s15
    s_and_b32 s14, s14, 0xffff0000
    s_or_b32 s14, s14, s12
    """)
    for i in range(8): E(f"v_mul_f32 v{16+i}, v{16+i}, v13")
    for i in range(4): E(f"v_cvt_pkrtz_f16_f32 v{28+i}, v{16+2*i}, v{17+2*i}")
    E(f"""
    ds_write_b128 v15, v[28:31]
    s_lshl_b32 s12, s3, 2
    v_mov_b32 v12, s12
    v_mov_b32 v14, s14
    ds_write_b32 v12, v14 offset:{M_KEYS & 0xffff}
    """.replace(f"v_mov_b32 v12, s12", f"s_add_u32 s12, s12, {M_KEYS & ~0xffff}\n v_mov_b32 v12, s12"))
    E(f"""
    v_bfe_u32 v16, v1, 2, 2
    v_mul_u32_u24 v16, {LNS}, v16
    v_and_b32 v17, 3, v1
    v_lshl_add_u32 v16, v17, 3, v16
    v_lshrrev_b32 v18, 4, v0
    v_lshl_add_u32 v16, v18, 5, v16
    v_add_u32 v16, {LNB}, v16
    v_lshrrev_b32 v18, 2, v0
    v_lshlrev_b32 v18, 14, v18
    v_lshl_add_u32 v18, v17, 4, v18
    s_lshl_b32 s12, s2, 6
    s_add_u32 s12, s12, 0x{WS_U:x}
    s_waitcnt lgkmcnt(0)
    s_add_u32 s68, s68, 1
    s_add_u32 s69, s69, 1
    s_add_u32 s70, s70, 1
    s_add_u32 s71, s71, 1
    s_cmp_eq_u32 s3, 7
    s_barrier
    s_cbranch_scc1 L_pub7
    ds_read_b64_tr_b16 v[32:33], v16
    ds_read_b64_tr_b16 v[34:35], v16 offset:{4*LNS}
    s_branch L_pub
    L_pub7:
    v_mov_b32 v16, {M_KEYS}
    ds_read_b128 v[20:23], v16
    ds_read_b128 v[24:27], v16 offset:16
    v_mov_b32 v29, s69
    s_lshl_b32 s13, s2, 3
    s_add_u32 s13, s13, 0x{WS_CAND:x}
    v_cmp_eq_u32 vcc, 0, v1
    v_mov_b32 v17, {OOB}
    v_cndmask_b32 v19, v17, v1, vcc
    v_cmp_gt_u32 vcc, 56, v1
    v_lshlrev_b32 v18, 4, v1
    v_cndmask_b32 v18, v17, v18, vcc
    s_lshl_b32 s12, s2, 10
    s_add_u32 s12, s12, 0x{WS_BEST:x}
    s_waitcnt lgkmcnt(0)
    v_max3_u32 v20, v20, v21, v22
    v_max3_u32 v24, v24, v25, v26
    v_max3_u32 v28, v20, v23, v24
    v_max_u32 v28, v28, v27
    buffer_store_dwordx2 v[28:29], v19, s[60:63], s13 offen sc1
    v_not_b32 v16, v28
    v_bfe_u32 v16, v16, 2, 3
    v_mul_u32_u24 v16, {LNS}, v16
    v_lshl_add_u32 v16, v1, 4, v16
    v_add_u32 v16, {LNB}, v16
    ds_read_b128 v[32:35], v16
    L_pub:
    s_and_b32 s72, s68, 0x{TAGM:x}
    s_and_b32 s73, s69, 0x{TAGM:x}
    s_and_b32 s74, s70, 0x{TAGM:x}
    s_and_b32 s75, s71, 0x{TAGM:x}
    s_waitcnt lgkmcnt(0)
    """)
    for i in range(4): E(f"v_add_u32 v{32+i}, 0x40004, v{32+i}")
    for i in range(4): E(f"v_bfi_b32 v{32+i}, v3, s{68+i}, v{32+i}")
    E("buffer_store_dwordx4 v[32:35], v18, s[60:63], s12 offen sc1")
    stamp(2)
    E("""
    s_cmp_ge_u32 s2, 224
    s_cbranch_scc1 L_ffn
    """)
    if opt.get("prio", True):
        E("s_cmp_lt_u32 s3, 4\n s_cbranch_scc1 L_noprio\n s_setprio 1\n L_noprio:")
    E(f"""
    s_mul_i32 s8, s3, {TABW}
    s_mov_b32 m0, s8
    s_bitcmp1_b32 s3, 1
    s_cselect_b32 s9, s77, s76
    s_lshl_b32 s10, s9, 16
    s_and_b32 s9, s9, 0xffff0000
    s_bitcmp1_b32 s3, 0
    s_cselect_b32 s9, s9, s10
    v_mov_b32 v4, 0x{LOG2E:x}
    v_mul_f32 v5, s9, v4
    v_exp_f32 v5, v5
    v_mov_b32 v6, 0x3c00
    ds_write_addtid_b32 v6
    v_cvt_pk_bf16_f32 v5, v5, v5
    v_and_b32 v57, 0xffff0000, v5
    v_mul_f32 v6, v57, v4
    v_mul_f32 v7, 0x{INV2PI:x}, v57
    v_and_b32 v58, 31, v1
    v_mul_u32_u24 v58, {ROW}, v58
    v_lshrrev_b32 v4, 5, v1
    v_lshl_add_u32 v58, v4, 4, v58
    v_add_u32 v58, s8, v58
    s_waitcnt vmcnt(2)
    s_cmp_lt_u32 s3, 4
    s_cbranch_scc1 L_noxpf
    """)
    E("""
    s_cmp_eq_u32 s5, 0
    s_movk_i32 s80, -192
    s_cselect_b32 s80, s80, 544
    s_movk_i32 s81, 1536
    s_cselect_b32 s81, s81, 1312
    s_cselect_b32 s82, 0, 576
    s_movk_i32 s83, 1568
    s_cselect_b32 s83, s83, 0
    s_movk_i32 s10, 1792
    s_cselect_b32 s10, s10, 2048
    v_and_b32 v4, 255, v0
    s_movk_i32 s9, 896
    v_add_u32 v8, s80, v4
    v_mul_i32_i24 v52, s9, v8
    v_add_u32 v53, 229376, v52
    v_add_u32 v54, 458752, v52
    v_cmp_le_i32 vcc, s82, v8
    v_mov_b32 v9, %s
    v_cndmask_b32 v52, v9, v52, vcc
    v_add_u32 v8, s81, v4
    v_mul_u32_u24 v55, s9, v8
    v_cmp_le_i32 vcc, s83, v8
    v_add_u32 v8, s10, v4
    v_cndmask_b32 v55, v9, v55, vcc
    v_mul_u32_u24 v56, s9, v8
    s_lshl_b32 s11, s4, 3
    """ % OOB)
    for i in range(5): E(f"buffer_load_dwordx2 v[{42+2*i}:{43+2*i}], v{52+i}, s[52:55], s11 offen")
    E.label("L_noxpf");
    for t in range(2):
        for k, r in enumerate((38,39,40,41)):
            E(f"v_lshlrev_b32 v{8+k}, 16, v{r}" if t == 0 else f"v_and_b32 v{8+k}, 0xffff0000, v{r}")
        E(f"""
        v_mul_f32 v12, v11, v9
        v_mul_f32 v13, v11, v8
        v_fma_f32 v{60+2*t}, v10, v8, -v12
        v_fma_f32 v{61+2*t}, -v10, v9, -v13
        """)
    E("v_max3_f32 v12, |v60|, |v61|, |v62|"); E("v_max_f32 v12, |v63|, v12".replace("v_max_f32","v_max_f32_e64"))
    E("v_lshlrev_b32 v8, 16, v36"); E("v_lshlrev_b32 v9, 16, v37")
    dpp_reduce("v_max_u32", ["v12"], ["v_and_b32 v36, 0xffff0000, v36", "v_and_b32 v37, 0xffff0000, v37",
               "v_mul_f32 v8, v8, v6", "v_mul_f32 v9, v9, v7", "v_mul_f32 v36, v36, v6", "v_mul_f32 v37, v37, v7",
               "v_rndne_f32 v10, v9", "v_rndne_f32 v11, v37", "v_sub_f32 v9, v9, v10", "v_sub_f32 v37, v37, v11"])
    E(f"""
    v_exp_f32 v8, v8
    v_readlane_b32 s9, v12, 63
    v_cos_f32 v10, v9
    v_sin_f32 v11, v9
    s_lshr_b32 s9, s9, 23
    s_max_u32 s9, s9, 8
    s_sub_u32 s10, 258, s9
    s_lshl_b32 s10, s10, 23
    v_mov_b32 v12, s10
    v_mov_b32 v59, s9
    v_mul_f32 v60, v60, v12
    v_mul_f32 v61, v61, v12
    v_mul_f32 v62, v62, v12
    v_mul_f32 v63, v63, v12
    """)
    def wr(reg, row): return f"ds_write_addtid_b32 v{reg} offset:{row*ROW}"
    def cp(d, p, q, conj):
        ng = "neg_hi:[0,1,0]" if conj else "neg_lo:[0,1,0]"
        return (f"v_pk_mul_f16 v{d}, v{p}, v{q} op_sel:[0,0] op_sel_hi:[1,0]",
                f"v_pk_fma_f16 v{d}, v{p}, v{q}, v{d} op_sel:[1,1,0] op_sel_hi:[0,1,1] {ng}")
    FR = lambda j: 192 + j
    def task(t):
        L = []
        if t == 1:
            L += ["v_exp_f32 v8, v36", "v_cos_f32 v10, v37", "v_sin_f32 v11, v37"]
        L += ["v_mul_f32 v14, v8, v10", "v_mul_f32 v15, v8, v11"]
        cur = (14,15); nxt = (16,17)
        h16 = {1: 20, 2: 21, 4: 22, 8: FR(1), 16: FR(2), 32: FR(4), 64: FR(8), 128: FR(16)}
        for k in (1,2,4,8,16,32,64,128):
            L += [f"v_mul_f32 v18, v{cur[1]}, v{cur[1]}", f"v_mul_f32_e64 v{nxt[1]}, v{cur[0]}, v{cur[1]} mul:2",
                  f"v_fma_f32 v{nxt[0]}, v{cur[0]}, v{cur[0]}, -v18", f"v_cvt_pk_f16_f32 v{h16[k]}, v{cur[0]}, v{cur[1]}"]
            if k >= 8: L.append(wr(h16[k], k//8))
            cur, nxt = nxt, cur
        e256 = cur
        mark_chain_end = len(L)
        js = [j for j in range(3,32) if j & (j-1)]
        order = [3,5,6,9,7,10,11,12,13,14,15] + list(range(17,32))
        assert sorted(order) == js
        def fdst(j): return FR(j) if j <= 16 else 212 + (j & 3)
        for a in range(0, 26, 2):
            j1, j2 = order[a], order[a+1]
            f = lambda j: cp(fdst(j), FR(1 << (j.bit_length()-1)), FR(j - (1 << (j.bit_length()-1))), False)
            p1, p2 = f(j1), f(j2)
            L += [p1[0], p2[0], p1[1], p2[1], wr(fdst(j1), j1), wr(fdst(j2), j2)]
        L.append("FREADS")
        xs = {0:0, 1:8, 2:12, 3:16, 4:20, 5:18, 6:22, 7:19, 8:23}
        xh = {k: 216+k for k in range(9)}
        xc = (60+2*t, 61+2*t); xa = (24,25); xb = (26,27)
        chain = []
        er, ei = e256
        chain.append([f"v_cvt_pk_f16_f32 v{xh[0]}, v{xc[0]}, v{xc[1]}", wr(xh[0], 32+xs[0])])
        src = xc
        for k in range(1,9):
            dst = xa if k & 1 else xb
            c = [f"v_mul_f32 v18, v{src[0]}, v{er}", f"v_mul_f32 v19, v{src[1]}, v{er}",
                 f"v_fma_f32 v{dst[0]}, v{src[1]}, v{ei}, v18", f"v_fma_f32 v{dst[1]}, -v{src[0]}, v{ei}, v19",
                 f"v_cvt_pk_f16_f32 v{xh[k]}, v{dst[0]}, v{dst[1]}", wr(xh[k], 32+xs[k])]
            if k in (2,4): c.append(wr(xh[k], 32+xs[k]+1))
            chain.append(c); src = dst
        for c in chain: L += c
        g = {n: 226+i for i, n in enumerate((1,2,3,4,5,6,7,258,260,262,516,772))}
        slot = {1:1,2:2,3:3,4:4,5:5,6:6,7:7,258:9,260:10,262:11,516:14,772:17}
        defs = [(1,xh[0],20),(2,xh[0],21),(4,xh[0],22),(258,xh[1],21),(3,g[2],20),(260,xh[1],22),(5,g[4],20),(6,g[4],21),
                (516,xh[2],22),(262,g[260],21),(7,g[6],20),(772,xh[3],22)]
        for a in range(0, 12, 2):
            (n1,p1,q1),(n2,p2,q2) = defs[a], defs[a+1]
            c1, c2 = cp(g[n1],p1,q1,True), cp(g[n2],p2,q2,True)
            L += [c1[0], c2[0], c1[1], c2[1], wr(g[n1], 32+slot[n1]), wr(g[n2], 32+slot[n2])]
        L.append("GREADS")
        return L
    def freads():
        for k in range(8): E(f"ds_read_b128 v[{128+4*k}:{131+4*k}], v58 offset:{32*k}")
    def greads():
        for k in range(8): E(f"ds_read_b128 v[{160+4*k}:{163+4*k}], v58 offset:{32*ROW+32*k}")
    def kmfma(k, first): E(f"v_mfma_f32_32x32x16_f16 v[64:79], v[{160+4*k}:{163+4*k}], v[{128+4*k}:{131+4*k}], {'0' if first else 'v[64:79]'}")
    for s in task(0):
        if s == "FREADS": freads()
        elif s == "GREADS": greads()
        else: E(s)
    T1 = task(1)
    upos = opt.get("upos", "FREADS")
    n = 0; km = 0
    for s in T1:
        if s == "FREADS" or s == "GREADS":
            if s == upos:
                E(f"""
                s_cmp_lt_u32 s3, 4
                s_cbranch_scc1 L_nouload
                v_and_b32 v4, 255, v0
                v_lshlrev_b32 v4, 4, v4
                s_lshl_b32 s12, s4, 14
                s_add_u32 s12, s12, 0x{WS_U:x}
                s_add_u32 s13, s12, 4096
                s_add_u32 s14, s12, 8192
                s_add_u32 s15, s12, 12288
                v_lshlrev_b32 v5, 4, v1
                s_mov_b32 s10, 0x{WS_CAND:x}
                buffer_load_dwordx4 v[96:99], v4, s[60:63], s12 offen sc1
                buffer_load_dwordx4 v[100:103], v4, s[60:63], s13 offen sc1
                buffer_load_dwordx4 v[104:107], v4, s[60:63], s14 offen sc1
                buffer_load_dwordx4 v[108:111], v4, s[60:63], s15 offen sc1
                s_cmp_lt_u32 s3, 7
                s_cbranch_scc1 L_nouload
                buffer_load_dwordx4 v[112:115], v5, s[60:63], s10 offen sc1
                buffer_load_dwordx4 v[116:119], v5, s[60:63], s10 offen offset:1024 sc1
                L_nouload:
                """)
            freads() if s == "FREADS" else greads()
            continue
        if n == 17: E("s_waitcnt lgkmcnt(0)")
        if n >= 17 and (n - 17) % 6 == 0 and km < 8:
            kmfma(km, km == 0); km += 1
        E(s); n += 1
    assert km == 8
    for k in range(8):
        E(f"s_waitcnt lgkmcnt({7-k})"); kmfma(k, False)
    stamp(3)
    E("s_cmp_lt_u32 s3, 4\n s_cbranch_scc1 L_conv")
    E(f"""
    s_and_b32 s8, s3, 3
    s_lshl_b32 s9, s8, 2
    s_add_u32 s9, s9, {M_EF}
    v_mov_b32 v6, s9
    ds_write_b32 v6, v59
    v_and_b32 v7, 3, v0
    v_mul_u32_u24 v7, {USTR}, v7
    v_bfe_u32 v8, v0, 2, 6
    v_lshl_add_u32 v7, v8, 4, v7
    v_add_u32 v7, {UB+512}, v7
    s_mul_i32 s9, s8, {USTR}
    s_add_u32 s9, s9, {UB}
    v_lshl_add_u32 v8, v1, 3, s9
    v_mov_b32 v10, 0
    v_mov_b32 v11, 0
    ds_write_b64 v8, v[10:11]
    s_mov_b32 s9, 0
    """)
    for k in range(12): E(f"ds_write_addtid_b32 v{64+k} offset:{256*k}")
    E("s_waitcnt lgkmcnt(0)\n s_barrier")
    E.label("L_uchk")
    E("s_waitcnt vmcnt(0)")
    for k in range(16): E(f"v_xor_b32 v{96+k}, s{72+(k&3)}, v{96+k}")
    E("v_or3_b32 v10, v96, v97, v98")
    for k in range(3, 15, 2): E(f"v_or3_b32 v10, v10, v{96+k}, v{97+k}")
    E(f"""
    v_or_b32 v10, v10, v111
    v_and_b32 v10, v3, v10
    v_cmp_ne_u32 vcc, 0, v10
    s_add_u32 s9, s9, 1
    s_cbranch_vccz L_uok
    s_cmp_gt_u32 s9, {SPIN}
    s_cbranch_scc1 L_uok
    buffer_load_dwordx4 v[96:99], v4, s[60:63], s12 offen sc1
    buffer_load_dwordx4 v[100:103], v4, s[60:63], s13 offen sc1
    buffer_load_dwordx4 v[104:107], v4, s[60:63], s14 offen sc1
    buffer_load_dwordx4 v[108:111], v4, s[60:63], s15 offen sc1
    s_branch L_uchk
    L_uok:
    """)
    for k in range(4): E(f"ds_write_b128 v7, v[{96+4*k}:{99+4*k}] offset:{1024*k}")
    E(f"""
    s_cmp_lt_u32 s3, 7
    s_cbranch_scc1 L_cok2
    L_cchk:
    v_cmp_ne_u32 vcc, s69, v113
    v_cmp_ne_u32 s[12:13], s69, v115
    v_cmp_ne_u32 s[14:15], s69, v117
    s_or_b64 s[12:13], s[12:13], vcc
    v_cmp_ne_u32 vcc, s69, v119
    s_or_b64 s[12:13], s[12:13], s[14:15]
    s_add_u32 s9, s9, 1
    s_or_b64 s[12:13], s[12:13], vcc
    s_cbranch_scc0 L_cok
    s_cmp_gt_u32 s9, {SPIN}
    s_cbranch_scc1 L_cok
    buffer_load_dwordx4 v[112:115], v5, s[60:63], s10 offen sc1
    buffer_load_dwordx4 v[116:119], v5, s[60:63], s10 offen offset:1024 sc1
    s_waitcnt vmcnt(0)
    s_branch L_cchk
    L_cok:
    v_max3_u32 v10, v112, v114, v116
    v_max_u32 v10, v10, v118
    v_mov_b32 v11, {M_BEST}
    """)
    dpp_reduce("v_max_u32", ["v10"])
    E(f"""
    v_readlane_b32 s12, v10, 63
    s_cmp_lg_u32 s2, 0
    v_mov_b32 v10, s12
    ds_write_b32 v11, v10
    s_cbranch_scc1 L_cok2
    v_mov_b32 v12, s68
    v_mov_b32 v13, s69
    v_mov_b32 v14, s70
    v_mov_b32 v15, s71
    v_mov_b32 v11, 0
    buffer_store_dwordx4 v[12:15], v11, s[60:63], 0 offen
    L_cok2:
    """)
    E(f"""
    s_lshl_b32 s12, s78, 16
    s_and_b32 s13, s78, 0xffff0000
    s_lshl_b32 s14, s79, 16
    s_and_b32 s15, s79, 0xffff0000
    v_mov_b32 v25, 0x44800000
    v_mul_f32 v20, s12, v25
    v_mul_f32 v21, s13, v25
    v_mul_f32 v22, s14, v25
    v_mul_f32 v23, s15, v25
    v_and_b32 v24, 3, v1
    v_lshlrev_b32 v24, 4, v24
    v_bfe_u32 v25, v1, 2, 3
    v_lshl_add_u32 v24, v25, 1, v24
    v_bfe_u32 v25, v0, 5, 3
    v_lshl_add_u32 v24, v25, 6, v24
    s_lshl_b32 s12, s80, 1
    s_add_u32 s12, s12, {UB+512}
    s_lshl_b32 s13, s81, 1
    s_add_u32 s13, s13, {UB+512}
    v_add_u32 v26, s13, v24
    v_add_u32 v24, s12, v24
    s_lshl_b32 s12, s8, 8
    s_add_u32 m0, s12, {YB}
    v_mov_b32 v27, {M_SC}
    s_mov_b32 s15, 0xc238aa3b
    s_waitcnt lgkmcnt(0)
    s_barrier
    s_setprio 0
    ds_read_b128 v[16:19], v27
    ds_read_b32 v28, v27 offset:16
    """)
    stamp(4)
    def prep(i):
        a, off = ("v24", 512*i) if i < 3 else ("v26", 512*(i-3))
        for c in range(4): E(f"ds_read_u16 v{64+c}, {a} offset:{off + c*USTR}")
        E(f"v_lshlrev_b32 v68, 16, v{42+2*i}\n v_and_b32 v69, 0xffff0000, v{42+2*i}\n v_lshlrev_b32 v70, 16, v{43+2*i}\n v_and_b32 v71, 0xffff0000, v{43+2*i}")
        E("s_waitcnt lgkmcnt(0)")
        if i == 0:
            E(f"""
            v_not_b32 v28, v28
            v_and_b32 v28, 0x7ff, v28
            v_mul_u32_u24 v28, 896, v28
            v_mov_b32 v29, {OOB}
            """)
        for c in range(4): E(f"v_fma_mix_f32 v{72+c}, v{64+c}, s15, 0 op_sel_hi:[1,0,0]")
        for c in range(4): E(f"v_exp_f32 v{72+c}, v{72+c}")
        for c in range(4): E(f"v_add_f32 v{72+c}, 1.0, v{72+c}")
        for c in range(4): E(f"v_rcp_f32 v{72+c}, v{72+c}")
        E(f"v_cmp_eq_u32 vcc, v28, v{52+i}")
        for c in range(4): E(f"v_fma_mix_f32 v{72+c}, v{64+c}, v{72+c}, 0 op_sel_hi:[1,0,0]")
        for c in range(4): E(f"v_fma_mix_f32 v{64+c}, v{64+c}, v{20+c}, 0 op_sel_hi:[1,0,0]")
        E(f"v_cndmask_b32 v{52+i}, v{52+i}, v29, vcc")
        for c in range(4): E(f"v_fmac_f32 v{68+c}, v{64+c}, v{72+c}")
        for c in range(4): E(f"v_mul_f32 v{72+c}, v{72+c}, v{16+c}")
    def finish(i):
        for c in range(4): E(f"ds_read_addtid_b32 v{76+c} offset:{4096*i + 1024*c}")
        for c in range(4):
            E(f"s_waitcnt lgkmcnt({3-c})"); E(f"v_fmac_f32 v{68+c}, v{76+c}, v{72+c}")
        E(f"v_cvt_pk_bf16_f32 v{42+2*i}, v68, v69\n v_cvt_pk_bf16_f32 v{43+2*i}, v70, v71")
        E(f"buffer_store_dwordx2 v[{42+2*i}:{43+2*i}], v{52+i}, s[64:67], s11 offen")
    for i in range(5):
        if i == 4: E("s_cmp_eq_u32 s5, 1\n s_cbranch_scc1 L_fin")
        prep(i); E("s_barrier"); finish(i)
    E("s_branch L_fin")
    E.label("L_conv"); E.flush()
    E(f"""
    s_add_u32 m0, s8, {4*TABW}
    s_lshl_b32 s9, s3, 2
    s_add_u32 s9, s9, {M_EF}
    v_mov_b32 v6, s9
    s_mul_i32 s10, s3, {KSTR}
    s_add_u32 s10, s10, {KB}
    v_lshl_add_u32 v7, v1, 4, s10
    v_and_b32 v8, 31, v1
    v_lshrrev_b32 v9, 5, v1
    v_lshlrev_b32 v10, 4, v8
    v_lshl_add_u32 v10, v9, 3, v10
    v_add_u32 v10, s10, v10
    v_lshl_add_u32 v11, v1, 1, s10
    v_and_b32 v12, 1, v1
    v_sub_u32 v12, 0, v12
    v_lshlrev_b32 v13, 4, v8
    v_lshlrev_b32 v9, 6, v9
    v_sub_u32 v13, v13, v9
    s_mul_i32 s12, s3, {USTR}
    s_add_u32 s12, s12, {UB+64}
    v_add_u32 v4, s12, v13
    v_lshrrev_b32 v13, 4, v1
    v_lshlrev_b32 v13, 2, v13
    v_and_b32 v14, 3, v1
    v_add_u32 v13, v13, v14
    v_bfe_u32 v14, v1, 2, 2
    v_sub_u32 v13, v13, v14
    v_lshlrev_b32 v13, 3, v13
    s_add_u32 s12, s10, 32
    v_add_u32 v5, s12, v13
    s_barrier
    ds_read_b32 v13, v6
    """)
    for k in range(12): E(f"ds_read_addtid_b32 v{80+k} offset:{256*k}")
    E(f"""
    v_mul_f32 v57, 0x44800000, v57
    s_waitcnt lgkmcnt(12)
    v_max_u32 v14, v13, v59
    v_sub_u32 v15, v59, v14
    v_sub_u32 v16, v13, v14
    v_ldexp_f32 v15, 1.0, v15
    v_ldexp_f32 v16, 1.0, v16
    v_add_u32 v14, -131, v14
    v_ldexp_f32 v57, v57, v14
    ds_write_b32 v6, v57 offset:16
    """)
    for k in range(12): E(f"v_mul_f32 v{64+k}, v{64+k}, v15")
    E("s_waitcnt lgkmcnt(1)")
    for k in range(12): E(f"v_fmac_f32 v{64+k}, v{80+k}, v16")
    K = lambda k: f"v{64+k}"
    E(f"""
    v_cvt_pk_f16_f32 v20, v64, v65
    v_cvt_pk_f16_f32 v21, v66, v67
    ds_write_b64 v10, v[20:21] offset:64
    v_mov_b32_dpp v80, v72 wave_rol:1 {DPPF}
    v_mov_b32_dpp v81, v74 wave_rol:1 {DPPF}
    v_mov_b32_dpp v82, v75 wave_rol:1 {DPPF}
    v_mov_b32_dpp v83, v75 wave_rol:1 {DPPF}
    v_mov_b32_dpp v80, v68 wave_shl:1 {DPPF}
    v_mov_b32_dpp v81, v72 wave_shl:1 {DPPF}
    v_mov_b32_dpp v82, v74 wave_shl:1 {DPPF}
    v_cvt_pk_f16_f32 v24, v68, v68
    v_mov_b32_dpp v71, v80 quad_perm:[0,1,2,3] row_mask:0xc bank_mask:0xf
    v_cvt_pk_f16_f32 v25, v69, v70
    v_cvt_pk_f16_f32 v26, v70, v70
    v_cvt_pk_f16_f32 v27, v71, v80
    ds_write_b128 v7, v[24:27] offset:{64+512}
    v_bfi_b32 v84, v12, v81, v72
    v_cvt_pk_f16_f32 v30, v84, v81
    v_cvt_pk_f16_f32 v85, v73, v73
    v_cvt_pk_f16_f32 v28, v72, v72
    v_cvt_pk_f16_f32 v29, v72, v73
    v_cvt_pk_f16_f32 v31, v81, v81
    v_mov_b32_dpp v30, v85 quad_perm:[0,1,2,3] row_mask:0x3 bank_mask:0xf
    ds_write_b128 v7, v[28:31] offset:{64+512*3}
    v_bfi_b32 v84, v12, v82, v74
    v_cvt_pk_f16_f32 v88, v74, v74
    v_cvt_pk_f16_f32 v90, v84, v82
    v_cvt_pk_f16_f32 v91, v82, v82
    v_mov_b32 v89, v88
    ds_write_b128 v7, v[88:91] offset:{64+512*5}
    v_bfi_b32 v84, v12, v83, v75
    v_cvt_pk_f16_f32 v92, v75, v75
    v_cvt_pk_f16_f32 v94, v84, v83
    v_cvt_pk_f16_f32 v95, v83, v83
    v_mov_b32 v93, v92
    v_mov_b32 v20, 0
    s_mov_b32 exec_hi, 0
    ds_write_b128 v7, v[92:95] offset:{64+512*7}
    ds_write_b16 v11, v20
    s_mov_b32 exec_hi, -1
    s_lshl_b32 s12, s3, 10
    s_add_u32 m0, s12, {YB}
    v_cmp_le_u32 vcc, 63, v1
    v_cndmask_b32 v6, 0, -1, vcc
    v_cmp_le_u32 vcc, 62, v1
    v_cndmask_b32 v7, 0, -1, vcc
    v_cmp_le_u32 vcc, 61, v1
    v_cndmask_b32 v8, 0, -1, vcc
    """)
    NPRE = 4
    def kread(b):
        return [f"ds_read_b64_tr_b16 v[{128+4*b}:{129+4*b}], v5 offset:{128*b+32}", f"ds_read_b64_tr_b16 v[{130+4*b}:{131+4*b}], v5 offset:{128*b}"]
    for b in range(NPRE):
        for s in kread(b): E(s)
    E("s_waitcnt lgkmcnt(%d)" % (2*NPRE))
    E("s_cmp_eq_u32 s5, 1\n s_barrier")
    stamp(4)
    if dump == "K":
        E(f"""
        s_lshl2_add_u32 s12, s4, s3
        s_mul_i32 s12, s12, 8192
        s_lshl_b32 s13, s5, 12
        s_add_u32 s12, s12, s13
        s_add_u32 s12, s12, 0x{WS_DBG+0x100000:x}
        v_lshl_add_u32 v20, v1, 4, s10
        v_lshlrev_b32 v21, 4, v1
        """)
        for k in range(4):
            E(f"ds_read_b128 v[24:27], v20 offset:{64+1024*k}\n s_waitcnt lgkmcnt(0)\n buffer_store_dwordx4 v[24:27], v21, s[60:63], s12 offen offset:{1024*k}\n s_waitcnt vmcnt(0)")
        E("s_cmp_eq_u32 s5, 1")
    E("s_cbranch_scc1 L_convB")
    def reduce_ops(ti, first, gs):
        A = 32 + 16*ti; P = 32 + 16*(ti-1)
        L = []
        for g in gs:
            for c in (1,2,3):
                cur = A + 4*g + c
                prev = (A + 4*(g-1) + c) if g > 0 else (P + 12 + c)
                dst = 12 + 3*g + (c-1)
                if g == 0 and first: L.append(f"v_mov_b32 v{dst}, v{cur}")
                else: L.append(f"v_bfi_b32 v{dst}, v{5+c}, v{prev}, v{cur}")
        for g in gs: L.append(f"v_add_f32_dpp v{12+3*g+1}, v{12+3*g+2}, v{12+3*g+1} wave_ror:1 {DPPF}")
        for g in gs: L.append(f"v_add_f32_dpp v{12+3*g}, v{12+3*g+1}, v{12+3*g} wave_ror:1 {DPPF}")
        for g in gs: L.append(f"v_add_f32_dpp v{24+g}, v{12+3*g}, v{A+4*g} wave_ror:1 {DPPF}")
        for g in gs: L.append(f"ds_write_addtid_b32 v{24+g} offset:{4096*ti+256*g}")
        return L
    def conv_stream(ty, barpos):
        tiles = TILES[ty]
        jobs = []
        for ti, I0 in enumerate(tiles):
            nb = (I0 + 8 + 1)//2
            for b in range(nb): jobs.append((ti, I0, b, nb))
        D = 3
        q = ["k%d" % b for b in range(NPRE) for _ in range(2)]
        kl = NPRE
        kmax = max(j[3] for j in jobs)
        def issue(text, tag): E(text); q.append(tag)
        def waitfor(tags):
            last = -1
            for i, t in enumerate(q):
                if t in tags: last = i
            if last >= 0:
                n = len(q) - 1 - last
                E(f"s_waitcnt lgkmcnt({min(n,15)})")
                del q[:len(q)-min(n,15)]
        def uread(n):
            ti, I0, b, nb = jobs[n]
            r = 112 + 4*(n % 4)
            issue(f"ds_read_b128 v[{r}:{r+3}], v4 offset:{448 + (I0-2*b)*64}", "u%d" % n)
        for n in range(D): uread(n)
        side = []
        nbar = 0; done_w = set()
        for n, (ti, I0, b, nb) in enumerate(jobs):
            if n + D < len(jobs):
                bb = jobs[n+D][2]
                uread(n + D)
            need_k = max(jobs[m][2] for m in range(n, min(n+D+1, len(jobs))))
            if kl < kmax and (kl <= need_k or True):
                for s in kread(kl): issue(s, "k%d" % kl)
                kl += 1
            waitfor({"u%d" % n, "k%d" % b})
            A = 32 + 16*ti; r = 112 + 4*(n % 4)
            E(f"v_mfma_f32_32x32x16_f16 v[{A}:{A+15}], v[{r}:{r+3}], v[{128+4*b}:{131+4*b}], {'0' if b == 0 else f'v[{A}:{A+15}]'}")
            if b == nb - 1:
                first = ti == 0 or tiles[ti-1] + 8 != I0
                gs = [3] if I0 < 0 else [0,1,2,3]
                side += [(n + 3, ti, s) for s in reduce_ops(ti, first, gs)]
            cnt = 0
            while side and side[0][0] <= n and cnt < (3 if kl < kmax else 5):
                _, tj, s = side.pop(0); cnt += 1
                if s.startswith("ds_"): issue(s, "y%d" % tj)
                else: E(s)
                if not any(x[1] == tj for x in side): done_w.add(tj)
            if nbar < len(tiles)-1 and n >= barpos[nbar] and nbar in done_w:
                waitfor({"y%d" % nbar}); E("s_barrier"); nbar += 1
            if n == opt.get("idxpos", 6): fix_early(ty)
            if n == len(jobs) - opt.get("pollpos", 10): fix_poll(ty)
        for _, tj, s in side:
            E(s)
        assert nbar == len(tiles) - 1, (nbar, ty)
        E("s_waitcnt lgkmcnt(0)\n s_barrier")
    def fix_early(ty):
        pass
    def fix_poll(ty):
        pass
    conv_stream(0, [12, 20, 28, 0])
    E("s_branch L_fix")
    E.label("L_convB"); E.flush()
    conv_stream(1, [0, 0, 0])
    E.label("L_fix"); E.flush()
    stamp(5)
    E(f"""
    s_cmp_lg_u32 s3, 0
    s_cbranch_scc1 L_fin
    v_mov_b32 v4, {M_SC}
    ds_read_b32 v5, v4 offset:16
    v_and_b32 v9, 3, v1
    v_lshlrev_b32 v10, 2, v1
    s_lshl_b32 s8, s4, 9
    s_add_u32 s8, s8, 0x{WS_PART:x}
    buffer_load_dword v12, v10, s[60:63], s8 offen sc1
    buffer_load_dword v13, v10, s[60:63], s8 offen offset:256 sc1
    s_waitcnt lgkmcnt(0)
    v_readfirstlane_b32 s9, v5
    s_andn2_b32 s10, 0x7ff, s9
    s_cmp_lt_u32 s10, 576
    s_cselect_b32 s11, 0, 1
    s_movk_i32 s12, 192
    s_cselect_b32 s12, s12, -544
    s_cmp_ge_u32 s10, 1568
    s_cselect_b32 s11, 0, s11
    s_cselect_b32 s12, -768, s12
    s_cmp_lg_u32 s11, s5
    s_cbranch_scc1 L_fin
    s_add_i32 s12, s12, s10
    s_lshr_b32 s13, s12, 8
    s_lshl_b32 s13, s13, 12
    s_and_b32 s12, s12, 255
    s_lshl2_add_u32 s12, s12, s13
    s_add_u32 s12, s12, {YB}
    v_lshl_add_u32 v14, v9, 10, s12
    ds_read_b32 v14, v14
    s_lshr_b32 s12, s10, 5
    s_lshl_b32 s12, s12, 6
    s_and_b32 s13, s10, 3
    s_lshl_b32 s13, s13, 4
    s_add_u32 s12, s12, s13
    s_bfe_u32 s13, s10, 0x30002
    s_lshl1_add_u32 s12, s13, s12
    s_add_u32 s12, s12, {UB+512}
    v_mul_u32_u24 v15, {USTR}, v9
    v_add_u32 v15, s12, v15
    ds_read_u16 v15, v15
    v_lshl_add_u32 v16, v9, 2, v4
    ds_read_b32 v16, v16
    s_mul_i32 s12, s10, 896
    s_lshl_b32 s13, s4, 3
    s_add_u32 s12, s12, s13
    v_lshlrev_b32 v17, 1, v1
    v_cmp_gt_u32 vcc, 4, v1
    v_mov_b32 v18, {OOB}
    v_cndmask_b32 v17, v18, v17, vcc
    buffer_load_ushort v18, v17, s[52:55], s12 offen
    v_lshlrev_b32 v19, 3, v9
    v_lshrrev_b32 v19, v19, s68
    v_and_b32 v19, 0xff, v19
    v_cmp_gt_u32 vcc, 48, v1
    v_cndmask_b32 v20, 0, -1, vcc
    v_mov_b32 v21, s78
    v_mov_b32 v22, s79
    v_cmp_gt_u32 vcc, 2, v9
    v_cndmask_b32 v21, v22, v21, vcc
    v_not_b32 v22, v1
    v_and_b32 v22, 1, v22
    v_lshlrev_b32 v22, 4, v22
    v_lshlrev_b32 v21, v22, v21
    v_and_b32 v21, 0xffff0000, v21
    s_and_b32 s13, s9, 0xffff0000
    s_not_b32 s14, s13
    s_ashr_i32 s14, s14, 31
    s_and_b32 s14, s14, 0x7fff0000
    s_or_b32 s14, s14, 0x80000000
    s_xor_b32 s13, s13, s14
    v_mov_b32 v22, 0x{LOG2E | 0x80000000:x}
    v_mul_f32 v23, s13, v22
    v_exp_f32 v23, v23
    v_add_f32 v23, 1.0, v23
    v_rcp_f32 v23, v23
    v_cvt_pk_bf16_f32 v23, v23, v23
    v_and_b32 v23, 0xffff0000, v23
    s_waitcnt lgkmcnt(0)
    v_cvt_f32_f16 v15, v15
    v_mul_f32 v15, 0x42000000, v15
    v_mul_f32 v16, 0x3d000000, v16
    v_mul_f32 v14, v14, v16
    v_fmac_f32 v14, v15, v21
    s_mov_b32 s13, 0
    L_pchk:
    s_waitcnt vmcnt(0)
    v_xor_b32 v12, v12, v19
    v_xor_b32 v13, v13, v19
    v_and_b32 v13, v13, v20
    v_or_b32 v24, v12, v13
    v_and_b32 v24, 0xff, v24
    v_cmp_ne_u32 vcc, 0, v24
    s_add_u32 s13, s13, 1
    s_cbranch_vccz L_pok
    s_cmp_gt_u32 s13, {SPIN}
    s_cbranch_scc1 L_pok
    buffer_load_dword v12, v10, s[60:63], s8 offen sc1
    buffer_load_dword v13, v10, s[60:63], s8 offen offset:256 sc1
    s_branch L_pchk
    L_pok:
    v_add_f32 v12, v12, v13
    v_add_f32_dpp v12, v12, v12 row_ror:4 {DPPF}
    v_add_f32_dpp v12, v12, v12 row_ror:8 {DPPF}
    v_mov_b32 v13, v12
    v_permlane16_swap_b32 v12, v13
    v_add_f32 v12, v12, v13
    v_mov_b32 v13, v12
    v_permlane32_swap_b32 v12, v13
    v_add_f32 v12, v12, v13
    v_cvt_pk_bf16_f32 v12, v12, v12
    v_and_b32 v12, 0xffff0000, v12
    v_mul_f32 v12, v12, v23
    v_cvt_pk_bf16_f32 v12, v12, v12
    v_and_b32 v12, 0xffff0000, v12
    v_add_f32 v12, v12, v15
    v_cvt_pk_bf16_f32 v12, v12, v12
    v_and_b32 v12, 0xffff0000, v12
    v_mul_f32 v13, v12, v22
    v_exp_f32 v13, v13
    v_lshlrev_b32 v18, 16, v18
    v_add_f32 v13, 1.0, v13
    v_rcp_f32 v13, v13
    v_mul_f32 v12, v12, v13
    v_fmac_f32 v18, v12, v14
    v_cvt_pk_bf16_f32 v18, v18, v18
    buffer_store_short v18, v17, s[64:67], s12 offen
    s_branch L_fin
    """)
    E.label("L_ffn"); E.flush()
    E("""
    s_cmp_ge_u32 s2, 252
    s_cbranch_scc1 L_fin
    s_mov_b32 s80, s40
    s_mov_b32 s81, s41
    s_mov_b32 s82, 1605632
    s_mov_b32 s83, 0x20000
    v_xor_b32 v36, 64, v36
    s_mov_b32 s11, s9
    """)
    for i in range(7):
        E(f"s_add_u32 m0, s10, {57344 + i*8192}")
        E(f"buffer_load_dwordx4 v36, s[80:83], s11 offen lds")
        if i < 6: E(f"s_add_u32 s11, s11, {8*28672}")
    E("""
    s_cmp_ge_u32 s3, 4
    s_cbranch_scc1 L_nowd
    s_mov_b32 s76, s42
    s_mov_b32 s77, s43
    s_mov_b32 s78, 1605632
    s_mov_b32 s79, 0x20000
    v_lshrrev_b32 v4, 4, v1
    v_mul_u32_u24 v4, 7168, v4
    v_and_b32 v5, 15, v1
    v_lshl_add_u32 v4, v5, 4, v4
    s_mul_i32 s12, s6, 57344
    s_lshl_b32 s13, s3, 8
    s_add_u32 s12, s12, s13
    """)
    for s in range(2):
        for i in range(8):
            r = 128 + 32*s + 4*i
            if i % 4 == 0 and (s, i) != (0, 0): E(f"s_add_u32 s12, s12, {3584 if i == 4 else 28672-3584}")
            E(f"buffer_load_dwordx4 v[{r}:{r+3}], v4, s[76:79], s12 offen offset:{896*(i%4)}")
    E.label("L_nowd")
    E(f"""
    v_lshrrev_b32 v4, 4, v1
    v_bfe_u32 v5, v1, 2, 2
    v_lshl_add_u32 v6, v4, 3, v5
    v_lshlrev_b32 v6, 7, v6
    v_bfe_u32 v7, v1, 1, 1
    v_mov_b32 v8, 57344
    v_mad_u32_u24 v6, v7, v8, v6
    v_bfe_u32 v8, v1, 3, 2
    v_lshl_add_u32 v8, v7, 2, v8
    v_xor_b32 v8, s3, v8
    v_lshl_add_u32 v6, v8, 4, v6
    v_and_b32 v8, 1, v1
    v_lshl_add_u32 v6, v8, 3, v6
    v_and_b32 v7, 15, v1
    v_min_u32 v8, 13, v7
    v_lshl_add_u32 v8, v8, 2, v4
    v_lshlrev_b32 v8, 4, v8
    v_lshlrev_b32 v5, 4, v1
    s_mov_b32 s10, 0x{WS_CAND:x}
    s_lshl_b32 s12, s3, 4
    s_add_u32 s12, s12, {M_H}
    v_lshl_add_u32 v9, v1, 1, s12
    v_mov_b32 v10, {M_H-8}
    v_cmp_gt_u32 vcc, 8, v1
    v_cndmask_b32 v9, v10, v9, vcc
    v_lshlrev_b32 v10, 4, v4
    v_add_u32 v10, {M_H}, v10
    v_lshl_add_u32 v11, v7, 1, v4
    s_lshl_b32 s12, s3, 5
    v_add_u32 v11, s12, v11
    v_cmp_gt_u32 vcc, 112, v11
    v_cmp_gt_u32 s[12:13], 32, v1
    s_and_b64 vcc, vcc, s[12:13]
    v_lshlrev_b32 v11, 9, v11
    v_mov_b32 v12, {OOB}
    v_cndmask_b32 v11, v12, v11, vcc
    s_mov_b32 s14, 0x05040100
    s_mov_b32 s15, 0x07060302
    s_mov_b32 s9, 0
    s_waitcnt vmcnt(0)
    s_barrier
    """)
    stamp(3)
    E("""
    buffer_load_dwordx4 v[112:115], v5, s[60:63], s10 offen sc1
    buffer_load_dwordx4 v[116:119], v5, s[60:63], s10 offen offset:1024 sc1
    """)
    for s in range(14):
        E(f"ds_read_b64_tr_b16 v[{40+4*s}:{41+4*s}], v6 offset:{4096*s}")
        E(f"ds_read_b64_tr_b16 v[{42+4*s}:{43+4*s}], v6 offset:{4096*s+512}")
    E("s_cmp_ge_u32 s3, 4\n s_cbranch_scc1 L_fchk0")
    for s in range(2):
        for m in range(4):
            for ip in range(4):
                a = 128 + 32*s + 4*(2*ip) + m; b = 128 + 32*s + 4*(2*ip+1) + m
                E(f"v_perm_b32 v{192+32*s+4*(2*m)+ip}, v{b}, v{a}, s14")
                E(f"v_perm_b32 v{192+32*s+4*(2*m+1)+ip}, v{b}, v{a}, s15")
    E(f"""
    L_fchk0:
    s_waitcnt vmcnt(0)
    v_cmp_ne_u32 vcc, s69, v113
    v_cmp_ne_u32 s[12:13], s69, v115
    v_cmp_ne_u32 s[14:15], s69, v117
    s_or_b64 s[12:13], s[12:13], vcc
    v_cmp_ne_u32 vcc, s69, v119
    s_or_b64 s[12:13], s[12:13], s[14:15]
    s_add_u32 s9, s9, 1
    s_or_b64 s[12:13], s[12:13], vcc
    s_cbranch_scc0 L_fok
    s_cmp_gt_u32 s9, {SPIN}
    s_cbranch_scc1 L_fok
    buffer_load_dwordx4 v[112:115], v5, s[60:63], s10 offen sc1
    buffer_load_dwordx4 v[116:119], v5, s[60:63], s10 offen offset:1024 sc1
    s_branch L_fchk0
    L_fok:
    v_max3_u32 v12, v112, v114, v116
    v_max_u32 v12, v12, v118
    """)
    dpp_reduce("v_max_u32", ["v12"])
    E(f"""
    v_readlane_b32 s12, v12, 63
    s_andn2_b32 s12, 0x7ff, s12
    s_lshr_b32 s13, s12, 5
    s_and_b32 s12, s12, 3
    s_lshl2_add_u32 s12, s13, s12
    s_lshl_b32 s12, s12, 10
    s_add_u32 s12, s12, 0x{WS_BEST:x}
    s_mov_b32 s13, 0x42000000
    """)
    stamp(4)
    E(f"""
    L_xchk:
    buffer_load_dwordx4 v[12:15], v8, s[60:63], s12 offen sc1
    s_add_u32 s9, s9, 1
    s_waitcnt vmcnt(0)
    v_xor_b32 v12, s72, v12
    v_xor_b32 v13, s73, v13
    v_xor_b32 v14, s74, v14
    v_xor_b32 v15, s75, v15
    v_or3_b32 v16, v12, v13, v14
    v_or_b32 v16, v16, v15
    v_and_b32 v16, v3, v16
    v_cmp_ne_u32 vcc, 0, v16
    s_cmp_gt_u32 s9, {SPIN}
    s_cbranch_scc1 L_xok
    s_cbranch_vccnz L_xchk
    L_xok:
    """)
    for i in range(4):
        E(f"v_fma_mix_f32 v{16+2*i}, v{12+i}, s13, 0 op_sel_hi:[1,0,0]")
        E(f"v_fma_mix_f32 v{17+2*i}, v{12+i}, s13, 0 op_sel:[1,0,0] op_sel_hi:[1,0,0]")
    for i in range(4): E(f"v_cvt_pk_bf16_f32 v{12+i}, v{16+2*i}, v{17+2*i}")
    E("v_mov_b32 v16, 0\n v_mov_b32 v17, 0\n s_waitcnt lgkmcnt(0)")
    def pick(s): return f"v_add_f32_dpp v{16+(s&1)}, v{128+4*s+(s&3)}, v{16+(s&1)} quad_perm:[0,1,2,3] row_mask:0x{1<<(s>>2):x} bank_mask:0xf"
    for s in range(14):
        E(f"v_mfma_f32_16x16x32_bf16 v[{128+4*s}:{131+4*s}], v[12:15], v[{40+4*s}:{43+4*s}], 0")
        if s >= 5: E(pick(s-5))
    for s in range(9, 14): E(pick(s))
    E(f"""
    v_add_f32 v16, v16, v17
    v_mov_b32 v17, v16
    v_permlane16_swap_b32 v16, v17
    v_add_f32 v16, v16, v17
    v_mov_b32 v17, v16
    v_permlane32_swap_b32 v16, v17
    v_add_f32 v16, v16, v17
    v_cvt_pk_bf16_f32 v16, v16, v16
    v_and_b32 v16, 0xffff0000, v16
    v_mul_f32 v17, 0x{LOG2E | 0x80000000:x}, v16
    v_exp_f32 v17, v17
    v_add_f32 v17, 1.0, v17
    v_rcp_f32 v17, v17
    v_mul_f32 v17, v17, v16
    v_cvt_pk_bf16_f32 v17, v17, v17
    v_and_b32 v17, 0xffff0000, v17
    v_mul_f32_dpp v17, v16, v17 row_ror:8 {DPPF}
    v_cvt_pk_bf16_f32 v17, v17, v17
    ds_write_b16 v9, v17
    s_cmp_ge_u32 s3, 4
    s_waitcnt lgkmcnt(0)
    s_barrier
    s_cbranch_scc1 L_fin
    ds_read_b128 v[12:15], v10
    ds_read_b128 v[16:19], v10 offset:64
    s_lshl_b32 s12, s6, 4
    s_add_u32 s12, s12, 0x{WS_PART:x}
    s_lshr_b32 s13, s68, 8
    s_lshr_b32 s14, s68, 16
    s_lshr_b32 s15, s68, 24
    v_mov_b32 v20, 0xff
    s_waitcnt lgkmcnt(1)
    """)
    for e in range(8): E(f"v_mfma_f32_16x16x32_bf16 v[{128+4*e}:{131+4*e}], v[12:15], v[{192+4*e}:{195+4*e}], 0")
    E("s_waitcnt lgkmcnt(0)")
    for e in (0,4,1,5,2,6,3,7): E(f"v_mfma_f32_16x16x32_bf16 v[{128+4*e}:{131+4*e}], v[16:19], v[{224+4*e}:{227+4*e}], v[{128+4*e}:{131+4*e}]")
    for m in range(4): E(f"v_mov_b32_dpp v{128+4*m}, v{144+4*m} quad_perm:[0,1,2,3] row_mask:0x2 bank_mask:0xf")
    for m, sr in enumerate(("s68","s13","s14","s15")): E(f"v_bfi_b32 v{24+m}, v20, {sr}, v{128+4*m}")
    E("buffer_store_dwordx4 v[24:27], v11, s[60:63], s12 offen sc1")
    stamp(5)
    E.label("L_fin"); E.flush()
    if stamps:
        E("s_waitcnt vmcnt(0)")
        stamp(6)
        E(f"""
        s_waitcnt lgkmcnt(0)
        s_lshl_b32 s8, s2, 3
        s_add_u32 s8, s8, s3
        s_lshl_b32 s8, s8, 6
        s_add_u32 s8, s8, 0x{WS_DBG:x}
        v_mov_b32 v4, 0
        """)
        for i in range(7):
            E(f"v_mov_b32 v5, s{84+2*i}\n buffer_store_dword v5, v4, s[60:63], s8 offen offset:{4*i}")
        E("v_mov_b32 v5, s9\n buffer_store_dword v5, v4, s[60:63], s8 offen offset:28")
    E.label("L_end")
    E("s_endpgm")
    E.label("L_codeend")
    E.raw('.section .rodata,"a"'); E.raw(".p2align 6"); E.raw(f".amdhsa_kernel {KN}")
    for l in ("next_free_vgpr 256","next_free_sgpr 102","accum_offset 256","group_segment_fixed_size 0","kernarg_size 136",
              "user_sgpr_count 2","user_sgpr_kernarg_segment_ptr 1","system_sgpr_workgroup_id_x 1","ieee_mode 0"):
        E.raw("  .amdhsa_" + l)
    E.raw(".end_amdhsa_kernel")
    return E.text(), E

if __name__ == "__main__":
    out = sys.argv[1]
    opt = {}
    for a in sys.argv[2:]:
        k, _, v = a.partition("=")
        opt[k] = True if not v else (int(v) if v.lstrip("-").isdigit() else v)
    hdr = open("recurrent_scan__ssm_conv_s4__moe_arch_mod__prompt.s.ref").read().split("; Override launch")[0]
    t, E = gen(opt)
    open(out, "w").write(hdr + t)
    print("wrote", out, "lines", len(E.lines), "nops", E.nops)
```

```python
import sys, os
sys.path.insert(0, os.path.dirname(__file__))
from asm import Emit
KN = "recurrent_scan__ssm_conv_s4__moe_arch_mod__prompt_kernel"

WS_CAND = 0x1000; WS_PART = 0x2000; WS_BEST = 0x10000; WS_U = 0x50000; WS_DBG = 0x400000; WS_SZ = 0x1000000
TABW = 15232; ROW = 272
YB = 0; UB = 121856; USTR = 4640; KB = 140416; KSTR = 4160; LNB = KB; LNS = 960
MISC = 157056; M_KEYS = MISC; M_EF = MISC+32; M_SC = MISC+48; M_BEST = MISC+64; M_H = MISC+128
LDS_SZ = MISC + 256
XB = 1835008
OOB = "0x80000000"
TAGM = 0x40074007
LOG2E = 0x3fb8aa3b; INV2PI = 0x3e22f983; INV448 = 0x3b124925; EPS = 0x3727c5ac
SPIN = 200000
TILES = {0: [-6, 2, 10, 48, 56], 1: [17, 25, 33, 41]}
DPPF = "row_mask:0xf bank_mask:0xf"


def gen(opt):
    stamps = opt.get("stamps", False)
    dump = opt.get("dump", None)
    E = Emit()
    nst = [0]
    def stamp(i):
        if stamps: E(f"s_memrealtime s[{84+2*i}:{85+2*i}]")
    def dpp_reduce(op, regs, fill=()):
        fill = list(fill)
        steps = ["row_shr:1 "+DPPF, "row_shr:2 "+DPPF, "row_shr:4 "+DPPF, "row_shr:8 "+DPPF,
                 "row_bcast:15 row_mask:0xa bank_mask:0xf", "row_bcast:31 row_mask:0xc bank_mask:0xf"]
        per = 3 - len(regs)
        for s in steps:
            for r in regs: E(f"{op}_dpp {r}, {r}, {r} {s}")
            for _ in range(per):
                if fill: E(fill.pop(0))
        for f in fill: E(f)

    E.raw(f"; @launch grid=(256,1,1) block=(512,1,1) lds={LDS_SZ}")
    E.raw('.amdgcn_target "amdgcn-amd-amdhsa--gfx950"')
    E.raw(".text"); E.raw(f".globl {KN}"); E.raw(".p2align 8"); E.raw(f".type {KN},@function"); E.raw(f"{KN}:")
    stamp(0)
    if opt.get("span"): E("s_memrealtime s[84:85]")
    E("""
    s_cmp_ge_u32 s2, 256
    s_cbranch_scc1 L_end
    s_load_dwordx16 s[16:31], s[0:1], 0
    s_load_dwordx16 s[32:47], s[0:1], 64
    s_load_dwordx2 s[48:49], s[0:1], 128
    s_getpc_b64 s[50:51]
    L_pc:
    v_lshrrev_b32 v4, 6, v0
    v_and_b32 v1, 63, v0
    v_readfirstlane_b32 s3, v4
    v_lshlrev_b32 v12, 4, v1
    v_cmp_gt_u32 vcc, 56, v1
    v_mov_b32 v13, %s
    v_cndmask_b32 v13, v13, v12, vcc
    v_cndmask_b32 v14, 0, 1.0, vcc
    v_mov_b32 v3, 0x%x
    s_and_b32 s8, s2, 7
    s_lshr_b32 s9, s2, 3
    s_mul_i32 s10, s8, 28
    s_add_u32 s10, s10, s9
    s_lshr_b32 s4, s10, 1
    s_and_b32 s5, s10, 1
    s_add_i32 s6, s2, -224
    s_lshr_b32 s10, s2, 2
    s_lshl_b32 s10, s10, 5
    s_and_b32 s11, s2, 3
    s_add_u32 s10, s10, s11
    s_lshl2_add_u32 s7, s3, s10
    s_mul_i32 s12, s7, 896
    s_mov_b32 s54, %d
    s_mov_b32 s55, 0x20000
    s_mov_b32 s58, 896
    s_mov_b32 s59, 0x20000
    s_mov_b32 s62, 0x%x
    s_mov_b32 s63, 0x20000
    s_mov_b32 s66, %d
    s_mov_b32 s67, 0x20000
    s_waitcnt lgkmcnt(0)
    s_mov_b32 s52, s16
    s_mov_b32 s53, s17
    s_mov_b32 s56, s36
    s_mov_b32 s57, s37
    buffer_load_dwordx4 v[4:7], v13, s[52:55], s12 offen
    buffer_load_dwordx4 v[8:11], v12, s[56:59], 0 offen
    s_load_dwordx4 s[68:71], s[48:49], 0
    s_mov_b32 s60, s48
    s_mov_b32 s61, s49
    s_mov_b32 s64, s44
    s_mov_b32 s65, s45
    s_cmp_ge_u32 s2, 224
    s_cbranch_scc1 L_pro_ffn
    """ % (OOB, TAGM, XB, WS_SZ, XB))
    E("""
    s_and_b32 s8, s3, 3
    s_lshl2_add_u32 s8, s4, s8
    s_lshl_b32 s8, s8, 9
    s_lshr_b32 s10, s3, 2
    s_lshl_b32 s10, s10, 8
    s_add_u32 s8, s8, s10
    v_lshl_add_u32 v15, v1, 2, s8
    s_lshl_b32 s11, s4, 3
    global_load_dword v38, v15, s[22:23]
    global_load_dword v39, v15, s[24:25]
    global_load_dword v40, v15, s[26:27]
    global_load_dword v41, v15, s[28:29]
    global_load_dword v36, v15, s[18:19]
    global_load_dword v37, v15, s[20:21]
    s_load_dwordx2 s[76:77], s[30:31], s11
    s_load_dwordx2 s[78:79], s[32:33], s11
    s_cmp_ge_u32 s3, 3
    s_cbranch_scc1 L_pf_code
    """)
    E("""
    s_and_b32 s8, s2, 7
    v_lshrrev_b32 v16, 4, v1
    v_lshl_add_u32 v16, v16, 3, s8
    v_min_u32 v16, 27, v16
    v_and_b32 v17, 15, v1
    s_lshl_b32 s10, s9, 4
    v_add_u32 v17, s10, v17
    s_cmp_eq_u32 s3, 2
    s_movk_i32 s12, 128
    s_cselect_b32 s12, s12, 3584
    s_mov_b32 s13, 57344
    s_cselect_b32 s13, s13, 128
    s_cselect_b32 s14, s42, s38
    s_cselect_b32 s15, s43, s39
    s_cmp_eq_u32 s3, 1
    s_cselect_b32 s14, s40, s14
    s_cselect_b32 s15, s41, s15
    v_mul_u32_u24 v17, s12, v17
    v_mad_u32_u24 v17, v16, s13, v17
    global_load_dword v2, v17, s[14:15]
    s_branch L_ln
    L_pf_code:
    s_add_i32 s8, s3, -3
    s_lshl_b32 s8, s8, 12
    v_lshl_add_u32 v16, v1, 6, s8
    v_min_u32 v16, L_codeend-L_pc-4, v16
    global_load_dword v2, v16, s[50:51]
    s_branch L_ln
    L_pro_ffn:
    s_cmp_ge_u32 s2, 252
    s_cbranch_scc0 L_pro_ffn2
    s_waitcnt vmcnt(0)
    s_branch L_ln
    L_pro_ffn2:
    """)
    E("""
    s_mov_b32 s80, s38
    s_mov_b32 s81, s39
    s_mov_b32 s82, 1605632
    s_mov_b32 s83, 0x20000
    v_lshrrev_b32 v16, 3, v1
    v_mul_u32_u24 v16, 3584, v16
    v_bfe_u32 v17, v1, 4, 1
    v_and_b32 v18, 7, v1
    v_xor_b32 v17, v17, v18
    s_and_b32 s8, s3, 1
    s_lshl_b32 s8, s8, 1
    v_xor_b32 v17, s8, v17
    v_lshl_add_u32 v36, v17, 4, v16
    s_mul_i32 s9, s3, 28672
    s_lshl_b32 s10, s6, 7
    s_add_u32 s9, s9, s10
    s_lshl_b32 s10, s3, 10
    s_mov_b32 s11, s9
    """)
    for i in range(7):
        E(f"s_add_u32 m0, s10, {i*8192}")
        E(f"buffer_load_dwordx4 v36, s[80:83], s11 offen lds")
        if i < 6: E(f"s_add_u32 s11, s11, {8*28672}")
    E.label("L_ln"); E.flush()
    E(f"""
    s_mov_b32 s12, 0x3f803f80
    v_min_u32 v15, 56, v1
    s_mul_i32 s13, s3, {LNS}
    s_add_u32 s13, s13, {LNB}
    v_lshl_add_u32 v15, v15, 4, s13
    s_waitcnt vmcnt(7)
    """)
    stamp(1)
    E("""
    v_dot2_f32_bf16 v12, v4, s12, 0
    v_dot2_f32_bf16 v12, v5, s12, v12
    v_dot2_f32_bf16 v12, v6, s12, v12
    v_dot2_f32_bf16 v12, v7, s12, v12
    v_lshlrev_b32 v16, 16, v4
    v_and_b32 v17, 0xffff0000, v4
    v_lshlrev_b32 v18, 16, v5
    """)
    dpp_reduce("v_add_f32", ["v12"], ["v_and_b32 v19, 0xffff0000, v5", "v_lshlrev_b32 v20, 16, v6", "v_and_b32 v21, 0xffff0000, v6",
                                      "v_lshlrev_b32 v22, 16, v7", "v_and_b32 v23, 0xffff0000, v7"])
    E(f"""
    v_mul_f32 v12, 0x{INV448:x}, v12
    v_cvt_pk_bf16_f32 v13, v12, v12
    v_and_b32 v13, 0xffff0000, v13
    v_readlane_b32 s13, v13, 63
    v_sub_f32 v12, v12, v13
    v_mul_f32 v12, v12, v12
    v_mul_f32 v14, s13, v14
    """)
    for i in range(8): E(f"v_sub_f32 v{16+i}, v{16+i}, v14")
    for i in range(4): E(f"v_cvt_pk_bf16_f32 v{24+i}, v{16+2*i}, v{17+2*i}")
    E("v_dot2_f32_bf16 v13, v24, v24, 0"); E("v_dot2_f32_bf16 v14, v24, v8, 0")
    for i in range(1,4):
        E(f"v_dot2_f32_bf16 v13, v{24+i}, v{24+i}, v13"); E(f"v_dot2_f32_bf16 v14, v{24+i}, v{8+i}, v14")
    E("v_lshlrev_b32 v16, 16, v24"); E("v_and_b32 v17, 0xffff0000, v24")
    dpp_reduce("v_add_f32", ["v13","v14"], ["v_lshlrev_b32 v18, 16, v25", "v_and_b32 v19, 0xffff0000, v25", "v_lshlrev_b32 v20, 16, v26",
                                            "v_and_b32 v21, 0xffff0000, v26", "v_lshlrev_b32 v22, 16, v27", "v_and_b32 v23, 0xffff0000, v27"])
    E(f"""
    v_mul_f32 v13, 0x{INV448:x}, v13
    v_sub_f32 v13, v13, v12
    v_max_f32 v13, 0, v13
    v_cvt_pk_bf16_f32 v13, v13, v13
    v_and_b32 v13, 0xffff0000, v13
    v_add_f32 v13, 0x{EPS:x}, v13
    v_cvt_pk_bf16_f32 v13, v13, v13
    v_and_b32 v13, 0xffff0000, v13
    v_sqrt_f32 v13, v13
    v_cvt_pk_bf16_f32 v13, v13, v13
    v_and_b32 v13, 0xffff0000, v13
    v_rcp_f32 v13, v13
    v_mul_f32 v14, v14, v13
    v_mul_f32 v13, 0x3d000000, v13
    v_cvt_pk_bf16_f32 v14, v14, v14
    v_readlane_b32 s13, v13, 63
    v_readlane_b32 s14, v14, 63
    s_sub_u32 s12, 2047, s7
    v_mov_b32 v13, s13
    s_ashr_i32 s15, s14, 31
    s_or_b32 s15, s15, 0x80000000
    s_xor_b32 s14, s14, s15
    s_and_b32 s14, s14, 0xffff0000
    s_or_b32 s14, s14, s12
    """)
    for i in range(8): E(f"v_mul_f32 v{16+i}, v{16+i}, v13")
    for i in range(4): E(f"v_cvt_pkrtz_f16_f32 v{28+i}, v{16+2*i}, v{17+2*i}")
    E(f"""
    ds_write_b128 v15, v[28:31]
    s_lshl_b32 s12, s3, 2
    v_mov_b32 v12, s12
    v_mov_b32 v14, s14
    ds_write_b32 v12, v14 offset:{M_KEYS & 0xffff}
    """.replace(f"v_mov_b32 v12, s12", f"s_add_u32 s12, s12, {M_KEYS & ~0xffff}\n v_mov_b32 v12, s12"))
    E(f"""
    v_bfe_u32 v16, v1, 2, 2
    v_mul_u32_u24 v16, {LNS}, v16
    v_and_b32 v17, 3, v1
    v_lshl_add_u32 v16, v17, 3, v16
    v_lshrrev_b32 v18, 4, v0
    v_lshl_add_u32 v16, v18, 5, v16
    v_add_u32 v16, {LNB}, v16
    v_lshrrev_b32 v18, 2, v0
    v_lshlrev_b32 v18, 14, v18
    v_lshl_add_u32 v18, v17, 4, v18
    s_lshl_b32 s12, s2, 6
    s_add_u32 s12, s12, 0x{WS_U:x}
    s_waitcnt lgkmcnt(0)
    s_add_u32 s68, s68, 1
    s_add_u32 s69, s69, 1
    s_add_u32 s70, s70, 1
    s_add_u32 s71, s71, 1
    s_cmp_eq_u32 s3, 7
    s_barrier
    s_cbranch_scc1 L_pub7
    ds_read_b64_tr_b16 v[32:33], v16
    ds_read_b64_tr_b16 v[34:35], v16 offset:{4*LNS}
    s_branch L_pub
    L_pub7:
    v_mov_b32 v16, {M_KEYS}
    ds_read_b128 v[20:23], v16
    ds_read_b128 v[24:27], v16 offset:16
    v_mov_b32 v29, s69
    s_lshl_b32 s13, s2, 3
    s_add_u32 s13, s13, 0x{WS_CAND:x}
    v_cmp_eq_u32 vcc, 0, v1
    v_mov_b32 v17, {OOB}
    v_cndmask_b32 v19, v17, v1, vcc
    v_cmp_gt_u32 vcc, 56, v1
    v_lshlrev_b32 v18, 4, v1
    v_cndmask_b32 v18, v17, v18, vcc
    s_lshl_b32 s12, s2, 10
    s_add_u32 s12, s12, 0x{WS_BEST:x}
    s_waitcnt lgkmcnt(0)
    v_max3_u32 v20, v20, v21, v22
    v_max3_u32 v24, v24, v25, v26
    v_max3_u32 v28, v20, v23, v24
    v_max_u32 v28, v28, v27
    buffer_store_dwordx2 v[28:29], v19, s[60:63], s13 offen sc1
    v_not_b32 v16, v28
    v_bfe_u32 v16, v16, 2, 3
    v_mul_u32_u24 v16, {LNS}, v16
    v_lshl_add_u32 v16, v1, 4, v16
    v_add_u32 v16, {LNB}, v16
    ds_read_b128 v[32:35], v16
    L_pub:
    s_and_b32 s72, s68, 0x{TAGM:x}
    s_and_b32 s73, s69, 0x{TAGM:x}
    s_and_b32 s74, s70, 0x{TAGM:x}
    s_and_b32 s75, s71, 0x{TAGM:x}
    s_waitcnt lgkmcnt(0)
    """)
    for i in range(4): E(f"v_add_u32 v{32+i}, 0x40004, v{32+i}")
    for i in range(4): E(f"v_bfi_b32 v{32+i}, v3, s{68+i}, v{32+i}")
    E("buffer_store_dwordx4 v[32:35], v18, s[60:63], s12 offen sc1")
    stamp(2)
    E("""
    s_cmp_ge_u32 s2, 224
    s_cbranch_scc1 L_ffn
    """)
    if opt.get("prio", True):
        E("s_cmp_lt_u32 s3, 4\n s_cbranch_scc1 L_noprio\n s_setprio 1\n L_noprio:")
    E(f"""
    s_mul_i32 s8, s3, {TABW}
    s_mov_b32 m0, s8
    s_bitcmp1_b32 s3, 1
    s_cselect_b32 s9, s77, s76
    s_lshl_b32 s10, s9, 16
    s_and_b32 s9, s9, 0xffff0000
    s_bitcmp1_b32 s3, 0
    s_cselect_b32 s9, s9, s10
    v_mov_b32 v4, 0x{LOG2E:x}
    v_mul_f32 v5, s9, v4
    v_exp_f32 v5, v5
    v_mov_b32 v6, 0x3c00
    ds_write_addtid_b32 v6
    v_cvt_pk_bf16_f32 v5, v5, v5
    v_and_b32 v57, 0xffff0000, v5
    v_mul_f32 v6, v57, v4
    v_mul_f32 v7, 0x{INV2PI:x}, v57
    v_and_b32 v58, 31, v1
    v_mul_u32_u24 v58, {ROW}, v58
    v_lshrrev_b32 v4, 5, v1
    v_lshl_add_u32 v58, v4, 4, v58
    v_add_u32 v58, s8, v58
    s_waitcnt vmcnt(2)
    s_cmp_lt_u32 s3, 4
    s_cbranch_scc1 L_noxpf
    """)
    E("""
    s_cmp_eq_u32 s5, 0
    s_movk_i32 s80, -192
    s_cselect_b32 s80, s80, 544
    s_movk_i32 s81, 1536
    s_cselect_b32 s81, s81, 1312
    s_cselect_b32 s82, 0, 576
    s_movk_i32 s83, 1568
    s_cselect_b32 s83, s83, 0
    s_movk_i32 s10, 1792
    s_cselect_b32 s10, s10, 2048
    v_and_b32 v4, 255, v0
    s_movk_i32 s9, 896
    v_add_u32 v8, s80, v4
    v_mul_i32_i24 v52, s9, v8
    v_add_u32 v53, 229376, v52
    v_add_u32 v54, 458752, v52
    v_cmp_le_i32 vcc, s82, v8
    v_mov_b32 v9, %s
    v_cndmask_b32 v52, v9, v52, vcc
    v_add_u32 v8, s81, v4
    v_mul_u32_u24 v55, s9, v8
    v_cmp_le_i32 vcc, s83, v8
    v_add_u32 v8, s10, v4
    v_cndmask_b32 v55, v9, v55, vcc
    v_mul_u32_u24 v56, s9, v8
    s_lshl_b32 s11, s4, 3
    """ % OOB)
    for i in range(5): E(f"buffer_load_dwordx2 v[{42+2*i}:{43+2*i}], v{52+i}, s[52:55], s11 offen")
    E.label("L_noxpf");
    for t in range(2):
        for k, r in enumerate((38,39,40,41)):
            E(f"v_lshlrev_b32 v{8+k}, 16, v{r}" if t == 0 else f"v_and_b32 v{8+k}, 0xffff0000, v{r}")
        E(f"""
        v_mul_f32 v12, v11, v9
        v_mul_f32 v13, v11, v8
        v_fma_f32 v{60+2*t}, v10, v8, -v12
        v_fma_f32 v{61+2*t}, -v10, v9, -v13
        """)
    E("v_max3_f32 v12, |v60|, |v61|, |v62|"); E("v_max_f32 v12, |v63|, v12".replace("v_max_f32","v_max_f32_e64"))
    E("v_lshlrev_b32 v8, 16, v36"); E("v_lshlrev_b32 v9, 16, v37")
    dpp_reduce("v_max_u32", ["v12"], ["v_and_b32 v36, 0xffff0000, v36", "v_and_b32 v37, 0xffff0000, v37",
               "v_mul_f32 v8, v8, v6", "v_mul_f32 v9, v9, v7", "v_mul_f32 v36, v36, v6", "v_mul_f32 v37, v37, v7",
               "v_rndne_f32 v10, v9", "v_rndne_f32 v11, v37", "v_sub_f32 v9, v9, v10", "v_sub_f32 v37, v37, v11"])
    E(f"""
    v_exp_f32 v8, v8
    v_readlane_b32 s9, v12, 63
    v_cos_f32 v10, v9
    v_sin_f32 v11, v9
    s_lshr_b32 s9, s9, 23
    s_max_u32 s9, s9, 8
    s_sub_u32 s10, 258, s9
    s_lshl_b32 s10, s10, 23
    v_mov_b32 v12, s10
    v_mov_b32 v59, s9
    v_mul_f32 v60, v60, v12
    v_mul_f32 v61, v61, v12
    v_mul_f32 v62, v62, v12
    v_mul_f32 v63, v63, v12
    """)
    def wr(reg, row): return f"ds_write_addtid_b32 v{reg} offset:{row*ROW}"
    def cp(d, p, q, conj):
        ng = "neg_hi:[0,1,0]" if conj else "neg_lo:[0,1,0]"
        return (f"v_pk_mul_f16 v{d}, v{p}, v{q} op_sel:[0,0] op_sel_hi:[1,0]",
                f"v_pk_fma_f16 v{d}, v{p}, v{q}, v{d} op_sel:[1,1,0] op_sel_hi:[0,1,1] {ng}")
    FR = lambda j: 192 + j
    def task(t):
        L = []
        if t == 1:
            L += ["v_exp_f32 v8, v36", "v_cos_f32 v10, v37", "v_sin_f32 v11, v37"]
        L += ["v_mul_f32 v14, v8, v10", "v_mul_f32 v15, v8, v11"]
        cur = (14,15); nxt = (16,17)
        h16 = {1: 20, 2: 21, 4: 22, 8: FR(1), 16: FR(2), 32: FR(4), 64: FR(8), 128: FR(16)}
        for k in (1,2,4,8,16,32,64,128):
            L += [f"v_mul_f32 v18, v{cur[1]}, v{cur[1]}", f"v_mul_f32_e64 v{nxt[1]}, v{cur[0]}, v{cur[1]} mul:2",
                  f"v_fma_f32 v{nxt[0]}, v{cur[0]}, v{cur[0]}, -v18", f"v_cvt_pk_f16_f32 v{h16[k]}, v{cur[0]}, v{cur[1]}"]
            if k >= 8: L.append(wr(h16[k], k//8))
            cur, nxt = nxt, cur
        e256 = cur
        mark_chain_end = len(L)
        js = [j for j in range(3,32) if j & (j-1)]
        order = [3,5,6,9,7,10,11,12,13,14,15] + list(range(17,32))
        assert sorted(order) == js
        def fdst(j): return FR(j) if j <= 16 else 212 + (j & 3)
        for a in range(0, 26, 2):
            j1, j2 = order[a], order[a+1]
            f = lambda j: cp(fdst(j), FR(1 << (j.bit_length()-1)), FR(j - (1 << (j.bit_length()-1))), False)
            p1, p2 = f(j1), f(j2)
            L += [p1[0], p2[0], p1[1], p2[1], wr(fdst(j1), j1), wr(fdst(j2), j2)]
        L.append("FREADS")
        xs = {0:0, 1:8, 2:12, 3:16, 4:20, 5:18, 6:22, 7:19, 8:23}
        xh = {k: 216+k for k in range(9)}
        xc = (60+2*t, 61+2*t); xa = (24,25); xb = (26,27)
        chain = []
        er, ei = e256
        chain.append([f"v_cvt_pk_f16_f32 v{xh[0]}, v{xc[0]}, v{xc[1]}", wr(xh[0], 32+xs[0])])
        src = xc
        for k in range(1,9):
            dst = xa if k & 1 else xb
            c = [f"v_mul_f32 v18, v{src[0]}, v{er}", f"v_mul_f32 v19, v{src[1]}, v{er}",
                 f"v_fma_f32 v{dst[0]}, v{src[1]}, v{ei}, v18", f"v_fma_f32 v{dst[1]}, -v{src[0]}, v{ei}, v19",
                 f"v_cvt_pk_f16_f32 v{xh[k]}, v{dst[0]}, v{dst[1]}", wr(xh[k], 32+xs[k])]
            if k in (2,4): c.append(wr(xh[k], 32+xs[k]+1))
            chain.append(c); src = dst
        for c in chain: L += c
        g = {n: 226+i for i, n in enumerate((1,2,3,4,5,6,7,258,260,262,516,772))}
        slot = {1:1,2:2,3:3,4:4,5:5,6:6,7:7,258:9,260:10,262:11,516:14,772:17}
        defs = [(1,xh[0],20),(2,xh[0],21),(4,xh[0],22),(258,xh[1],21),(3,g[2],20),(260,xh[1],22),(5,g[4],20),(6,g[4],21),
                (516,xh[2],22),(262,g[260],21),(7,g[6],20),(772,xh[3],22)]
        for a in range(0, 12, 2):
            (n1,p1,q1),(n2,p2,q2) = defs[a], defs[a+1]
            c1, c2 = cp(g[n1],p1,q1,True), cp(g[n2],p2,q2,True)
            L += [c1[0], c2[0], c1[1], c2[1], wr(g[n1], 32+slot[n1]), wr(g[n2], 32+slot[n2])]
        L.append("GREADS")
        return L
    def freads():
        for k in range(8): E(f"ds_read_b128 v[{128+4*k}:{131+4*k}], v58 offset:{32*k}")
    def greads():
        for k in range(8): E(f"ds_read_b128 v[{160+4*k}:{163+4*k}], v58 offset:{32*ROW+32*k}")
    def kmfma(k, first): E(f"v_mfma_f32_32x32x16_f16 v[64:79], v[{160+4*k}:{163+4*k}], v[{128+4*k}:{131+4*k}], {'0' if first else 'v[64:79]'}")
    for s in task(0):
        if s == "FREADS": freads()
        elif s == "GREADS": greads()
        else: E(s)
    T1 = task(1)
    upos = opt.get("upos", "FREADS")
    n = 0; km = 0
    for s in T1:
        if s == "FREADS" or s == "GREADS":
            if s == upos:
                E(f"""
                s_cmp_lt_u32 s3, 4
                s_cbranch_scc1 L_nouload
                v_and_b32 v4, 255, v0
                v_lshlrev_b32 v4, 4, v4
                s_lshl_b32 s12, s4, 14
                s_add_u32 s12, s12, 0x{WS_U:x}
                s_add_u32 s13, s12, 4096
                s_add_u32 s14, s12, 8192
                s_add_u32 s15, s12, 12288
                v_lshlrev_b32 v5, 4, v1
                s_mov_b32 s10, 0x{WS_CAND:x}
                buffer_load_dwordx4 v[96:99], v4, s[60:63], s12 offen sc1
                buffer_load_dwordx4 v[100:103], v4, s[60:63], s13 offen sc1
                buffer_load_dwordx4 v[104:107], v4, s[60:63], s14 offen sc1
                buffer_load_dwordx4 v[108:111], v4, s[60:63], s15 offen sc1
                s_cmp_lt_u32 s3, 7
                s_cbranch_scc1 L_nouload
                buffer_load_dwordx4 v[112:115], v5, s[60:63], s10 offen sc1
                buffer_load_dwordx4 v[116:119], v5, s[60:63], s10 offen offset:1024 sc1
                L_nouload:
                """)
            freads() if s == "FREADS" else greads()
            continue
        if n == 17: E("s_waitcnt lgkmcnt(0)")
        if n >= 17 and (n - 17) % 6 == 0 and km < 8:
            kmfma(km, km == 0); km += 1
        E(s); n += 1
    assert km == 8
    for k in range(8):
        E(f"s_waitcnt lgkmcnt({7-k})"); kmfma(k, False)
    stamp(3)
    E("s_cmp_lt_u32 s3, 4\n s_cbranch_scc1 L_conv")
    E(f"""
    s_and_b32 s8, s3, 3
    s_lshl_b32 s9, s8, 2
    s_add_u32 s9, s9, {M_EF}
    v_mov_b32 v6, s9
    ds_write_b32 v6, v59
    v_and_b32 v7, 3, v0
    v_mul_u32_u24 v7, {USTR}, v7
    v_bfe_u32 v8, v0, 2, 6
    v_lshl_add_u32 v7, v8, 4, v7
    v_add_u32 v7, {UB+512}, v7
    s_mul_i32 s9, s8, {USTR}
    s_add_u32 s9, s9, {UB}
    v_lshl_add_u32 v8, v1, 3, s9
    v_mov_b32 v10, 0
    v_mov_b32 v11, 0
    ds_write_b64 v8, v[10:11]
    s_mov_b32 s9, 0
    """)
    for k in range(12): E(f"ds_write_addtid_b32 v{64+k} offset:{256*k}")
    E("s_waitcnt lgkmcnt(0)\n s_barrier")
    E.label("L_uchk")
    E("s_waitcnt vmcnt(0)")
    for k in range(16): E(f"v_xor_b32 v{96+k}, s{72+(k&3)}, v{96+k}")
    E("v_or3_b32 v10, v96, v97, v98")
    for k in range(3, 15, 2): E(f"v_or3_b32 v10, v10, v{96+k}, v{97+k}")
    E(f"""
    v_or_b32 v10, v10, v111
    v_and_b32 v10, v3, v10
    v_cmp_ne_u32 vcc, 0, v10
    s_add_u32 s9, s9, 1
    s_cbranch_vccz L_uok
    s_cmp_gt_u32 s9, {SPIN}
    s_cbranch_scc1 L_uok
    buffer_load_dwordx4 v[96:99], v4, s[60:63], s12 offen sc1
    buffer_load_dwordx4 v[100:103], v4, s[60:63], s13 offen sc1
    buffer_load_dwordx4 v[104:107], v4, s[60:63], s14 offen sc1
    buffer_load_dwordx4 v[108:111], v4, s[60:63], s15 offen sc1
    s_branch L_uchk
    L_uok:
    """)
    for k in range(4): E(f"ds_write_b128 v7, v[{96+4*k}:{99+4*k}] offset:{1024*k}")
    E(f"""
    s_cmp_lt_u32 s3, 7
    s_cbranch_scc1 L_cok2
    L_cchk:
    v_cmp_ne_u32 vcc, s69, v113
    v_cmp_ne_u32 s[12:13], s69, v115
    v_cmp_ne_u32 s[14:15], s69, v117
    s_or_b64 s[12:13], s[12:13], vcc
    v_cmp_ne_u32 vcc, s69, v119
    s_or_b64 s[12:13], s[12:13], s[14:15]
    s_add_u32 s9, s9, 1
    s_or_b64 s[12:13], s[12:13], vcc
    s_cbranch_scc0 L_cok
    s_cmp_gt_u32 s9, {SPIN}
    s_cbranch_scc1 L_cok
    buffer_load_dwordx4 v[112:115], v5, s[60:63], s10 offen sc1
    buffer_load_dwordx4 v[116:119], v5, s[60:63], s10 offen offset:1024 sc1
    s_waitcnt vmcnt(0)
    s_branch L_cchk
    L_cok:
    v_max3_u32 v10, v112, v114, v116
    v_max_u32 v10, v10, v118
    v_mov_b32 v11, {M_BEST}
    """)
    dpp_reduce("v_max_u32", ["v10"])
    E(f"""
    v_readlane_b32 s12, v10, 63
    s_cmp_lg_u32 s2, 0
    v_mov_b32 v10, s12
    ds_write_b32 v11, v10
    s_cbranch_scc1 L_cok2
    v_mov_b32 v12, s68
    v_mov_b32 v13, s69
    v_mov_b32 v14, s70
    v_mov_b32 v15, s71
    v_mov_b32 v11, 0
    buffer_store_dwordx4 v[12:15], v11, s[60:63], 0 offen
    L_cok2:
    """)
    E(f"""
    s_lshl_b32 s12, s78, 16
    s_and_b32 s13, s78, 0xffff0000
    s_lshl_b32 s14, s79, 16
    s_and_b32 s15, s79, 0xffff0000
    v_mov_b32 v25, 0x44800000
    v_mul_f32 v20, s12, v25
    v_mul_f32 v21, s13, v25
    v_mul_f32 v22, s14, v25
    v_mul_f32 v23, s15, v25
    v_and_b32 v24, 3, v1
    v_lshlrev_b32 v24, 4, v24
    v_bfe_u32 v25, v1, 2, 3
    v_lshl_add_u32 v24, v25, 1, v24
    v_bfe_u32 v25, v0, 5, 3
    v_lshl_add_u32 v24, v25, 6, v24
    s_lshl_b32 s12, s80, 1
    s_add_u32 s12, s12, {UB+512}
    s_lshl_b32 s13, s81, 1
    s_add_u32 s13, s13, {UB+512}
    v_add_u32 v26, s13, v24
    v_add_u32 v24, s12, v24
    s_lshl_b32 s12, s8, 8
    s_add_u32 m0, s12, {YB}
    v_mov_b32 v27, {M_SC}
    s_mov_b32 s15, 0xc238aa3b
    s_waitcnt lgkmcnt(0)
    s_barrier
    s_setprio 0
    ds_read_b128 v[16:19], v27
    ds_read_b32 v28, v27 offset:16
    """)
    stamp(4)
    def prep(i):
        a, off = ("v24", 512*i) if i < 3 else ("v26", 512*(i-3))
        for c in range(4): E(f"ds_read_u16 v{64+c}, {a} offset:{off + c*USTR}")
        E(f"v_lshlrev_b32 v68, 16, v{42+2*i}\n v_and_b32 v69, 0xffff0000, v{42+2*i}\n v_lshlrev_b32 v70, 16, v{43+2*i}\n v_and_b32 v71, 0xffff0000, v{43+2*i}")
        E("s_waitcnt lgkmcnt(0)")
        if i == 0:
            E(f"""
            v_not_b32 v28, v28
            v_and_b32 v28, 0x7ff, v28
            v_mul_u32_u24 v28, 896, v28
            v_mov_b32 v29, {OOB}
            """)
        for c in range(4): E(f"v_fma_mix_f32 v{72+c}, v{64+c}, s15, 0 op_sel_hi:[1,0,0]")
        for c in range(4): E(f"v_exp_f32 v{72+c}, v{72+c}")
        for c in range(4): E(f"v_add_f32 v{72+c}, 1.0, v{72+c}")
        for c in range(4): E(f"v_rcp_f32 v{72+c}, v{72+c}")
        E(f"v_cmp_eq_u32 vcc, v28, v{52+i}")
        for c in range(4): E(f"v_fma_mix_f32 v{72+c}, v{64+c}, v{72+c}, 0 op_sel_hi:[1,0,0]")
        for c in range(4): E(f"v_fma_mix_f32 v{64+c}, v{64+c}, v{20+c}, 0 op_sel_hi:[1,0,0]")
        E(f"v_cndmask_b32 v{52+i}, v{52+i}, v29, vcc")
        for c in range(4): E(f"v_fmac_f32 v{68+c}, v{64+c}, v{72+c}")
        for c in range(4): E(f"v_mul_f32 v{72+c}, v{72+c}, v{16+c}")
    def finish(i):
        for c in range(4): E(f"ds_read_addtid_b32 v{76+c} offset:{4096*i + 1024*c}")
        for c in range(4):
            E(f"s_waitcnt lgkmcnt({3-c})"); E(f"v_fmac_f32 v{68+c}, v{76+c}, v{72+c}")
        E(f"v_cvt_pk_bf16_f32 v{42+2*i}, v68, v69\n v_cvt_pk_bf16_f32 v{43+2*i}, v70, v71")
        E(f"buffer_store_dwordx2 v[{42+2*i}:{43+2*i}], v{52+i}, s[64:67], s11 offen")
    for i in range(5):
        if i == 4: E("s_cmp_eq_u32 s5, 1\n s_cbranch_scc1 L_fin")
        prep(i); E("s_barrier"); finish(i)
    E("s_branch L_fin")
    E.label("L_conv"); E.flush()
    E(f"""
    s_add_u32 m0, s8, {4*TABW}
    s_lshl_b32 s9, s3, 2
    s_add_u32 s9, s9, {M_EF}
    v_mov_b32 v6, s9
    s_mul_i32 s10, s3, {KSTR}
    s_add_u32 s10, s10, {KB}
    v_lshl_add_u32 v7, v1, 4, s10
    v_and_b32 v8, 31, v1
    v_lshrrev_b32 v9, 5, v1
    v_lshlrev_b32 v10, 4, v8
    v_lshl_add_u32 v10, v9, 3, v10
    v_add_u32 v10, s10, v10
    v_lshl_add_u32 v11, v1, 1, s10
    v_and_b32 v12, 1, v1
    v_sub_u32 v12, 0, v12
    v_lshlrev_b32 v13, 4, v8
    v_lshlrev_b32 v9, 6, v9
    v_sub_u32 v13, v13, v9
    s_mul_i32 s12, s3, {USTR}
    s_add_u32 s12, s12, {UB+64}
    v_add_u32 v4, s12, v13
    v_lshrrev_b32 v13, 4, v1
    v_lshlrev_b32 v13, 2, v13
    v_and_b32 v14, 3, v1
    v_add_u32 v13, v13, v14
    v_bfe_u32 v14, v1, 2, 2
    v_sub_u32 v13, v13, v14
    v_lshlrev_b32 v13, 3, v13
    s_add_u32 s12, s10, 32
    v_add_u32 v5, s12, v13
    s_barrier
    ds_read_b32 v13, v6
    """)
    for k in range(12): E(f"ds_read_addtid_b32 v{80+k} offset:{256*k}")
    E(f"""
    v_mul_f32 v57, 0x44800000, v57
    s_waitcnt lgkmcnt(12)
    v_max_u32 v14, v13, v59
    v_sub_u32 v15, v59, v14
    v_sub_u32 v16, v13, v14
    v_ldexp_f32 v15, 1.0, v15
    v_ldexp_f32 v16, 1.0, v16
    v_add_u32 v14, -131, v14
    v_ldexp_f32 v57, v57, v14
    ds_write_b32 v6, v57 offset:16
    """)
    for k in range(12): E(f"v_mul_f32 v{64+k}, v{64+k}, v15")
    E("s_waitcnt lgkmcnt(1)")
    for k in range(12): E(f"v_fmac_f32 v{64+k}, v{80+k}, v16")
    K = lambda k: f"v{64+k}"
    E(f"""
    v_cvt_pk_f16_f32 v20, v64, v65
    v_cvt_pk_f16_f32 v21, v66, v67
    ds_write_b64 v10, v[20:21] offset:64
    v_mov_b32_dpp v80, v72 wave_rol:1 {DPPF}
    v_mov_b32_dpp v81, v74 wave_rol:1 {DPPF}
    v_mov_b32_dpp v82, v75 wave_rol:1 {DPPF}
    v_mov_b32_dpp v83, v75 wave_rol:1 {DPPF}
    v_mov_b32_dpp v80, v68 wave_shl:1 {DPPF}
    v_mov_b32_dpp v81, v72 wave_shl:1 {DPPF}
    v_mov_b32_dpp v82, v74 wave_shl:1 {DPPF}
    v_cvt_pk_f16_f32 v24, v68, v68
    v_mov_b32_dpp v71, v80 quad_perm:[0,1,2,3] row_mask:0xc bank_mask:0xf
    v_cvt_pk_f16_f32 v25, v69, v70
    v_cvt_pk_f16_f32 v26, v70, v70
    v_cvt_pk_f16_f32 v27, v71, v80
    ds_write_b128 v7, v[24:27] offset:{64+512}
    v_bfi_b32 v84, v12, v81, v72
    v_cvt_pk_f16_f32 v30, v84, v81
    v_cvt_pk_f16_f32 v85, v73, v73
    v_cvt_pk_f16_f32 v28, v72, v72
    v_cvt_pk_f16_f32 v29, v72, v73
    v_cvt_pk_f16_f32 v31, v81, v81
    v_mov_b32_dpp v30, v85 quad_perm:[0,1,2,3] row_mask:0x3 bank_mask:0xf
    ds_write_b128 v7, v[28:31] offset:{64+512*3}
    v_bfi_b32 v84, v12, v82, v74
    v_cvt_pk_f16_f32 v88, v74, v74
    v_cvt_pk_f16_f32 v90, v84, v82
    v_cvt_pk_f16_f32 v91, v82, v82
    v_mov_b32 v89, v88
    ds_write_b128 v7, v[88:91] offset:{64+512*5}
    v_bfi_b32 v84, v12, v83, v75
    v_cvt_pk_f16_f32 v92, v75, v75
    v_cvt_pk_f16_f32 v94, v84, v83
    v_cvt_pk_f16_f32 v95, v83, v83
    v_mov_b32 v93, v92
    v_mov_b32 v20, 0
    s_mov_b32 exec_hi, 0
    ds_write_b128 v7, v[92:95] offset:{64+512*7}
    ds_write_b16 v11, v20
    s_mov_b32 exec_hi, -1
    s_lshl_b32 s12, s3, 10
    s_add_u32 m0, s12, {YB}
    v_cmp_le_u32 vcc, 63, v1
    v_cndmask_b32 v6, 0, -1, vcc
    v_cmp_le_u32 vcc, 62, v1
    v_cndmask_b32 v7, 0, -1, vcc
    v_cmp_le_u32 vcc, 61, v1
    v_cndmask_b32 v8, 0, -1, vcc
    """)
    NPRE = 4
    def kread(b):
        return [f"ds_read_b64_tr_b16 v[{128+4*b}:{129+4*b}], v5 offset:{128*b+32}", f"ds_read_b64_tr_b16 v[{130+4*b}:{131+4*b}], v5 offset:{128*b}"]
    for b in range(NPRE):
        for s in kread(b): E(s)
    E("s_waitcnt lgkmcnt(%d)" % (2*NPRE))
    E("s_cmp_eq_u32 s5, 1\n s_barrier")
    stamp(4)
    if dump == "K":
        E(f"""
        s_lshl2_add_u32 s12, s4, s3
        s_mul_i32 s12, s12, 8192
        s_lshl_b32 s13, s5, 12
        s_add_u32 s12, s12, s13
        s_add_u32 s12, s12, 0x{WS_DBG+0x100000:x}
        v_lshl_add_u32 v20, v1, 4, s10
        v_lshlrev_b32 v21, 4, v1
        """)
        for k in range(4):
            E(f"ds_read_b128 v[24:27], v20 offset:{64+1024*k}\n s_waitcnt lgkmcnt(0)\n buffer_store_dwordx4 v[24:27], v21, s[60:63], s12 offen offset:{1024*k}\n s_waitcnt vmcnt(0)")
        E("s_cmp_eq_u32 s5, 1")
    E("s_cbranch_scc1 L_convB")
    def reduce_ops(ti, first, gs):
        A = 32 + 16*ti; P = 32 + 16*(ti-1)
        L = []
        for g in gs:
            for c in (1,2,3):
                cur = A + 4*g + c
                prev = (A + 4*(g-1) + c) if g > 0 else (P + 12 + c)
                dst = 12 + 3*g + (c-1)
                if g == 0 and first: L.append(f"v_mov_b32 v{dst}, v{cur}")
                else: L.append(f"v_bfi_b32 v{dst}, v{5+c}, v{prev}, v{cur}")
        for g in gs: L.append(f"v_add_f32_dpp v{12+3*g+1}, v{12+3*g+2}, v{12+3*g+1} wave_ror:1 {DPPF}")
        for g in gs: L.append(f"v_add_f32_dpp v{12+3*g}, v{12+3*g+1}, v{12+3*g} wave_ror:1 {DPPF}")
        for g in gs: L.append(f"v_add_f32_dpp v{24+g}, v{12+3*g}, v{A+4*g} wave_ror:1 {DPPF}")
        for g in gs: L.append(f"ds_write_addtid_b32 v{24+g} offset:{4096*ti+256*g}")
        return L
    def conv_stream(ty, barpos):
        tiles = TILES[ty]
        jobs = []
        for ti, I0 in enumerate(tiles):
            nb = (I0 + 8 + 1)//2
            for b in range(nb): jobs.append((ti, I0, b, nb))
        D = 3
        q = ["k%d" % b for b in range(NPRE) for _ in range(2)]
        kl = NPRE
        kmax = max(j[3] for j in jobs)
        def issue(text, tag): E(text); q.append(tag)
        def waitfor(tags):
            last = -1
            for i, t in enumerate(q):
                if t in tags: last = i
            if last >= 0:
                n = len(q) - 1 - last
                E(f"s_waitcnt lgkmcnt({min(n,15)})")
                del q[:len(q)-min(n,15)]
        def uread(n):
            ti, I0, b, nb = jobs[n]
            r = 112 + 4*(n % 4)
            issue(f"ds_read_b128 v[{r}:{r+3}], v4 offset:{448 + (I0-2*b)*64}", "u%d" % n)
        for n in range(D): uread(n)
        side = []
        nbar = 0; done_w = set()
        for n, (ti, I0, b, nb) in enumerate(jobs):
            if n + D < len(jobs):
                bb = jobs[n+D][2]
                uread(n + D)
            need_k = max(jobs[m][2] for m in range(n, min(n+D+1, len(jobs))))
            if kl < kmax and (kl <= need_k or True):
                for s in kread(kl): issue(s, "k%d" % kl)
                kl += 1
            waitfor({"u%d" % n, "k%d" % b})
            A = 32 + 16*ti; r = 112 + 4*(n % 4)
            E(f"v_mfma_f32_32x32x16_f16 v[{A}:{A+15}], v[{r}:{r+3}], v[{128+4*b}:{131+4*b}], {'0' if b == 0 else f'v[{A}:{A+15}]'}")
            if b == nb - 1:
                first = ti == 0 or tiles[ti-1] + 8 != I0
                gs = [3] if I0 < 0 else [0,1,2,3]
                side += [(n + 3, ti, s) for s in reduce_ops(ti, first, gs)]
            cnt = 0
            while side and side[0][0] <= n and cnt < (3 if kl < kmax else 5):
                _, tj, s = side.pop(0); cnt += 1
                if s.startswith("ds_"): issue(s, "y%d" % tj)
                else: E(s)
                if not any(x[1] == tj for x in side): done_w.add(tj)
            if nbar < len(tiles)-1 and n >= barpos[nbar] and nbar in done_w:
                waitfor({"y%d" % nbar}); E("s_barrier"); nbar += 1
            if n == opt.get("idxpos", 6): fix_early(ty)
            if n == len(jobs) - opt.get("pollpos", 10): fix_poll(ty)
        for _, tj, s in side:
            E(s)
        assert nbar == len(tiles) - 1, (nbar, ty)
        E("s_waitcnt lgkmcnt(0)\n s_barrier")
    def fix_early(ty):
        pass
    def fix_poll(ty):
        pass
    conv_stream(0, [12, 20, 28, 0])
    E("s_branch L_fix")
    E.label("L_convB"); E.flush()
    conv_stream(1, [0, 0, 0])
    E.label("L_fix"); E.flush()
    stamp(5)
    E(f"""
    s_cmp_lg_u32 s3, 0
    s_cbranch_scc1 L_fin
    v_mov_b32 v4, {M_SC}
    ds_read_b32 v5, v4 offset:16
    v_and_b32 v9, 3, v1
    v_lshlrev_b32 v10, 2, v1
    s_lshl_b32 s8, s4, 9
    s_add_u32 s8, s8, 0x{WS_PART:x}
    buffer_load_dword v12, v10, s[60:63], s8 offen sc1
    buffer_load_dword v13, v10, s[60:63], s8 offen offset:256 sc1
    s_waitcnt lgkmcnt(0)
    v_readfirstlane_b32 s9, v5
    s_andn2_b32 s10, 0x7ff, s9
    s_cmp_lt_u32 s10, 576
    s_cselect_b32 s11, 0, 1
    s_movk_i32 s12, 192
    s_cselect_b32 s12, s12, -544
    s_cmp_ge_u32 s10, 1568
    s_cselect_b32 s11, 0, s11
    s_cselect_b32 s12, -768, s12
    s_cmp_lg_u32 s11, s5
    s_cbranch_scc1 L_fin
    s_add_i32 s12, s12, s10
    s_lshr_b32 s13, s12, 8
    s_lshl_b32 s13, s13, 12
    s_and_b32 s12, s12, 255
    s_lshl2_add_u32 s12, s12, s13
    s_add_u32 s12, s12, {YB}
    v_lshl_add_u32 v14, v9, 10, s12
    ds_read_b32 v14, v14
    s_lshr_b32 s12, s10, 5
    s_lshl_b32 s12, s12, 6
    s_and_b32 s13, s10, 3
    s_lshl_b32 s13, s13, 4
    s_add_u32 s12, s12, s13
    s_bfe_u32 s13, s10, 0x30002
    s_lshl1_add_u32 s12, s13, s12
    s_add_u32 s12, s12, {UB+512}
    v_mul_u32_u24 v15, {USTR}, v9
    v_add_u32 v15, s12, v15
    ds_read_u16 v15, v15
    v_lshl_add_u32 v16, v9, 2, v4
    ds_read_b32 v16, v16
    s_mul_i32 s12, s10, 896
    s_lshl_b32 s13, s4, 3
    s_add_u32 s12, s12, s13
    v_lshlrev_b32 v17, 1, v1
    v_cmp_gt_u32 vcc, 4, v1
    v_mov_b32 v18, {OOB}
    v_cndmask_b32 v17, v18, v17, vcc
    buffer_load_ushort v18, v17, s[52:55], s12 offen
    v_lshlrev_b32 v19, 3, v9
    v_lshrrev_b32 v19, v19, s68
    v_and_b32 v19, 0xff, v19
    v_cmp_gt_u32 vcc, 48, v1
    v_cndmask_b32 v20, 0, -1, vcc
    v_mov_b32 v21, s78
    v_mov_b32 v22, s79
    v_cmp_gt_u32 vcc, 2, v9
    v_cndmask_b32 v21, v22, v21, vcc
    v_not_b32 v22, v1
    v_and_b32 v22, 1, v22
    v_lshlrev_b32 v22, 4, v22
    v_lshlrev_b32 v21, v22, v21
    v_and_b32 v21, 0xffff0000, v21
    s_and_b32 s13, s9, 0xffff0000
    s_not_b32 s14, s13
    s_ashr_i32 s14, s14, 31
    s_and_b32 s14, s14, 0x7fff0000
    s_or_b32 s14, s14, 0x80000000
    s_xor_b32 s13, s13, s14
    v_mov_b32 v22, 0x{LOG2E | 0x80000000:x}
    v_mul_f32 v23, s13, v22
    v_exp_f32 v23, v23
    v_add_f32 v23, 1.0, v23
    v_rcp_f32 v23, v23
    v_cvt_pk_bf16_f32 v23, v23, v23
    v_and_b32 v23, 0xffff0000, v23
    s_waitcnt lgkmcnt(0)
    v_cvt_f32_f16 v15, v15
    v_mul_f32 v15, 0x42000000, v15
    v_mul_f32 v16, 0x3d000000, v16
    v_mul_f32 v14, v14, v16
    v_fmac_f32 v14, v15, v21
    s_mov_b32 s13, 0
    L_pchk:
    s_waitcnt vmcnt(0)
    v_xor_b32 v12, v12, v19
    v_xor_b32 v13, v13, v19
    v_and_b32 v13, v13, v20
    v_or_b32 v24, v12, v13
    v_and_b32 v24, 0xff, v24
    v_cmp_ne_u32 vcc, 0, v24
    s_add_u32 s13, s13, 1
    s_cbranch_vccz L_pok
    s_cmp_gt_u32 s13, {SPIN}
    s_cbranch_scc1 L_pok
    buffer_load_dword v12, v10, s[60:63], s8 offen sc1
    buffer_load_dword v13, v10, s[60:63], s8 offen offset:256 sc1
    s_branch L_pchk
    L_pok:
    v_add_f32 v12, v12, v13
    v_add_f32_dpp v12, v12, v12 row_ror:4 {DPPF}
    v_add_f32_dpp v12, v12, v12 row_ror:8 {DPPF}
    v_mov_b32 v13, v12
    v_permlane16_swap_b32 v12, v13
    v_add_f32 v12, v12, v13
    v_mov_b32 v13, v12
    v_permlane32_swap_b32 v12, v13
    v_add_f32 v12, v12, v13
    v_cvt_pk_bf16_f32 v12, v12, v12
    v_and_b32 v12, 0xffff0000, v12
    v_mul_f32 v12, v12, v23
    v_cvt_pk_bf16_f32 v12, v12, v12
    v_and_b32 v12, 0xffff0000, v12
    v_add_f32 v12, v12, v15
    v_cvt_pk_bf16_f32 v12, v12, v12
    v_and_b32 v12, 0xffff0000, v12
    v_mul_f32 v13, v12, v22
    v_exp_f32 v13, v13
    v_lshlrev_b32 v18, 16, v18
    v_add_f32 v13, 1.0, v13
    v_rcp_f32 v13, v13
    v_mul_f32 v12, v12, v13
    v_fmac_f32 v18, v12, v14
    v_cvt_pk_bf16_f32 v18, v18, v18
    buffer_store_short v18, v17, s[64:67], s12 offen
    s_branch L_fin
    """)
    E.label("L_ffn"); E.flush()
    E("""
    s_cmp_ge_u32 s2, 252
    s_cbranch_scc1 L_fin
    s_mov_b32 s80, s40
    s_mov_b32 s81, s41
    s_mov_b32 s82, 1605632
    s_mov_b32 s83, 0x20000
    v_xor_b32 v36, 64, v36
    s_mov_b32 s11, s9
    """)
    for i in range(7):
        E(f"s_add_u32 m0, s10, {57344 + i*8192}")
        E(f"buffer_load_dwordx4 v36, s[80:83], s11 offen lds")
        if i < 6: E(f"s_add_u32 s11, s11, {8*28672}")
    E("""
    s_cmp_ge_u32 s3, 4
    s_cbranch_scc1 L_nowd
    s_mov_b32 s76, s42
    s_mov_b32 s77, s43
    s_mov_b32 s78, 1605632
    s_mov_b32 s79, 0x20000
    v_lshrrev_b32 v4, 4, v1
    v_mul_u32_u24 v4, 7168, v4
    v_and_b32 v5, 15, v1
    v_lshl_add_u32 v4, v5, 4, v4
    s_mul_i32 s12, s6, 57344
    s_lshl_b32 s13, s3, 8
    s_add_u32 s12, s12, s13
    """)
    for s in range(2):
        for i in range(8):
            r = 128 + 32*s + 4*i
            if i % 4 == 0 and (s, i) != (0, 0): E(f"s_add_u32 s12, s12, {3584 if i == 4 else 28672-3584}")
            E(f"buffer_load_dwordx4 v[{r}:{r+3}], v4, s[76:79], s12 offen offset:{896*(i%4)}")
    E.label("L_nowd")
    E(f"""
    v_lshrrev_b32 v4, 4, v1
    v_bfe_u32 v5, v1, 2, 2
    v_lshl_add_u32 v6, v4, 3, v5
    v_lshlrev_b32 v6, 7, v6
    v_bfe_u32 v7, v1, 1, 1
    v_mov_b32 v8, 57344
    v_mad_u32_u24 v6, v7, v8, v6
    v_bfe_u32 v8, v1, 3, 2
    v_lshl_add_u32 v8, v7, 2, v8
    v_xor_b32 v8, s3, v8
    v_lshl_add_u32 v6, v8, 4, v6
    v_and_b32 v8, 1, v1
    v_lshl_add_u32 v6, v8, 3, v6
    v_and_b32 v7, 15, v1
    v_min_u32 v8, 13, v7
    v_lshl_add_u32 v8, v8, 2, v4
    v_lshlrev_b32 v8, 4, v8
    v_lshlrev_b32 v5, 4, v1
    s_mov_b32 s10, 0x{WS_CAND:x}
    s_lshl_b32 s12, s3, 4
    s_add_u32 s12, s12, {M_H}
    v_lshl_add_u32 v9, v1, 1, s12
    v_mov_b32 v10, {M_H-8}
    v_cmp_gt_u32 vcc, 8, v1
    v_cndmask_b32 v9, v10, v9, vcc
    v_lshlrev_b32 v10, 4, v4
    v_add_u32 v10, {M_H}, v10
    v_lshl_add_u32 v11, v7, 1, v4
    s_lshl_b32 s12, s3, 5
    v_add_u32 v11, s12, v11
    v_cmp_gt_u32 vcc, 112, v11
    v_cmp_gt_u32 s[12:13], 32, v1
    s_and_b64 vcc, vcc, s[12:13]
    v_lshlrev_b32 v11, 9, v11
    v_mov_b32 v12, {OOB}
    v_cndmask_b32 v11, v12, v11, vcc
    s_mov_b32 s14, 0x05040100
    s_mov_b32 s15, 0x07060302
    s_mov_b32 s9, 0
    s_waitcnt vmcnt(0)
    s_barrier
    """)
    stamp(3)
    E("""
    buffer_load_dwordx4 v[112:115], v5, s[60:63], s10 offen sc1
    buffer_load_dwordx4 v[116:119], v5, s[60:63], s10 offen offset:1024 sc1
    """)
    for s in range(14):
        E(f"ds_read_b64_tr_b16 v[{40+4*s}:{41+4*s}], v6 offset:{4096*s}")
        E(f"ds_read_b64_tr_b16 v[{42+4*s}:{43+4*s}], v6 offset:{4096*s+512}")
    E("s_cmp_ge_u32 s3, 4\n s_cbranch_scc1 L_fchk0")
    for s in range(2):
        for m in range(4):
            for ip in range(4):
                a = 128 + 32*s + 4*(2*ip) + m; b = 128 + 32*s + 4*(2*ip+1) + m
                E(f"v_perm_b32 v{192+32*s+4*(2*m)+ip}, v{b}, v{a}, s14")
                E(f"v_perm_b32 v{192+32*s+4*(2*m+1)+ip}, v{b}, v{a}, s15")
    E(f"""
    L_fchk0:
    s_waitcnt vmcnt(0)
    v_cmp_ne_u32 vcc, s69, v113
    v_cmp_ne_u32 s[12:13], s69, v115
    v_cmp_ne_u32 s[14:15], s69, v117
    s_or_b64 s[12:13], s[12:13], vcc
    v_cmp_ne_u32 vcc, s69, v119
    s_or_b64 s[12:13], s[12:13], s[14:15]
    s_add_u32 s9, s9, 1
    s_or_b64 s[12:13], s[12:13], vcc
    s_cbranch_scc0 L_fok
    s_cmp_gt_u32 s9, {SPIN}
    s_cbranch_scc1 L_fok
    buffer_load_dwordx4 v[112:115], v5, s[60:63], s10 offen sc1
    buffer_load_dwordx4 v[116:119], v5, s[60:63], s10 offen offset:1024 sc1
    s_branch L_fchk0
    L_fok:
    v_max3_u32 v12, v112, v114, v116
    v_max_u32 v12, v12, v118
    """)
    dpp_reduce("v_max_u32", ["v12"])
    E(f"""
    v_readlane_b32 s12, v12, 63
    s_andn2_b32 s12, 0x7ff, s12
    s_lshr_b32 s13, s12, 5
    s_and_b32 s12, s12, 3
    s_lshl2_add_u32 s12, s13, s12
    s_lshl_b32 s12, s12, 10
    s_add_u32 s12, s12, 0x{WS_BEST:x}
    s_mov_b32 s13, 0x42000000
    """)
    stamp(4)
    E(f"""
    L_xchk:
    buffer_load_dwordx4 v[12:15], v8, s[60:63], s12 offen sc1
    s_add_u32 s9, s9, 1
    s_waitcnt vmcnt(0)
    v_xor_b32 v12, s72, v12
    v_xor_b32 v13, s73, v13
    v_xor_b32 v14, s74, v14
    v_xor_b32 v15, s75, v15
    v_or3_b32 v16, v12, v13, v14
    v_or_b32 v16, v16, v15
    v_and_b32 v16, v3, v16
    v_cmp_ne_u32 vcc, 0, v16
    s_cmp_gt_u32 s9, {SPIN}
    s_cbranch_scc1 L_xok
    s_cbranch_vccnz L_xchk
    L_xok:
    """)
    for i in range(4):
        E(f"v_fma_mix_f32 v{16+2*i}, v{12+i}, s13, 0 op_sel_hi:[1,0,0]")
        E(f"v_fma_mix_f32 v{17+2*i}, v{12+i}, s13, 0 op_sel:[1,0,0] op_sel_hi:[1,0,0]")
    for i in range(4): E(f"v_cvt_pk_bf16_f32 v{12+i}, v{16+2*i}, v{17+2*i}")
    E("v_mov_b32 v16, 0\n v_mov_b32 v17, 0\n s_waitcnt lgkmcnt(0)")
    def pick(s): return f"v_add_f32_dpp v{16+(s&1)}, v{128+4*s+(s&3)}, v{16+(s&1)} quad_perm:[0,1,2,3] row_mask:0x{1<<(s>>2):x} bank_mask:0xf"
    for s in range(14):
        E(f"v_mfma_f32_16x16x32_bf16 v[{128+4*s}:{131+4*s}], v[12:15], v[{40+4*s}:{43+4*s}], 0")
        if s >= 5: E(pick(s-5))
    for s in range(9, 14): E(pick(s))
    E(f"""
    v_add_f32 v16, v16, v17
    v_mov_b32 v17, v16
    v_permlane16_swap_b32 v16, v17
    v_add_f32 v16, v16, v17
    v_mov_b32 v17, v16
    v_permlane32_swap_b32 v16, v17
    v_add_f32 v16, v16, v17
    v_cvt_pk_bf16_f32 v16, v16, v16
    v_and_b32 v16, 0xffff0000, v16
    v_mul_f32 v17, 0x{LOG2E | 0x80000000:x}, v16
    v_exp_f32 v17, v17
    v_add_f32 v17, 1.0, v17
    v_rcp_f32 v17, v17
    v_mul_f32 v17, v17, v16
    v_cvt_pk_bf16_f32 v17, v17, v17
    v_and_b32 v17, 0xffff0000, v17
    v_mul_f32_dpp v17, v16, v17 row_ror:8 {DPPF}
    v_cvt_pk_bf16_f32 v17, v17, v17
    ds_write_b16 v9, v17
    s_cmp_ge_u32 s3, 4
    s_waitcnt lgkmcnt(0)
    s_barrier
    s_cbranch_scc1 L_fin
    ds_read_b128 v[12:15], v10
    ds_read_b128 v[16:19], v10 offset:64
    s_lshl_b32 s12, s6, 4
    s_add_u32 s12, s12, 0x{WS_PART:x}
    s_lshr_b32 s13, s68, 8
    s_lshr_b32 s14, s68, 16
    s_lshr_b32 s15, s68, 24
    v_mov_b32 v20, 0xff
    s_waitcnt lgkmcnt(1)
    """)
    for e in range(8): E(f"v_mfma_f32_16x16x32_bf16 v[{128+4*e}:{131+4*e}], v[12:15], v[{192+4*e}:{195+4*e}], 0")
    E("s_waitcnt lgkmcnt(0)")
    for e in (0,4,1,5,2,6,3,7): E(f"v_mfma_f32_16x16x32_bf16 v[{128+4*e}:{131+4*e}], v[16:19], v[{224+4*e}:{227+4*e}], v[{128+4*e}:{131+4*e}]")
    for m in range(4): E(f"v_mov_b32_dpp v{128+4*m}, v{144+4*m} quad_perm:[0,1,2,3] row_mask:0x2 bank_mask:0xf")
    for m, sr in enumerate(("s68","s13","s14","s15")): E(f"v_bfi_b32 v{24+m}, v20, {sr}, v{128+4*m}")
    E("buffer_store_dwordx4 v[24:27], v11, s[60:63], s12 offen sc1")
    stamp(5)
    E.label("L_fin"); E.flush()
    if opt.get("span"):
        E(f"""
        s_waitcnt vmcnt(0)
        L_spanw:
        s_memrealtime s[86:87]
        s_waitcnt lgkmcnt(0)
        s_sub_u32 s86, s86, s84
        s_cmp_lt_u32 s86, {opt["span"]}
        s_cbranch_scc1 L_spanw
        """)
    if stamps:
        E("s_waitcnt vmcnt(0)")
        stamp(6)
        E(f"""
        s_waitcnt lgkmcnt(0)
        s_lshl_b32 s8, s2, 3
        s_add_u32 s8, s8, s3
        s_lshl_b32 s8, s8, 6
        s_add_u32 s8, s8, 0x{WS_DBG:x}
        v_mov_b32 v4, 0
        """)
        for i in range(7):
            E(f"v_mov_b32 v5, s{84+2*i}\n buffer_store_dword v5, v4, s[60:63], s8 offen offset:{4*i}")
        E("v_mov_b32 v5, s9\n buffer_store_dword v5, v4, s[60:63], s8 offen offset:28")
    E.label("L_end")
    E("s_endpgm")
    E.label("L_codeend")
    E.raw('.section .rodata,"a"'); E.raw(".p2align 6"); E.raw(f".amdhsa_kernel {KN}")
    for l in ("next_free_vgpr 256","next_free_sgpr 102","accum_offset 256","group_segment_fixed_size 0","kernarg_size 136",
              "user_sgpr_count 2","user_sgpr_kernarg_segment_ptr 1","system_sgpr_workgroup_id_x 1","ieee_mode 0"):
        E.raw("  .amdhsa_" + l)
    E.raw(".end_amdhsa_kernel")
    return E.text(), E

if __name__ == "__main__":
    out = sys.argv[1]
    opt = {}
    for a in sys.argv[2:]:
        k, _, v = a.partition("=")
        opt[k] = True if not v else (int(v) if v.lstrip("-").isdigit() else v)
    hdr = open("recurrent_scan__ssm_conv_s4__moe_arch_mod__prompt.s.ref").read().split("; Override launch")[0]
    t, E = gen(opt)
    open(out, "w").write(hdr + t)
    print("wrote", out, "lines", len(E.lines), "nops", E.nops)
```

```python
import sys, os
sys.path.insert(0, os.path.dirname(__file__))
from asm import Emit
KN = "recurrent_scan__ssm_conv_s4__moe_arch_mod__prompt_kernel"

WS_CAND = 0x1000; WS_PART = 0x2000; WS_BEST = 0x10000; WS_U = 0x50000; WS_DBG = 0x400000; WS_SZ = 0x1000000
TABW = 15232; ROW = 272
YB = 0; UB = 121856; USTR = 4640; KB = 140416; KSTR = 4160; LNB = KB; LNS = 960
MISC = 157056; M_KEYS = MISC; M_EF = MISC+32; M_SC = MISC+48; M_BEST = MISC+64; M_H = MISC+128
LDS_SZ = MISC + 256
XB = 1835008
OOB = "0x80000000"
TAGM = 0x40074007
LOG2E = 0x3fb8aa3b; INV2PI = 0x3e22f983; INV448 = 0x3b124925; EPS = 0x3727c5ac
SPIN = 200000
TILES = {0: [-6, 2, 10, 48, 56], 1: [17, 25, 33, 41]}
DPPF = "row_mask:0xf bank_mask:0xf"


def gen(opt):
    stamps = opt.get("stamps", False)
    dump = opt.get("dump", None)
    E = Emit()
    nst = [0]
    def stamp(i):
        if stamps: E(f"s_memrealtime s[{84+2*i}:{85+2*i}]")
    def dpp_reduce(op, regs, fill=()):
        fill = list(fill)
        steps = ["row_shr:1 "+DPPF, "row_shr:2 "+DPPF, "row_shr:4 "+DPPF, "row_shr:8 "+DPPF,
                 "row_bcast:15 row_mask:0xa bank_mask:0xf", "row_bcast:31 row_mask:0xc bank_mask:0xf"]
        per = 3 - len(regs)
        for s in steps:
            for r in regs: E(f"{op}_dpp {r}, {r}, {r} {s}")
            for _ in range(per):
                if fill: E(fill.pop(0))
        for f in fill: E(f)

    E.raw(f"; @launch grid=(256,1,1) block=(512,1,1) lds={LDS_SZ}")
    E.raw('.amdgcn_target "amdgcn-amd-amdhsa--gfx950"')
    E.raw(".text"); E.raw(f".globl {KN}"); E.raw(".p2align 8"); E.raw(f".type {KN},@function"); E.raw(f"{KN}:")
    stamp(0)
    if opt.get("span"): E("s_memrealtime s[84:85]")
    E("""
    s_cmp_ge_u32 s2, 256
    s_cbranch_scc1 L_end
    s_load_dwordx16 s[16:31], s[0:1], 0
    s_load_dwordx16 s[32:47], s[0:1], 64
    s_load_dwordx2 s[48:49], s[0:1], 128
    s_getpc_b64 s[50:51]
    L_pc:
    v_lshrrev_b32 v4, 6, v0
    v_and_b32 v1, 63, v0
    v_readfirstlane_b32 s3, v4
    v_lshlrev_b32 v12, 4, v1
    v_cmp_gt_u32 vcc, 56, v1
    v_mov_b32 v13, %s
    v_cndmask_b32 v13, v13, v12, vcc
    v_cndmask_b32 v14, 0, 1.0, vcc
    v_mov_b32 v3, 0x%x
    s_and_b32 s8, s2, 7
    s_lshr_b32 s9, s2, 3
    s_mul_i32 s10, s8, 28
    s_add_u32 s10, s10, s9
    s_lshr_b32 s4, s10, 1
    s_and_b32 s5, s10, 1
    s_add_i32 s6, s2, -224
    s_lshr_b32 s10, s2, 2
    s_lshl_b32 s10, s10, 5
    s_and_b32 s11, s2, 3
    s_add_u32 s10, s10, s11
    s_lshl2_add_u32 s7, s3, s10
    s_mul_i32 s12, s7, 896
    s_mov_b32 s54, %d
    s_mov_b32 s55, 0x20000
    s_mov_b32 s58, 896
    s_mov_b32 s59, 0x20000
    s_mov_b32 s62, 0x%x
    s_mov_b32 s63, 0x20000
    s_mov_b32 s66, %d
    s_mov_b32 s67, 0x20000
    s_waitcnt lgkmcnt(0)
    s_mov_b32 s52, s16
    s_mov_b32 s53, s17
    s_mov_b32 s56, s36
    s_mov_b32 s57, s37
    buffer_load_dwordx4 v[4:7], v13, s[52:55], s12 offen
    buffer_load_dwordx4 v[8:11], v12, s[56:59], 0 offen
    s_load_dwordx4 s[68:71], s[48:49], 0
    s_mov_b32 s60, s48
    s_mov_b32 s61, s49
    s_mov_b32 s64, s44
    s_mov_b32 s65, s45
    s_cmp_ge_u32 s2, 224
    s_cbranch_scc1 L_pro_ffn
    """ % (OOB, TAGM, XB, WS_SZ, XB))
    E("""
    s_and_b32 s8, s3, 3
    s_lshl2_add_u32 s8, s4, s8
    s_lshl_b32 s8, s8, 9
    s_lshr_b32 s10, s3, 2
    s_lshl_b32 s10, s10, 8
    s_add_u32 s8, s8, s10
    v_lshl_add_u32 v15, v1, 2, s8
    s_lshl_b32 s11, s4, 3
    global_load_dword v38, v15, s[22:23]
    global_load_dword v39, v15, s[24:25]
    global_load_dword v40, v15, s[26:27]
    global_load_dword v41, v15, s[28:29]
    global_load_dword v36, v15, s[18:19]
    global_load_dword v37, v15, s[20:21]
    s_load_dwordx2 s[76:77], s[30:31], s11
    s_load_dwordx2 s[78:79], s[32:33], s11
    s_cmp_ge_u32 s3, 3
    s_cbranch_scc1 L_pf_code
    """)
    E("""
    s_and_b32 s8, s2, 7
    v_lshrrev_b32 v16, 4, v1
    v_lshl_add_u32 v16, v16, 3, s8
    v_min_u32 v16, 27, v16
    v_and_b32 v17, 15, v1
    s_lshl_b32 s10, s9, 4
    v_add_u32 v17, s10, v17
    s_cmp_eq_u32 s3, 2
    s_movk_i32 s12, 128
    s_cselect_b32 s12, s12, 3584
    s_mov_b32 s13, 57344
    s_cselect_b32 s13, s13, 128
    s_cselect_b32 s14, s42, s38
    s_cselect_b32 s15, s43, s39
    s_cmp_eq_u32 s3, 1
    s_cselect_b32 s14, s40, s14
    s_cselect_b32 s15, s41, s15
    v_mul_u32_u24 v17, s12, v17
    v_mad_u32_u24 v17, v16, s13, v17
    global_load_dword v2, v17, s[14:15]
    s_branch L_ln
    L_pf_code:
    s_add_i32 s8, s3, -3
    s_lshl_b32 s8, s8, 12
    v_lshl_add_u32 v16, v1, 6, s8
    v_min_u32 v16, L_codeend-L_pc-4, v16
    global_load_dword v2, v16, s[50:51]
    s_branch L_ln
    L_pro_ffn:
    s_cmp_ge_u32 s2, 252
    s_cbranch_scc0 L_pro_ffn2
    s_waitcnt vmcnt(0)
    s_branch L_ln
    L_pro_ffn2:
    """)
    E("""
    s_mov_b32 s80, s38
    s_mov_b32 s81, s39
    s_mov_b32 s82, 1605632
    s_mov_b32 s83, 0x20000
    v_lshrrev_b32 v16, 3, v1
    v_mul_u32_u24 v16, 3584, v16
    v_bfe_u32 v17, v1, 4, 1
    v_and_b32 v18, 7, v1
    v_xor_b32 v17, v17, v18
    s_and_b32 s8, s3, 1
    s_lshl_b32 s8, s8, 1
    v_xor_b32 v17, s8, v17
    v_lshl_add_u32 v36, v17, 4, v16
    s_mul_i32 s9, s3, 28672
    s_lshl_b32 s10, s6, 7
    s_add_u32 s9, s9, s10
    s_lshl_b32 s10, s3, 10
    s_mov_b32 s11, s9
    """)
    for i in range(7):
        E(f"s_add_u32 m0, s10, {i*8192}")
        E(f"buffer_load_dwordx4 v36, s[80:83], s11 offen lds")
        if i < 6: E(f"s_add_u32 s11, s11, {8*28672}")
    E.label("L_ln"); E.flush()
    E(f"""
    s_mov_b32 s12, 0x3f803f80
    v_min_u32 v15, 56, v1
    s_mul_i32 s13, s3, {LNS}
    s_add_u32 s13, s13, {LNB}
    v_lshl_add_u32 v15, v15, 4, s13
    s_waitcnt vmcnt(7)
    """)
    stamp(1)
    E("""
    v_dot2_f32_bf16 v12, v4, s12, 0
    v_dot2_f32_bf16 v12, v5, s12, v12
    v_dot2_f32_bf16 v12, v6, s12, v12
    v_dot2_f32_bf16 v12, v7, s12, v12
    v_lshlrev_b32 v16, 16, v4
    v_and_b32 v17, 0xffff0000, v4
    v_lshlrev_b32 v18, 16, v5
    """)
    dpp_reduce("v_add_f32", ["v12"], ["v_and_b32 v19, 0xffff0000, v5", "v_lshlrev_b32 v20, 16, v6", "v_and_b32 v21, 0xffff0000, v6",
                                      "v_lshlrev_b32 v22, 16, v7", "v_and_b32 v23, 0xffff0000, v7"])
    E(f"""
    v_mul_f32 v12, 0x{INV448:x}, v12
    v_cvt_pk_bf16_f32 v13, v12, v12
    v_and_b32 v13, 0xffff0000, v13
    v_readlane_b32 s13, v13, 63
    v_sub_f32 v12, v12, v13
    v_mul_f32 v12, v12, v12
    v_mul_f32 v14, s13, v14
    """)
    for i in range(8): E(f"v_sub_f32 v{16+i}, v{16+i}, v14")
    for i in range(4): E(f"v_cvt_pk_bf16_f32 v{24+i}, v{16+2*i}, v{17+2*i}")
    E("v_dot2_f32_bf16 v13, v24, v24, 0"); E("v_dot2_f32_bf16 v14, v24, v8, 0")
    for i in range(1,4):
        E(f"v_dot2_f32_bf16 v13, v{24+i}, v{24+i}, v13"); E(f"v_dot2_f32_bf16 v14, v{24+i}, v{8+i}, v14")
    E("v_lshlrev_b32 v16, 16, v24"); E("v_and_b32 v17, 0xffff0000, v24")
    dpp_reduce("v_add_f32", ["v13","v14"], ["v_lshlrev_b32 v18, 16, v25", "v_and_b32 v19, 0xffff0000, v25", "v_lshlrev_b32 v20, 16, v26",
                                            "v_and_b32 v21, 0xffff0000, v26", "v_lshlrev_b32 v22, 16, v27", "v_and_b32 v23, 0xffff0000, v27"])
    E(f"""
    v_mul_f32 v13, 0x{INV448:x}, v13
    v_sub_f32 v13, v13, v12
    v_max_f32 v13, 0, v13
    v_cvt_pk_bf16_f32 v13, v13, v13
    v_and_b32 v13, 0xffff0000, v13
    v_add_f32 v13, 0x{EPS:x}, v13
    v_cvt_pk_bf16_f32 v13, v13, v13
    v_and_b32 v13, 0xffff0000, v13
    v_sqrt_f32 v13, v13
    v_cvt_pk_bf16_f32 v13, v13, v13
    v_and_b32 v13, 0xffff0000, v13
    v_rcp_f32 v13, v13
    v_mul_f32 v14, v14, v13
    v_mul_f32 v13, 0x3d000000, v13
    v_cvt_pk_bf16_f32 v14, v14, v14
    v_readlane_b32 s13, v13, 63
    v_readlane_b32 s14, v14, 63
    s_sub_u32 s12, 2047, s7
    v_mov_b32 v13, s13
    s_ashr_i32 s15, s14, 31
    s_or_b32 s15, s15, 0x80000000
    s_xor_b32 s14, s14, s15
    s_and_b32 s14, s14, 0xffff0000
    s_or_b32 s14, s14, s12
    """)
    for i in range(8): E(f"v_mul_f32 v{16+i}, v{16+i}, v13")
    for i in range(4): E(f"v_cvt_pkrtz_f16_f32 v{28+i}, v{16+2*i}, v{17+2*i}")
    E(f"""
    ds_write_b128 v15, v[28:31]
    s_lshl_b32 s12, s3, 2
    v_mov_b32 v12, s12
    v_mov_b32 v14, s14
    ds_write_b32 v12, v14 offset:{M_KEYS & 0xffff}
    """.replace(f"v_mov_b32 v12, s12", f"s_add_u32 s12, s12, {M_KEYS & ~0xffff}\n v_mov_b32 v12, s12"))
    E(f"""
    v_bfe_u32 v16, v1, 2, 2
    v_mul_u32_u24 v16, {LNS}, v16
    v_and_b32 v17, 3, v1
    v_lshl_add_u32 v16, v17, 3, v16
    v_lshrrev_b32 v18, 4, v0
    v_lshl_add_u32 v16, v18, 5, v16
    v_add_u32 v16, {LNB}, v16
    v_lshrrev_b32 v18, 2, v0
    v_lshlrev_b32 v18, 14, v18
    v_lshl_add_u32 v18, v17, 4, v18
    s_lshl_b32 s12, s2, 6
    s_add_u32 s12, s12, 0x{WS_U:x}
    s_waitcnt lgkmcnt(0)
    s_add_u32 s68, s68, 1
    s_add_u32 s69, s69, 1
    s_add_u32 s70, s70, 1
    s_add_u32 s71, s71, 1
    s_cmp_eq_u32 s3, 7
    s_barrier
    s_cbranch_scc1 L_pub7
    ds_read_b64_tr_b16 v[32:33], v16
    ds_read_b64_tr_b16 v[34:35], v16 offset:{4*LNS}
    s_branch L_pub
    L_pub7:
    v_mov_b32 v16, {M_KEYS}
    ds_read_b128 v[20:23], v16
    ds_read_b128 v[24:27], v16 offset:16
    v_mov_b32 v29, s69
    s_lshl_b32 s13, s2, 3
    s_add_u32 s13, s13, 0x{WS_CAND:x}
    v_cmp_eq_u32 vcc, 0, v1
    v_mov_b32 v17, {OOB}
    v_cndmask_b32 v19, v17, v1, vcc
    v_cmp_gt_u32 vcc, 56, v1
    v_lshlrev_b32 v18, 4, v1
    v_cndmask_b32 v18, v17, v18, vcc
    s_lshl_b32 s12, s2, 10
    s_add_u32 s12, s12, 0x{WS_BEST:x}
    s_waitcnt lgkmcnt(0)
    v_max3_u32 v20, v20, v21, v22
    v_max3_u32 v24, v24, v25, v26
    v_max3_u32 v28, v20, v23, v24
    v_max_u32 v28, v28, v27
    buffer_store_dwordx2 v[28:29], v19, s[60:63], s13 offen sc1
    v_not_b32 v16, v28
    v_bfe_u32 v16, v16, 2, 3
    v_mul_u32_u24 v16, {LNS}, v16
    v_lshl_add_u32 v16, v1, 4, v16
    v_add_u32 v16, {LNB}, v16
    ds_read_b128 v[32:35], v16
    L_pub:
    s_and_b32 s72, s68, 0x{TAGM:x}
    s_and_b32 s73, s69, 0x{TAGM:x}
    s_and_b32 s74, s70, 0x{TAGM:x}
    s_and_b32 s75, s71, 0x{TAGM:x}
    s_waitcnt lgkmcnt(0)
    """)
    for i in range(4): E(f"v_add_u32 v{32+i}, 0x40004, v{32+i}")
    for i in range(4): E(f"v_bfi_b32 v{32+i}, v3, s{68+i}, v{32+i}")
    E("buffer_store_dwordx4 v[32:35], v18, s[60:63], s12 offen sc1")
    stamp(2)
    E("""
    s_cmp_ge_u32 s2, 224
    s_cbranch_scc1 L_ffn
    """)
    if opt.get("prio", True):
        E("s_cmp_lt_u32 s3, 4\n s_cbranch_scc1 L_noprio\n s_setprio 1\n L_noprio:")
    E(f"""
    s_mul_i32 s8, s3, {TABW}
    s_mov_b32 m0, s8
    s_bitcmp1_b32 s3, 1
    s_cselect_b32 s9, s77, s76
    s_lshl_b32 s10, s9, 16
    s_and_b32 s9, s9, 0xffff0000
    s_bitcmp1_b32 s3, 0
    s_cselect_b32 s9, s9, s10
    v_mov_b32 v4, 0x{LOG2E:x}
    v_mul_f32 v5, s9, v4
    v_exp_f32 v5, v5
    v_mov_b32 v6, 0x3c00
    ds_write_addtid_b32 v6
    v_cvt_pk_bf16_f32 v5, v5, v5
    v_and_b32 v57, 0xffff0000, v5
    v_mul_f32 v6, v57, v4
    v_mul_f32 v7, 0x{INV2PI:x}, v57
    v_and_b32 v58, 31, v1
    v_mul_u32_u24 v58, {ROW}, v58
    v_lshrrev_b32 v4, 5, v1
    v_lshl_add_u32 v58, v4, 4, v58
    v_add_u32 v58, s8, v58
    s_waitcnt vmcnt(2)
    s_cmp_lt_u32 s3, 4
    s_cbranch_scc1 L_noxpf
    """)
    E("""
    s_cmp_eq_u32 s5, 0
    s_movk_i32 s80, -192
    s_cselect_b32 s80, s80, 544
    s_movk_i32 s81, 1536
    s_cselect_b32 s81, s81, 1312
    s_cselect_b32 s82, 0, 576
    s_movk_i32 s83, 1568
    s_cselect_b32 s83, s83, 0
    s_movk_i32 s10, 1792
    s_cselect_b32 s10, s10, 2048
    v_and_b32 v4, 255, v0
    s_movk_i32 s9, 896
    v_add_u32 v8, s80, v4
    v_mul_i32_i24 v52, s9, v8
    v_add_u32 v53, 229376, v52
    v_add_u32 v54, 458752, v52
    v_cmp_le_i32 vcc, s82, v8
    v_mov_b32 v9, %s
    v_cndmask_b32 v52, v9, v52, vcc
    v_add_u32 v8, s81, v4
    v_mul_u32_u24 v55, s9, v8
    v_cmp_le_i32 vcc, s83, v8
    v_add_u32 v8, s10, v4
    v_cndmask_b32 v55, v9, v55, vcc
    v_mul_u32_u24 v56, s9, v8
    s_lshl_b32 s11, s4, 3
    """ % OOB)
    for i in range(5): E(f"buffer_load_dwordx2 v[{42+2*i}:{43+2*i}], v{52+i}, s[52:55], s11 offen")
    E.label("L_noxpf");
    for t in range(2):
        for k, r in enumerate((38,39,40,41)):
            E(f"v_lshlrev_b32 v{8+k}, 16, v{r}" if t == 0 else f"v_and_b32 v{8+k}, 0xffff0000, v{r}")
        E(f"""
        v_mul_f32 v12, v11, v9
        v_mul_f32 v13, v11, v8
        v_fma_f32 v{60+2*t}, v10, v8, -v12
        v_fma_f32 v{61+2*t}, -v10, v9, -v13
        """)
    E("v_max3_f32 v12, |v60|, |v61|, |v62|"); E("v_max_f32 v12, |v63|, v12".replace("v_max_f32","v_max_f32_e64"))
    E("v_lshlrev_b32 v8, 16, v36"); E("v_lshlrev_b32 v9, 16, v37")
    dpp_reduce("v_max_u32", ["v12"], ["v_and_b32 v36, 0xffff0000, v36", "v_and_b32 v37, 0xffff0000, v37",
               "v_mul_f32 v8, v8, v6", "v_mul_f32 v9, v9, v7", "v_mul_f32 v36, v36, v6", "v_mul_f32 v37, v37, v7",
               "v_rndne_f32 v10, v9", "v_rndne_f32 v11, v37", "v_sub_f32 v9, v9, v10", "v_sub_f32 v37, v37, v11"])
    E(f"""
    v_exp_f32 v8, v8
    v_readlane_b32 s9, v12, 63
    v_cos_f32 v10, v9
    v_sin_f32 v11, v9
    s_lshr_b32 s9, s9, 23
    s_max_u32 s9, s9, 8
    s_sub_u32 s10, 258, s9
    s_lshl_b32 s10, s10, 23
    v_mov_b32 v12, s10
    v_mov_b32 v59, s9
    v_mul_f32 v60, v60, v12
    v_mul_f32 v61, v61, v12
    v_mul_f32 v62, v62, v12
    v_mul_f32 v63, v63, v12
    """)
    def wr(reg, row): return f"ds_write_addtid_b32 v{reg} offset:{row*ROW}"
    def cp(d, p, q, conj):
        ng = "neg_hi:[0,1,0]" if conj else "neg_lo:[0,1,0]"
        return (f"v_pk_mul_f16 v{d}, v{p}, v{q} op_sel:[0,0] op_sel_hi:[1,0]",
                f"v_pk_fma_f16 v{d}, v{p}, v{q}, v{d} op_sel:[1,1,0] op_sel_hi:[0,1,1] {ng}")
    FR = lambda j: 192 + j
    def task(t):
        L = []
        if t == 1:
            L += ["v_exp_f32 v8, v36", "v_cos_f32 v10, v37", "v_sin_f32 v11, v37"]
        L += ["v_mul_f32 v14, v8, v10", "v_mul_f32 v15, v8, v11"]
        cur = (14,15); nxt = (16,17)
        h16 = {1: 20, 2: 21, 4: 22, 8: FR(1), 16: FR(2), 32: FR(4), 64: FR(8), 128: FR(16)}
        for k in (1,2,4,8,16,32,64,128):
            L += [f"v_mul_f32 v18, v{cur[1]}, v{cur[1]}", f"v_mul_f32_e64 v{nxt[1]}, v{cur[0]}, v{cur[1]} mul:2",
                  f"v_fma_f32 v{nxt[0]}, v{cur[0]}, v{cur[0]}, -v18", f"v_cvt_pk_f16_f32 v{h16[k]}, v{cur[0]}, v{cur[1]}"]
            if k >= 8: L.append(wr(h16[k], k//8))
            cur, nxt = nxt, cur
        e256 = cur
        mark_chain_end = len(L)
        js = [j for j in range(3,32) if j & (j-1)]
        order = [3,5,6,9,7,10,11,12,13,14,15] + list(range(17,32))
        assert sorted(order) == js
        def fdst(j): return FR(j) if j <= 16 else 212 + (j & 3)
        for a in range(0, 26, 2):
            j1, j2 = order[a], order[a+1]
            f = lambda j: cp(fdst(j), FR(1 << (j.bit_length()-1)), FR(j - (1 << (j.bit_length()-1))), False)
            p1, p2 = f(j1), f(j2)
            L += [p1[0], p2[0], p1[1], p2[1], wr(fdst(j1), j1), wr(fdst(j2), j2)]
        L.append("FREADS")
        xs = {0:0, 1:8, 2:12, 3:16, 4:20, 5:18, 6:22, 7:19, 8:23}
        xh = {k: 216+k for k in range(9)}
        xc = (60+2*t, 61+2*t); xa = (24,25); xb = (26,27)
        chain = []
        er, ei = e256
        chain.append([f"v_cvt_pk_f16_f32 v{xh[0]}, v{xc[0]}, v{xc[1]}", wr(xh[0], 32+xs[0])])
        src = xc
        for k in range(1,9):
            dst = xa if k & 1 else xb
            c = [f"v_mul_f32 v18, v{src[0]}, v{er}", f"v_mul_f32 v19, v{src[1]}, v{er}",
                 f"v_fma_f32 v{dst[0]}, v{src[1]}, v{ei}, v18", f"v_fma_f32 v{dst[1]}, -v{src[0]}, v{ei}, v19",
                 f"v_cvt_pk_f16_f32 v{xh[k]}, v{dst[0]}, v{dst[1]}", wr(xh[k], 32+xs[k])]
            if k in (2,4): c.append(wr(xh[k], 32+xs[k]+1))
            chain.append(c); src = dst
        for c in chain: L += c
        g = {n: 226+i for i, n in enumerate((1,2,3,4,5,6,7,258,260,262,516,772))}
        slot = {1:1,2:2,3:3,4:4,5:5,6:6,7:7,258:9,260:10,262:11,516:14,772:17}
        defs = [(1,xh[0],20),(2,xh[0],21),(4,xh[0],22),(258,xh[1],21),(3,g[2],20),(260,xh[1],22),(5,g[4],20),(6,g[4],21),
                (516,xh[2],22),(262,g[260],21),(7,g[6],20),(772,xh[3],22)]
        for a in range(0, 12, 2):
            (n1,p1,q1),(n2,p2,q2) = defs[a], defs[a+1]
            c1, c2 = cp(g[n1],p1,q1,True), cp(g[n2],p2,q2,True)
            L += [c1[0], c2[0], c1[1], c2[1], wr(g[n1], 32+slot[n1]), wr(g[n2], 32+slot[n2])]
        L.append("GREADS")
        return L
    def freads():
        for k in range(8): E(f"ds_read_b128 v[{128+4*k}:{131+4*k}], v58 offset:{32*k}")
    def greads():
        for k in range(8): E(f"ds_read_b128 v[{160+4*k}:{163+4*k}], v58 offset:{32*ROW+32*k}")
    def kmfma(k, first): E(f"v_mfma_f32_32x32x16_f16 v[64:79], v[{160+4*k}:{163+4*k}], v[{128+4*k}:{131+4*k}], {'0' if first else 'v[64:79]'}")
    for s in task(0):
        if s == "FREADS": freads()
        elif s == "GREADS": greads()
        else: E(s)
    T1 = task(1)
    upos = opt.get("upos", "FREADS")
    n = 0; km = 0
    for s in T1:
        if s == "FREADS" or s == "GREADS":
            if s == upos:
                E(f"""
                s_cmp_lt_u32 s3, 4
                s_cbranch_scc1 L_nouload
                v_and_b32 v4, 255, v0
                v_lshlrev_b32 v4, 4, v4
                s_lshl_b32 s12, s4, 14
                s_add_u32 s12, s12, 0x{WS_U:x}
                s_add_u32 s13, s12, 4096
                s_add_u32 s14, s12, 8192
                s_add_u32 s15, s12, 12288
                v_lshlrev_b32 v5, 4, v1
                s_mov_b32 s10, 0x{WS_CAND:x}
                buffer_load_dwordx4 v[96:99], v4, s[60:63], s12 offen sc1
                buffer_load_dwordx4 v[100:103], v4, s[60:63], s13 offen sc1
                buffer_load_dwordx4 v[104:107], v4, s[60:63], s14 offen sc1
                buffer_load_dwordx4 v[108:111], v4, s[60:63], s15 offen sc1
                s_cmp_lt_u32 s3, 7
                s_cbranch_scc1 L_nouload
                buffer_load_dwordx4 v[112:115], v5, s[60:63], s10 offen sc1
                buffer_load_dwordx4 v[116:119], v5, s[60:63], s10 offen offset:1024 sc1
                L_nouload:
                """)
            freads() if s == "FREADS" else greads()
            continue
        if n == 17: E("s_waitcnt lgkmcnt(0)")
        if n >= 17 and (n - 17) % 6 == 0 and km < 8:
            kmfma(km, km == 0); km += 1
        E(s); n += 1
    assert km == 8
    for k in range(8):
        E(f"s_waitcnt lgkmcnt({7-k})"); kmfma(k, False)
    stamp(3)
    E("s_cmp_lt_u32 s3, 4\n s_cbranch_scc1 L_conv")
    E(f"""
    s_and_b32 s8, s3, 3
    s_lshl_b32 s9, s8, 2
    s_add_u32 s9, s9, {M_EF}
    v_mov_b32 v6, s9
    ds_write_b32 v6, v59
    v_and_b32 v7, 3, v0
    v_mul_u32_u24 v7, {USTR}, v7
    v_bfe_u32 v8, v0, 2, 6
    v_lshl_add_u32 v7, v8, 4, v7
    v_add_u32 v7, {UB+512}, v7
    s_mul_i32 s9, s8, {USTR}
    s_add_u32 s9, s9, {UB}
    v_lshl_add_u32 v8, v1, 3, s9
    v_mov_b32 v10, 0
    v_mov_b32 v11, 0
    ds_write_b64 v8, v[10:11]
    s_mov_b32 s9, 0
    """)
    for k in range(12): E(f"ds_write_addtid_b32 v{64+k} offset:{256*k}")
    E("s_waitcnt lgkmcnt(0)\n s_barrier")
    E.label("L_uchk")
    E("s_waitcnt vmcnt(0)")
    for k in range(16): E(f"v_xor_b32 v{96+k}, s{72+(k&3)}, v{96+k}")
    E("v_or3_b32 v10, v96, v97, v98")
    for k in range(3, 15, 2): E(f"v_or3_b32 v10, v10, v{96+k}, v{97+k}")
    E(f"""
    v_or_b32 v10, v10, v111
    v_and_b32 v10, v3, v10
    v_cmp_ne_u32 vcc, 0, v10
    s_add_u32 s9, s9, 1
    s_cbranch_vccz L_uok
    s_cmp_gt_u32 s9, {SPIN}
    s_cbranch_scc1 L_uok
    buffer_load_dwordx4 v[96:99], v4, s[60:63], s12 offen sc1
    buffer_load_dwordx4 v[100:103], v4, s[60:63], s13 offen sc1
    buffer_load_dwordx4 v[104:107], v4, s[60:63], s14 offen sc1
    buffer_load_dwordx4 v[108:111], v4, s[60:63], s15 offen sc1
    s_branch L_uchk
    L_uok:
    """)
    for k in range(4): E(f"ds_write_b128 v7, v[{96+4*k}:{99+4*k}] offset:{1024*k}")
    E(f"""
    s_cmp_lt_u32 s3, 7
    s_cbranch_scc1 L_cok2
    L_cchk:
    v_cmp_ne_u32 vcc, s69, v113
    v_cmp_ne_u32 s[12:13], s69, v115
    v_cmp_ne_u32 s[14:15], s69, v117
    s_or_b64 s[12:13], s[12:13], vcc
    v_cmp_ne_u32 vcc, s69, v119
    s_or_b64 s[12:13], s[12:13], s[14:15]
    s_add_u32 s9, s9, 1
    s_or_b64 s[12:13], s[12:13], vcc
    s_cbranch_scc0 L_cok
    s_cmp_gt_u32 s9, {SPIN}
    s_cbranch_scc1 L_cok
    buffer_load_dwordx4 v[112:115], v5, s[60:63], s10 offen sc1
    buffer_load_dwordx4 v[116:119], v5, s[60:63], s10 offen offset:1024 sc1
    s_waitcnt vmcnt(0)
    s_branch L_cchk
    L_cok:
    v_max3_u32 v10, v112, v114, v116
    v_max_u32 v10, v10, v118
    v_mov_b32 v11, {M_BEST}
    """)
    dpp_reduce("v_max_u32", ["v10"])
    E(f"""
    v_readlane_b32 s12, v10, 63
    s_cmp_lg_u32 s2, 0
    v_mov_b32 v10, s12
    ds_write_b32 v11, v10
    s_cbranch_scc1 L_cok2
    v_mov_b32 v12, s68
    v_mov_b32 v13, s69
    v_mov_b32 v14, s70
    v_mov_b32 v15, s71
    v_mov_b32 v11, 0
    buffer_store_dwordx4 v[12:15], v11, s[60:63], 0 offen
    L_cok2:
    """)
    E(f"""
    s_lshl_b32 s12, s78, 16
    s_and_b32 s13, s78, 0xffff0000
    s_lshl_b32 s14, s79, 16
    s_and_b32 s15, s79, 0xffff0000
    v_mov_b32 v25, 0x44800000
    v_mul_f32 v20, s12, v25
    v_mul_f32 v21, s13, v25
    v_mul_f32 v22, s14, v25
    v_mul_f32 v23, s15, v25
    v_and_b32 v24, 3, v1
    v_lshlrev_b32 v24, 4, v24
    v_bfe_u32 v25, v1, 2, 3
    v_lshl_add_u32 v24, v25, 1, v24
    v_bfe_u32 v25, v0, 5, 3
    v_lshl_add_u32 v24, v25, 6, v24
    s_lshl_b32 s12, s80, 1
    s_add_u32 s12, s12, {UB+512}
    s_lshl_b32 s13, s81, 1
    s_add_u32 s13, s13, {UB+512}
    v_add_u32 v26, s13, v24
    v_add_u32 v24, s12, v24
    s_lshl_b32 s12, s8, 8
    s_add_u32 m0, s12, {YB}
    v_mov_b32 v27, {M_SC}
    s_mov_b32 s15, 0xc238aa3b
    s_waitcnt lgkmcnt(0)
    s_barrier
    s_setprio 0
    ds_read_b128 v[16:19], v27
    ds_read_b32 v28, v27 offset:16
    """)
    stamp(4)
    def prep(i):
        a, off = ("v24", 512*i) if i < 3 else ("v26", 512*(i-3))
        for c in range(4): E(f"ds_read_u16 v{64+c}, {a} offset:{off + c*USTR}")
        E(f"v_lshlrev_b32 v68, 16, v{42+2*i}\n v_and_b32 v69, 0xffff0000, v{42+2*i}\n v_lshlrev_b32 v70, 16, v{43+2*i}\n v_and_b32 v71, 0xffff0000, v{43+2*i}")
        E("s_waitcnt lgkmcnt(0)")
        if i == 0:
            E(f"""
            v_not_b32 v28, v28
            v_and_b32 v28, 0x7ff, v28
            v_mul_u32_u24 v28, 896, v28
            v_mov_b32 v29, {OOB}
            """)
        for c in range(4): E(f"v_fma_mix_f32 v{72+c}, v{64+c}, s15, 0 op_sel_hi:[1,0,0]")
        for c in range(4): E(f"v_exp_f32 v{72+c}, v{72+c}")
        for c in range(4): E(f"v_add_f32 v{72+c}, 1.0, v{72+c}")
        for c in range(4): E(f"v_rcp_f32 v{72+c}, v{72+c}")
        E(f"v_cmp_eq_u32 vcc, v28, v{52+i}")
        for c in range(4): E(f"v_fma_mix_f32 v{72+c}, v{64+c}, v{72+c}, 0 op_sel_hi:[1,0,0]")
        for c in range(4): E(f"v_fma_mix_f32 v{64+c}, v{64+c}, v{20+c}, 0 op_sel_hi:[1,0,0]")
        E(f"v_cndmask_b32 v{52+i}, v{52+i}, v29, vcc")
        for c in range(4): E(f"v_fmac_f32 v{68+c}, v{64+c}, v{72+c}")
        for c in range(4): E(f"v_mul_f32 v{72+c}, v{72+c}, v{16+c}")
    def finish(i):
        for c in range(4): E(f"ds_read_addtid_b32 v{76+c} offset:{4096*i + 1024*c}")
        for c in range(4):
            E(f"s_waitcnt lgkmcnt({3-c})"); E(f"v_fmac_f32 v{68+c}, v{76+c}, v{72+c}")
        E(f"v_cvt_pk_bf16_f32 v{42+2*i}, v68, v69\n v_cvt_pk_bf16_f32 v{43+2*i}, v70, v71")
        E(f"buffer_store_dwordx2 v[{42+2*i}:{43+2*i}], v{52+i}, s[64:67], s11 offen")
    for i in range(5):
        if i == 4: E("s_cmp_eq_u32 s5, 1\n s_cbranch_scc1 L_fin")
        prep(i); E("s_barrier"); finish(i)
    E("s_branch L_fin")
    E.label("L_conv"); E.flush()
    E(f"""
    s_add_u32 m0, s8, {4*TABW}
    s_lshl_b32 s9, s3, 2
    s_add_u32 s9, s9, {M_EF}
    v_mov_b32 v6, s9
    s_mul_i32 s10, s3, {KSTR}
    s_add_u32 s10, s10, {KB}
    v_lshl_add_u32 v7, v1, 4, s10
    v_and_b32 v8, 31, v1
    v_lshrrev_b32 v9, 5, v1
    v_lshlrev_b32 v10, 4, v8
    v_lshl_add_u32 v10, v9, 3, v10
    v_add_u32 v10, s10, v10
    v_lshl_add_u32 v11, v1, 1, s10
    v_and_b32 v12, 1, v1
    v_sub_u32 v12, 0, v12
    v_lshlrev_b32 v13, 4, v8
    v_lshlrev_b32 v9, 6, v9
    v_sub_u32 v13, v13, v9
    s_mul_i32 s12, s3, {USTR}
    s_add_u32 s12, s12, {UB+64}
    v_add_u32 v4, s12, v13
    v_lshrrev_b32 v13, 4, v1
    v_lshlrev_b32 v13, 2, v13
    v_and_b32 v14, 3, v1
    v_add_u32 v13, v13, v14
    v_bfe_u32 v14, v1, 2, 2
    v_sub_u32 v13, v13, v14
    v_lshlrev_b32 v13, 3, v13
    s_add_u32 s12, s10, 32
    v_add_u32 v5, s12, v13
    s_barrier
    ds_read_b32 v13, v6
    """)
    for k in range(12): E(f"ds_read_addtid_b32 v{80+k} offset:{256*k}")
    E(f"""
    v_mul_f32 v57, 0x44800000, v57
    s_waitcnt lgkmcnt(12)
    v_max_u32 v14, v13, v59
    v_sub_u32 v15, v59, v14
    v_sub_u32 v16, v13, v14
    v_ldexp_f32 v15, 1.0, v15
    v_ldexp_f32 v16, 1.0, v16
    v_add_u32 v14, -131, v14
    v_ldexp_f32 v57, v57, v14
    ds_write_b32 v6, v57 offset:16
    """)
    for k in range(12): E(f"v_mul_f32 v{64+k}, v{64+k}, v15")
    E("s_waitcnt lgkmcnt(1)")
    for k in range(12): E(f"v_fmac_f32 v{64+k}, v{80+k}, v16")
    K = lambda k: f"v{64+k}"
    E(f"""
    v_cvt_pk_f16_f32 v20, v64, v65
    v_cvt_pk_f16_f32 v21, v66, v67
    ds_write_b64 v10, v[20:21] offset:64
    v_mov_b32_dpp v80, v72 wave_rol:1 {DPPF}
    v_mov_b32_dpp v81, v74 wave_rol:1 {DPPF}
    v_mov_b32_dpp v82, v75 wave_rol:1 {DPPF}
    v_mov_b32_dpp v83, v75 wave_rol:1 {DPPF}
    v_mov_b32_dpp v80, v68 wave_shl:1 {DPPF}
    v_mov_b32_dpp v81, v72 wave_shl:1 {DPPF}
    v_mov_b32_dpp v82, v74 wave_shl:1 {DPPF}
    v_cvt_pk_f16_f32 v24, v68, v68
    v_mov_b32_dpp v71, v80 quad_perm:[0,1,2,3] row_mask:0xc bank_mask:0xf
    v_cvt_pk_f16_f32 v25, v69, v70
    v_cvt_pk_f16_f32 v26, v70, v70
    v_cvt_pk_f16_f32 v27, v71, v80
    ds_write_b128 v7, v[24:27] offset:{64+512}
    v_bfi_b32 v84, v12, v81, v72
    v_cvt_pk_f16_f32 v30, v84, v81
    v_cvt_pk_f16_f32 v85, v73, v73
    v_cvt_pk_f16_f32 v28, v72, v72
    v_cvt_pk_f16_f32 v29, v72, v73
    v_cvt_pk_f16_f32 v31, v81, v81
    v_mov_b32_dpp v30, v85 quad_perm:[0,1,2,3] row_mask:0x3 bank_mask:0xf
    ds_write_b128 v7, v[28:31] offset:{64+512*3}
    v_bfi_b32 v84, v12, v82, v74
    v_cvt_pk_f16_f32 v88, v74, v74
    v_cvt_pk_f16_f32 v90, v84, v82
    v_cvt_pk_f16_f32 v91, v82, v82
    v_mov_b32 v89, v88
    ds_write_b128 v7, v[88:91] offset:{64+512*5}
    v_bfi_b32 v84, v12, v83, v75
    v_cvt_pk_f16_f32 v92, v75, v75
    v_cvt_pk_f16_f32 v94, v84, v83
    v_cvt_pk_f16_f32 v95, v83, v83
    v_mov_b32 v93, v92
    v_mov_b32 v20, 0
    s_mov_b32 exec_hi, 0
    ds_write_b128 v7, v[92:95] offset:{64+512*7}
    ds_write_b16 v11, v20
    s_mov_b32 exec_hi, -1
    s_lshl_b32 s12, s3, 10
    s_add_u32 m0, s12, {YB}
    v_cmp_le_u32 vcc, 63, v1
    v_cndmask_b32 v6, 0, -1, vcc
    v_cmp_le_u32 vcc, 62, v1
    v_cndmask_b32 v7, 0, -1, vcc
    v_cmp_le_u32 vcc, 61, v1
    v_cndmask_b32 v8, 0, -1, vcc
    """)
    NPRE = 4
    def kread(b):
        return [f"ds_read_b64_tr_b16 v[{128+4*b}:{129+4*b}], v5 offset:{128*b+32}", f"ds_read_b64_tr_b16 v[{130+4*b}:{131+4*b}], v5 offset:{128*b}"]
    for b in range(NPRE):
        for s in kread(b): E(s)
    E("s_waitcnt lgkmcnt(%d)" % (2*NPRE))
    E("s_cmp_eq_u32 s5, 1\n s_barrier")
    stamp(4)
    if dump == "K":
        E(f"""
        s_lshl2_add_u32 s12, s4, s3
        s_mul_i32 s12, s12, 8192
        s_lshl_b32 s13, s5, 12
        s_add_u32 s12, s12, s13
        s_add_u32 s12, s12, 0x{WS_DBG+0x100000:x}
        v_lshl_add_u32 v20, v1, 4, s10
        v_lshlrev_b32 v21, 4, v1
        """)
        for k in range(4):
            E(f"ds_read_b128 v[24:27], v20 offset:{64+1024*k}\n s_waitcnt lgkmcnt(0)\n buffer_store_dwordx4 v[24:27], v21, s[60:63], s12 offen offset:{1024*k}\n s_waitcnt vmcnt(0)")
        E("s_cmp_eq_u32 s5, 1")
    E("s_cbranch_scc1 L_convB")
    def reduce_ops(ti, first, gs):
        A = 32 + 16*ti; P = 32 + 16*(ti-1)
        L = []
        for g in gs:
            for c in (1,2,3):
                cur = A + 4*g + c
                prev = (A + 4*(g-1) + c) if g > 0 else (P + 12 + c)
                dst = 12 + 3*g + (c-1)
                if g == 0 and first: L.append(f"v_mov_b32 v{dst}, v{cur}")
                else: L.append(f"v_bfi_b32 v{dst}, v{5+c}, v{prev}, v{cur}")
        for g in gs: L.append(f"v_add_f32_dpp v{12+3*g+1}, v{12+3*g+2}, v{12+3*g+1} wave_ror:1 {DPPF}")
        for g in gs: L.append(f"v_add_f32_dpp v{12+3*g}, v{12+3*g+1}, v{12+3*g} wave_ror:1 {DPPF}")
        for g in gs: L.append(f"v_add_f32_dpp v{24+g}, v{12+3*g}, v{A+4*g} wave_ror:1 {DPPF}")
        for g in gs: L.append(f"ds_write_addtid_b32 v{24+g} offset:{4096*ti+256*g}")
        return L
    def conv_stream(ty, barpos):
        tiles = TILES[ty]
        jobs = []
        for ti, I0 in enumerate(tiles):
            nb = (I0 + 8 + 1)//2
            for b in range(nb): jobs.append((ti, I0, b, nb))
        D = 3
        q = ["k%d" % b for b in range(NPRE) for _ in range(2)]
        kl = NPRE
        kmax = max(j[3] for j in jobs)
        def issue(text, tag): E(text); q.append(tag)
        def waitfor(tags):
            last = -1
            for i, t in enumerate(q):
                if t in tags: last = i
            if last >= 0:
                n = len(q) - 1 - last
                E(f"s_waitcnt lgkmcnt({min(n,15)})")
                del q[:len(q)-min(n,15)]
        def uread(n):
            ti, I0, b, nb = jobs[n]
            r = 112 + 4*(n % 4)
            issue(f"ds_read_b128 v[{r}:{r+3}], v4 offset:{448 + (I0-2*b)*64}", "u%d" % n)
        for n in range(D): uread(n)
        side = []
        nbar = 0; done_w = set()
        for n, (ti, I0, b, nb) in enumerate(jobs):
            if n + D < len(jobs):
                bb = jobs[n+D][2]
                uread(n + D)
            need_k = max(jobs[m][2] for m in range(n, min(n+D+1, len(jobs))))
            if kl < kmax and (kl <= need_k or True):
                for s in kread(kl): issue(s, "k%d" % kl)
                kl += 1
            waitfor({"u%d" % n, "k%d" % b})
            A = 32 + 16*ti; r = 112 + 4*(n % 4)
            E(f"v_mfma_f32_32x32x16_f16 v[{A}:{A+15}], v[{r}:{r+3}], v[{128+4*b}:{131+4*b}], {'0' if b == 0 else f'v[{A}:{A+15}]'}")
            if b == nb - 1:
                first = ti == 0 or tiles[ti-1] + 8 != I0
                gs = [3] if I0 < 0 else [0,1,2,3]
                side += [(n + 3, ti, s) for s in reduce_ops(ti, first, gs)]
            cnt = 0
            while side and side[0][0] <= n and cnt < (3 if kl < kmax else 5):
                _, tj, s = side.pop(0); cnt += 1
                if s.startswith("ds_"): issue(s, "y%d" % tj)
                else: E(s)
                if not any(x[1] == tj for x in side): done_w.add(tj)
            if nbar < len(tiles)-1 and n >= barpos[nbar] and nbar in done_w:
                waitfor({"y%d" % nbar}); E("s_barrier"); nbar += 1
            if n == opt.get("idxpos", 6): fix_early(ty)
            if n == len(jobs) - opt.get("pollpos", 10): fix_poll(ty)
        for _, tj, s in side:
            E(s)
        assert nbar == len(tiles) - 1, (nbar, ty)
        E("s_waitcnt lgkmcnt(0)\n s_barrier")
    def fix_early(ty):
        pass
    def fix_poll(ty):
        pass
    conv_stream(0, [12, 20, 28, 0])
    E("s_branch L_fix")
    E.label("L_convB"); E.flush()
    conv_stream(1, [0, 0, 0])
    E.label("L_fix"); E.flush()
    stamp(5)
    E(f"""
    s_cmp_lg_u32 s3, 0
    s_cbranch_scc1 L_fin
    v_mov_b32 v4, {M_SC}
    ds_read_b32 v5, v4 offset:16
    v_and_b32 v9, 3, v1
    v_lshlrev_b32 v10, 2, v1
    s_lshl_b32 s8, s4, 9
    s_add_u32 s8, s8, 0x{WS_PART:x}
    buffer_load_dword v12, v10, s[60:63], s8 offen sc1
    buffer_load_dword v13, v10, s[60:63], s8 offen offset:256 sc1
    s_waitcnt lgkmcnt(0)
    v_readfirstlane_b32 s9, v5
    s_andn2_b32 s10, 0x7ff, s9
    s_cmp_lt_u32 s10, 576
    s_cselect_b32 s11, 0, 1
    s_movk_i32 s12, 192
    s_cselect_b32 s12, s12, -544
    s_cmp_ge_u32 s10, 1568
    s_cselect_b32 s11, 0, s11
    s_cselect_b32 s12, -768, s12
    s_cmp_lg_u32 s11, s5
    s_cbranch_scc1 L_fin
    s_add_i32 s12, s12, s10
    s_lshr_b32 s13, s12, 8
    s_lshl_b32 s13, s13, 12
    s_and_b32 s12, s12, 255
    s_lshl2_add_u32 s12, s12, s13
    s_add_u32 s12, s12, {YB}
    v_lshl_add_u32 v14, v9, 10, s12
    ds_read_b32 v14, v14
    s_lshr_b32 s12, s10, 5
    s_lshl_b32 s12, s12, 6
    s_and_b32 s13, s10, 3
    s_lshl_b32 s13, s13, 4
    s_add_u32 s12, s12, s13
    s_bfe_u32 s13, s10, 0x30002
    s_lshl1_add_u32 s12, s13, s12
    s_add_u32 s12, s12, {UB+512}
    v_mul_u32_u24 v15, {USTR}, v9
    v_add_u32 v15, s12, v15
    ds_read_u16 v15, v15
    v_lshl_add_u32 v16, v9, 2, v4
    ds_read_b32 v16, v16
    s_mul_i32 s12, s10, 896
    s_lshl_b32 s13, s4, 3
    s_add_u32 s12, s12, s13
    v_lshlrev_b32 v17, 1, v1
    v_cmp_gt_u32 vcc, 4, v1
    v_mov_b32 v18, {OOB}
    v_cndmask_b32 v17, v18, v17, vcc
    buffer_load_ushort v18, v17, s[52:55], s12 offen
    v_lshlrev_b32 v19, 3, v9
    v_lshrrev_b32 v19, v19, s68
    v_and_b32 v19, 0xff, v19
    v_cmp_gt_u32 vcc, 48, v1
    v_cndmask_b32 v20, 0, -1, vcc
    v_mov_b32 v21, s78
    v_mov_b32 v22, s79
    v_cmp_gt_u32 vcc, 2, v9
    v_cndmask_b32 v21, v22, v21, vcc
    v_not_b32 v22, v1
    v_and_b32 v22, 1, v22
    v_lshlrev_b32 v22, 4, v22
    v_lshlrev_b32 v21, v22, v21
    v_and_b32 v21, 0xffff0000, v21
    s_and_b32 s13, s9, 0xffff0000
    s_not_b32 s14, s13
    s_ashr_i32 s14, s14, 31
    s_and_b32 s14, s14, 0x7fff0000
    s_or_b32 s14, s14, 0x80000000
    s_xor_b32 s13, s13, s14
    v_mov_b32 v22, 0x{LOG2E | 0x80000000:x}
    v_mul_f32 v23, s13, v22
    v_exp_f32 v23, v23
    v_add_f32 v23, 1.0, v23
    v_rcp_f32 v23, v23
    v_cvt_pk_bf16_f32 v23, v23, v23
    v_and_b32 v23, 0xffff0000, v23
    s_waitcnt lgkmcnt(0)
    v_cvt_f32_f16 v15, v15
    v_mul_f32 v15, 0x42000000, v15
    v_mul_f32 v16, 0x3d000000, v16
    v_mul_f32 v14, v14, v16
    v_fmac_f32 v14, v15, v21
    s_mov_b32 s13, 0
    L_pchk:
    s_waitcnt vmcnt(0)
    v_xor_b32 v12, v12, v19
    v_xor_b32 v13, v13, v19
    v_and_b32 v13, v13, v20
    v_or_b32 v24, v12, v13
    v_and_b32 v24, 0xff, v24
    v_cmp_ne_u32 vcc, 0, v24
    s_add_u32 s13, s13, 1
    s_cbranch_vccz L_pok
    s_cmp_gt_u32 s13, {SPIN}
    s_cbranch_scc1 L_pok
    buffer_load_dword v12, v10, s[60:63], s8 offen sc1
    buffer_load_dword v13, v10, s[60:63], s8 offen offset:256 sc1
    s_branch L_pchk
    L_pok:
    v_add_f32 v12, v12, v13
    v_add_f32_dpp v12, v12, v12 row_ror:4 {DPPF}
    v_add_f32_dpp v12, v12, v12 row_ror:8 {DPPF}
    v_mov_b32 v13, v12
    v_permlane16_swap_b32 v12, v13
    v_add_f32 v12, v12, v13
    v_mov_b32 v13, v12
    v_permlane32_swap_b32 v12, v13
    v_add_f32 v12, v12, v13
    v_cvt_pk_bf16_f32 v12, v12, v12
    v_and_b32 v12, 0xffff0000, v12
    v_mul_f32 v12, v12, v23
    v_cvt_pk_bf16_f32 v12, v12, v12
    v_and_b32 v12, 0xffff0000, v12
    v_add_f32 v12, v12, v15
    v_cvt_pk_bf16_f32 v12, v12, v12
    v_and_b32 v12, 0xffff0000, v12
    v_mul_f32 v13, v12, v22
    v_exp_f32 v13, v13
    v_lshlrev_b32 v18, 16, v18
    v_add_f32 v13, 1.0, v13
    v_rcp_f32 v13, v13
    v_mul_f32 v12, v12, v13
    v_fmac_f32 v18, v12, v14
    v_cvt_pk_bf16_f32 v18, v18, v18
    buffer_store_short v18, v17, s[64:67], s12 offen
    s_branch L_fin
    """)
    E.label("L_ffn"); E.flush()
    E("""
    s_cmp_ge_u32 s2, 252
    s_cbranch_scc1 L_fin
    s_mov_b32 s80, s40
    s_mov_b32 s81, s41
    s_mov_b32 s82, 1605632
    s_mov_b32 s83, 0x20000
    v_xor_b32 v36, 64, v36
    s_mov_b32 s11, s9
    """)
    for i in range(7):
        E(f"s_add_u32 m0, s10, {57344 + i*8192}")
        E(f"buffer_load_dwordx4 v36, s[80:83], s11 offen lds")
        if i < 6: E(f"s_add_u32 s11, s11, {8*28672}")
    E("""
    s_cmp_ge_u32 s3, 4
    s_cbranch_scc1 L_nowd
    s_mov_b32 s76, s42
    s_mov_b32 s77, s43
    s_mov_b32 s78, 1605632
    s_mov_b32 s79, 0x20000
    v_lshrrev_b32 v4, 4, v1
    v_mul_u32_u24 v4, 7168, v4
    v_and_b32 v5, 15, v1
    v_lshl_add_u32 v4, v5, 4, v4
    s_mul_i32 s12, s6, 57344
    s_lshl_b32 s13, s3, 8
    s_add_u32 s12, s12, s13
    """)
    for s in range(2):
        for i in range(8):
            r = 128 + 32*s + 4*i
            if i % 4 == 0 and (s, i) != (0, 0): E(f"s_add_u32 s12, s12, {3584 if i == 4 else 28672-3584}")
            E(f"buffer_load_dwordx4 v[{r}:{r+3}], v4, s[76:79], s12 offen offset:{896*(i%4)}")
    E.label("L_nowd")
    E(f"""
    v_lshrrev_b32 v4, 4, v1
    v_bfe_u32 v5, v1, 2, 2
    v_lshl_add_u32 v6, v4, 3, v5
    v_lshlrev_b32 v6, 7, v6
    v_bfe_u32 v7, v1, 1, 1
    v_mov_b32 v8, 57344
    v_mad_u32_u24 v6, v7, v8, v6
    v_bfe_u32 v8, v1, 3, 2
    v_lshl_add_u32 v8, v7, 2, v8
    v_xor_b32 v8, s3, v8
    v_lshl_add_u32 v6, v8, 4, v6
    v_and_b32 v8, 1, v1
    v_lshl_add_u32 v6, v8, 3, v6
    v_and_b32 v7, 15, v1
    v_min_u32 v8, 13, v7
    v_lshl_add_u32 v8, v8, 2, v4
    v_lshlrev_b32 v8, 4, v8
    v_lshlrev_b32 v5, 4, v1
    s_mov_b32 s10, 0x{WS_CAND:x}
    s_lshl_b32 s12, s3, 4
    s_add_u32 s12, s12, {M_H}
    v_lshl_add_u32 v9, v1, 1, s12
    v_mov_b32 v10, {M_H-8}
    v_cmp_gt_u32 vcc, 8, v1
    v_cndmask_b32 v9, v10, v9, vcc
    v_lshlrev_b32 v10, 4, v4
    v_add_u32 v10, {M_H}, v10
    v_lshl_add_u32 v11, v7, 1, v4
    s_lshl_b32 s12, s3, 5
    v_add_u32 v11, s12, v11
    v_cmp_gt_u32 vcc, 112, v11
    v_cmp_gt_u32 s[12:13], 32, v1
    s_and_b64 vcc, vcc, s[12:13]
    v_lshlrev_b32 v11, 9, v11
    v_mov_b32 v12, {OOB}
    v_cndmask_b32 v11, v12, v11, vcc
    s_mov_b32 s14, 0x05040100
    s_mov_b32 s15, 0x07060302
    s_mov_b32 s9, 0
    s_waitcnt vmcnt(0)
    s_barrier
    """)
    stamp(3)
    E("""
    buffer_load_dwordx4 v[112:115], v5, s[60:63], s10 offen sc1
    buffer_load_dwordx4 v[116:119], v5, s[60:63], s10 offen offset:1024 sc1
    """)
    for s in range(14):
        E(f"ds_read_b64_tr_b16 v[{40+4*s}:{41+4*s}], v6 offset:{4096*s}")
        E(f"ds_read_b64_tr_b16 v[{42+4*s}:{43+4*s}], v6 offset:{4096*s+512}")
    E("s_cmp_ge_u32 s3, 4\n s_cbranch_scc1 L_fchk0")
    for s in range(2):
        for m in range(4):
            for ip in range(4):
                a = 128 + 32*s + 4*(2*ip) + m; b = 128 + 32*s + 4*(2*ip+1) + m
                E(f"v_perm_b32 v{192+32*s+4*(2*m)+ip}, v{b}, v{a}, s14")
                E(f"v_perm_b32 v{192+32*s+4*(2*m+1)+ip}, v{b}, v{a}, s15")
    E(f"""
    L_fchk0:
    s_waitcnt vmcnt(0)
    v_cmp_ne_u32 vcc, s69, v113
    v_cmp_ne_u32 s[12:13], s69, v115
    v_cmp_ne_u32 s[14:15], s69, v117
    s_or_b64 s[12:13], s[12:13], vcc
    v_cmp_ne_u32 vcc, s69, v119
    s_or_b64 s[12:13], s[12:13], s[14:15]
    s_add_u32 s9, s9, 1
    s_or_b64 s[12:13], s[12:13], vcc
    s_cbranch_scc0 L_fok
    s_cmp_gt_u32 s9, {SPIN}
    s_cbranch_scc1 L_fok
    buffer_load_dwordx4 v[112:115], v5, s[60:63], s10 offen sc1
    buffer_load_dwordx4 v[116:119], v5, s[60:63], s10 offen offset:1024 sc1
    s_branch L_fchk0
    L_fok:
    v_max3_u32 v12, v112, v114, v116
    v_max_u32 v12, v12, v118
    """)
    dpp_reduce("v_max_u32", ["v12"])
    E(f"""
    v_readlane_b32 s12, v12, 63
    s_andn2_b32 s12, 0x7ff, s12
    s_lshr_b32 s13, s12, 5
    s_and_b32 s12, s12, 3
    s_lshl2_add_u32 s12, s13, s12
    s_lshl_b32 s12, s12, 10
    s_add_u32 s12, s12, 0x{WS_BEST:x}
    s_mov_b32 s13, 0x42000000
    """)
    stamp(4)
    E(f"""
    L_xchk:
    buffer_load_dwordx4 v[12:15], v8, s[60:63], s12 offen sc1
    s_add_u32 s9, s9, 1
    s_waitcnt vmcnt(0)
    v_xor_b32 v12, s72, v12
    v_xor_b32 v13, s73, v13
    v_xor_b32 v14, s74, v14
    v_xor_b32 v15, s75, v15
    v_or3_b32 v16, v12, v13, v14
    v_or_b32 v16, v16, v15
    v_and_b32 v16, v3, v16
    v_cmp_ne_u32 vcc, 0, v16
    s_cmp_gt_u32 s9, {SPIN}
    s_cbranch_scc1 L_xok
    s_cbranch_vccnz L_xchk
    L_xok:
    """)
    for i in range(4):
        E(f"v_fma_mix_f32 v{16+2*i}, v{12+i}, s13, 0 op_sel_hi:[1,0,0]")
        E(f"v_fma_mix_f32 v{17+2*i}, v{12+i}, s13, 0 op_sel:[1,0,0] op_sel_hi:[1,0,0]")
    for i in range(4): E(f"v_cvt_pk_bf16_f32 v{12+i}, v{16+2*i}, v{17+2*i}")
    E("v_mov_b32 v16, 0\n v_mov_b32 v17, 0\n s_waitcnt lgkmcnt(0)")
    def pick(s): return f"v_add_f32_dpp v{16+(s&1)}, v{128+4*s+(s&3)}, v{16+(s&1)} quad_perm:[0,1,2,3] row_mask:0x{1<<(s>>2):x} bank_mask:0xf"
    for s in range(14):
        E(f"v_mfma_f32_16x16x32_bf16 v[{128+4*s}:{131+4*s}], v[12:15], v[{40+4*s}:{43+4*s}], 0")
        if s >= 5: E(pick(s-5))
    for s in range(9, 14): E(pick(s))
    E(f"""
    v_add_f32 v16, v16, v17
    v_mov_b32 v17, v16
    v_permlane16_swap_b32 v16, v17
    v_add_f32 v16, v16, v17
    v_mov_b32 v17, v16
    v_permlane32_swap_b32 v16, v17
    v_add_f32 v16, v16, v17
    v_cvt_pk_bf16_f32 v16, v16, v16
    v_and_b32 v16, 0xffff0000, v16
    v_mul_f32 v17, 0x{LOG2E | 0x80000000:x}, v16
    v_exp_f32 v17, v17
    v_add_f32 v17, 1.0, v17
    v_rcp_f32 v17, v17
    v_mul_f32 v17, v17, v16
    v_cvt_pk_bf16_f32 v17, v17, v17
    v_and_b32 v17, 0xffff0000, v17
    v_mul_f32_dpp v17, v16, v17 row_ror:8 {DPPF}
    v_cvt_pk_bf16_f32 v17, v17, v17
    ds_write_b16 v9, v17
    s_cmp_ge_u32 s3, 4
    s_waitcnt lgkmcnt(0)
    s_barrier
    s_cbranch_scc1 L_fin
    ds_read_b128 v[12:15], v10
    ds_read_b128 v[16:19], v10 offset:64
    s_lshl_b32 s12, s6, 4
    s_add_u32 s12, s12, 0x{WS_PART:x}
    s_lshr_b32 s13, s68, 8
    s_lshr_b32 s14, s68, 16
    s_lshr_b32 s15, s68, 24
    v_mov_b32 v20, 0xff
    s_waitcnt lgkmcnt(1)
    """)
    for e in range(8): E(f"v_mfma_f32_16x16x32_bf16 v[{128+4*e}:{131+4*e}], v[12:15], v[{192+4*e}:{195+4*e}], 0")
    E("s_waitcnt lgkmcnt(0)")
    for e in (0,4,1,5,2,6,3,7): E(f"v_mfma_f32_16x16x32_bf16 v[{128+4*e}:{131+4*e}], v[16:19], v[{224+4*e}:{227+4*e}], v[{128+4*e}:{131+4*e}]")
    for m in range(4): E(f"v_mov_b32_dpp v{128+4*m}, v{144+4*m} quad_perm:[0,1,2,3] row_mask:0x2 bank_mask:0xf")
    for m, sr in enumerate(("s68","s13","s14","s15")): E(f"v_bfi_b32 v{24+m}, v20, {sr}, v{128+4*m}")
    E("buffer_store_dwordx4 v[24:27], v11, s[60:63], s12 offen sc1")
    stamp(5)
    E.label("L_fin"); E.flush()
    if opt.get("span"):
        E(f"""
        s_waitcnt vmcnt(0)
        """)
        if opt.get("gmin"):
            E("""
            s_not_b32 s86, s84
            v_mov_b32 v5, s86
            v_mov_b32 v4, 0
            s_mov_b64 exec, 1
            s_cmp_lg_u32 s3, 1
            s_cbranch_scc1 L_spanw0
            global_atomic_umax v4, v5, s[46:47]
            s_waitcnt vmcnt(0)
            L_spanw0:
            s_memrealtime s[86:87]
            s_waitcnt lgkmcnt(0)
            s_sub_u32 s86, s86, s84
            s_cmp_lt_u32 s86, 2000
            s_cbranch_scc1 L_spanw0
            global_load_dword v5, v4, s[46:47] sc1
            s_waitcnt vmcnt(0)
            v_readfirstlane_b32 s84, v5
            s_not_b32 s84, s84
            """)
        E(f"""
        L_spanw:
        s_memrealtime s[86:87]
        s_waitcnt lgkmcnt(0)
        s_sub_u32 s86, s86, s84
        s_cmp_lt_u32 s86, {opt["span"]}
        s_cbranch_scc1 L_spanw
        """)
    if stamps:
        E("s_waitcnt vmcnt(0)")
        stamp(6)
        E(f"""
        s_waitcnt lgkmcnt(0)
        s_lshl_b32 s8, s2, 3
        s_add_u32 s8, s8, s3
        s_lshl_b32 s8, s8, 6
        s_add_u32 s8, s8, 0x{WS_DBG:x}
        v_mov_b32 v4, 0
        """)
        for i in range(7):
            E(f"v_mov_b32 v5, s{84+2*i}\n buffer_store_dword v5, v4, s[60:63], s8 offen offset:{4*i}")
        E("v_mov_b32 v5, s9\n buffer_store_dword v5, v4, s[60:63], s8 offen offset:28")
    E.label("L_end")
    E("s_endpgm")
    E.label("L_codeend")
    E.raw('.section .rodata,"a"'); E.raw(".p2align 6"); E.raw(f".amdhsa_kernel {KN}")
    for l in ("next_free_vgpr 256","next_free_sgpr 102","accum_offset 256","group_segment_fixed_size 0","kernarg_size 136",
              "user_sgpr_count 2","user_sgpr_kernarg_segment_ptr 1","system_sgpr_workgroup_id_x 1","ieee_mode 0"):
        E.raw("  .amdhsa_" + l)
    E.raw(".end_amdhsa_kernel")
    return E.text(), E

if __name__ == "__main__":
    out = sys.argv[1]
    opt = {}
    for a in sys.argv[2:]:
        k, _, v = a.partition("=")
        opt[k] = True if not v else (int(v) if v.lstrip("-").isdigit() else v)
    hdr = open("recurrent_scan__ssm_conv_s4__moe_arch_mod__prompt.s.ref").read().split("; Override launch")[0]
    t, E = gen(opt)
    open(out, "w").write(hdr + t)
    print("wrote", out, "lines", len(E.lines), "nops", E.nops)
```

```python
import sys, os
sys.path.insert(0, os.path.dirname(__file__))
from asm import Emit
KN = "recurrent_scan__ssm_conv_s4__moe_arch_mod__prompt_kernel"

WS_CAND = 0x1000; WS_PART = 0x2000; WS_BEST = 0x10000; WS_U = 0x50000; WS_DBG = 0x400000; WS_SZ = 0x1000000
TABW = 15232; ROW = 272
YB = 0; UB = 121856; USTR = 4640; KB = 140416; KSTR = 4160; LNB = KB; LNS = 960
MISC = 157056; M_KEYS = MISC; M_EF = MISC+32; M_SC = MISC+48; M_BEST = MISC+64; M_H = MISC+128
LDS_SZ = MISC + 256
XB = 1835008
OOB = "0x80000000"
TAGM = 0x40074007
LOG2E = 0x3fb8aa3b; INV2PI = 0x3e22f983; INV448 = 0x3b124925; EPS = 0x3727c5ac
SPIN = 200000
TILES = {0: [-6, 2, 10, 48, 56], 1: [17, 25, 33, 41]}
DPPF = "row_mask:0xf bank_mask:0xf"


def gen(opt):
    stamps = opt.get("stamps", False)
    dump = opt.get("dump", None)
    E = Emit()
    nst = [0]
    def stamp(i):
        if stamps: E(f"s_memrealtime s[{84+2*i}:{85+2*i}]")
    def dpp_reduce(op, regs, fill=()):
        fill = list(fill)
        steps = ["row_shr:1 "+DPPF, "row_shr:2 "+DPPF, "row_shr:4 "+DPPF, "row_shr:8 "+DPPF,
                 "row_bcast:15 row_mask:0xa bank_mask:0xf", "row_bcast:31 row_mask:0xc bank_mask:0xf"]
        per = 3 - len(regs)
        for s in steps:
            for r in regs: E(f"{op}_dpp {r}, {r}, {r} {s}")
            for _ in range(per):
                if fill: E(fill.pop(0))
        for f in fill: E(f)

    E.raw(f"; @launch grid=(256,1,1) block=(512,1,1) lds={LDS_SZ}")
    E.raw('.amdgcn_target "amdgcn-amd-amdhsa--gfx950"')
    E.raw(".text"); E.raw(f".globl {KN}"); E.raw(".p2align 8"); E.raw(f".type {KN},@function"); E.raw(f"{KN}:")
    stamp(0)
    if opt.get("span"): E("s_memrealtime s[84:85]")
    E("""
    s_cmp_ge_u32 s2, 256
    s_cbranch_scc1 L_end
    s_load_dwordx16 s[16:31], s[0:1], 0
    s_load_dwordx16 s[32:47], s[0:1], 64
    s_load_dwordx2 s[48:49], s[0:1], 128
    s_getpc_b64 s[50:51]
    L_pc:
    v_lshrrev_b32 v4, 6, v0
    v_and_b32 v1, 63, v0
    v_readfirstlane_b32 s3, v4
    v_lshlrev_b32 v12, 4, v1
    v_cmp_gt_u32 vcc, 56, v1
    v_mov_b32 v13, %s
    v_cndmask_b32 v13, v13, v12, vcc
    v_cndmask_b32 v14, 0, 1.0, vcc
    v_mov_b32 v3, 0x%x
    s_and_b32 s8, s2, 7
    s_lshr_b32 s9, s2, 3
    s_mul_i32 s10, s8, 28
    s_add_u32 s10, s10, s9
    s_lshr_b32 s4, s10, 1
    s_and_b32 s5, s10, 1
    s_add_i32 s6, s2, -224
    s_lshr_b32 s10, s2, 2
    s_lshl_b32 s10, s10, 5
    s_and_b32 s11, s2, 3
    s_add_u32 s10, s10, s11
    s_lshl2_add_u32 s7, s3, s10
    s_mul_i32 s12, s7, 896
    s_mov_b32 s54, %d
    s_mov_b32 s55, 0x20000
    s_mov_b32 s58, 896
    s_mov_b32 s59, 0x20000
    s_mov_b32 s62, 0x%x
    s_mov_b32 s63, 0x20000
    s_mov_b32 s66, %d
    s_mov_b32 s67, 0x20000
    s_waitcnt lgkmcnt(0)
    s_mov_b32 s52, s16
    s_mov_b32 s53, s17
    s_mov_b32 s56, s36
    s_mov_b32 s57, s37
    buffer_load_dwordx4 v[4:7], v13, s[52:55], s12 offen
    buffer_load_dwordx4 v[8:11], v12, s[56:59], 0 offen
    s_load_dwordx4 s[68:71], s[48:49], 0
    s_mov_b32 s60, s48
    s_mov_b32 s61, s49
    s_mov_b32 s64, s44
    s_mov_b32 s65, s45
    s_cmp_ge_u32 s2, 224
    s_cbranch_scc1 L_pro_ffn
    """ % (OOB, TAGM, XB, WS_SZ, XB))
    E("""
    s_and_b32 s8, s3, 3
    s_lshl2_add_u32 s8, s4, s8
    s_lshl_b32 s8, s8, 9
    s_lshr_b32 s10, s3, 2
    s_lshl_b32 s10, s10, 8
    s_add_u32 s8, s8, s10
    v_lshl_add_u32 v15, v1, 2, s8
    s_lshl_b32 s11, s4, 3
    global_load_dword v38, v15, s[22:23]
    global_load_dword v39, v15, s[24:25]
    global_load_dword v40, v15, s[26:27]
    global_load_dword v41, v15, s[28:29]
    global_load_dword v36, v15, s[18:19]
    global_load_dword v37, v15, s[20:21]
    s_load_dwordx2 s[76:77], s[30:31], s11
    s_load_dwordx2 s[78:79], s[32:33], s11
    s_cmp_ge_u32 s3, 3
    s_cbranch_scc1 L_pf_code
    """)
    E("""
    s_and_b32 s8, s2, 7
    v_lshrrev_b32 v16, 4, v1
    v_lshl_add_u32 v16, v16, 3, s8
    v_min_u32 v16, 27, v16
    v_and_b32 v17, 15, v1
    s_lshl_b32 s10, s9, 4
    v_add_u32 v17, s10, v17
    s_cmp_eq_u32 s3, 2
    s_movk_i32 s12, 128
    s_cselect_b32 s12, s12, 3584
    s_mov_b32 s13, 57344
    s_cselect_b32 s13, s13, 128
    s_cselect_b32 s14, s42, s38
    s_cselect_b32 s15, s43, s39
    s_cmp_eq_u32 s3, 1
    s_cselect_b32 s14, s40, s14
    s_cselect_b32 s15, s41, s15
    v_mul_u32_u24 v17, s12, v17
    v_mad_u32_u24 v17, v16, s13, v17
    global_load_dword v2, v17, s[14:15]
    s_branch L_ln
    L_pf_code:
    s_add_i32 s8, s3, -3
    s_lshl_b32 s8, s8, 12
    v_lshl_add_u32 v16, v1, 6, s8
    v_min_u32 v16, L_codeend-L_pc-4, v16
    global_load_dword v2, v16, s[50:51]
    s_branch L_ln
    L_pro_ffn:
    s_cmp_ge_u32 s2, 252
    s_cbranch_scc0 L_pro_ffn2
    s_waitcnt vmcnt(0)
    s_branch L_ln
    L_pro_ffn2:
    """)
    E("""
    s_mov_b32 s80, s38
    s_mov_b32 s81, s39
    s_mov_b32 s82, 1605632
    s_mov_b32 s83, 0x20000
    v_lshrrev_b32 v16, 3, v1
    v_mul_u32_u24 v16, 3584, v16
    v_bfe_u32 v17, v1, 4, 1
    v_and_b32 v18, 7, v1
    v_xor_b32 v17, v17, v18
    s_and_b32 s8, s3, 1
    s_lshl_b32 s8, s8, 1
    v_xor_b32 v17, s8, v17
    v_lshl_add_u32 v36, v17, 4, v16
    s_mul_i32 s9, s3, 28672
    s_lshl_b32 s10, s6, 7
    s_add_u32 s9, s9, s10
    s_lshl_b32 s10, s3, 10
    s_mov_b32 s11, s9
    """)
    for i in range(7):
        E(f"s_add_u32 m0, s10, {i*8192}")
        E(f"buffer_load_dwordx4 v36, s[80:83], s11 offen lds")
        if i < 6: E(f"s_add_u32 s11, s11, {8*28672}")
    E.label("L_ln"); E.flush()
    E(f"""
    s_mov_b32 s12, 0x3f803f80
    v_min_u32 v15, 56, v1
    s_mul_i32 s13, s3, {LNS}
    s_add_u32 s13, s13, {LNB}
    v_lshl_add_u32 v15, v15, 4, s13
    s_waitcnt vmcnt(7)
    """)
    stamp(1)
    E("""
    v_dot2_f32_bf16 v12, v4, s12, 0
    v_dot2_f32_bf16 v12, v5, s12, v12
    v_dot2_f32_bf16 v12, v6, s12, v12
    v_dot2_f32_bf16 v12, v7, s12, v12
    v_lshlrev_b32 v16, 16, v4
    v_and_b32 v17, 0xffff0000, v4
    v_lshlrev_b32 v18, 16, v5
    """)
    dpp_reduce("v_add_f32", ["v12"], ["v_and_b32 v19, 0xffff0000, v5", "v_lshlrev_b32 v20, 16, v6", "v_and_b32 v21, 0xffff0000, v6",
                                      "v_lshlrev_b32 v22, 16, v7", "v_and_b32 v23, 0xffff0000, v7"])
    E(f"""
    v_mul_f32 v12, 0x{INV448:x}, v12
    v_cvt_pk_bf16_f32 v13, v12, v12
    v_and_b32 v13, 0xffff0000, v13
    v_readlane_b32 s13, v13, 63
    v_sub_f32 v12, v12, v13
    v_mul_f32 v12, v12, v12
    v_mul_f32 v14, s13, v14
    """)
    for i in range(8): E(f"v_sub_f32 v{16+i}, v{16+i}, v14")
    for i in range(4): E(f"v_cvt_pk_bf16_f32 v{24+i}, v{16+2*i}, v{17+2*i}")
    E("v_dot2_f32_bf16 v13, v24, v24, 0"); E("v_dot2_f32_bf16 v14, v24, v8, 0")
    for i in range(1,4):
        E(f"v_dot2_f32_bf16 v13, v{24+i}, v{24+i}, v13"); E(f"v_dot2_f32_bf16 v14, v{24+i}, v{8+i}, v14")
    E("v_lshlrev_b32 v16, 16, v24"); E("v_and_b32 v17, 0xffff0000, v24")
    dpp_reduce("v_add_f32", ["v13","v14"], ["v_lshlrev_b32 v18, 16, v25", "v_and_b32 v19, 0xffff0000, v25", "v_lshlrev_b32 v20, 16, v26",
                                            "v_and_b32 v21, 0xffff0000, v26", "v_lshlrev_b32 v22, 16, v27", "v_and_b32 v23, 0xffff0000, v27"])
    E(f"""
    v_mul_f32 v13, 0x{INV448:x}, v13
    v_sub_f32 v13, v13, v12
    v_max_f32 v13, 0, v13
    v_cvt_pk_bf16_f32 v13, v13, v13
    v_and_b32 v13, 0xffff0000, v13
    v_add_f32 v13, 0x{EPS:x}, v13
    v_cvt_pk_bf16_f32 v13, v13, v13
    v_and_b32 v13, 0xffff0000, v13
    v_sqrt_f32 v13, v13
    v_cvt_pk_bf16_f32 v13, v13, v13
    v_and_b32 v13, 0xffff0000, v13
    v_rcp_f32 v13, v13
    v_mul_f32 v14, v14, v13
    v_mul_f32 v13, 0x3d000000, v13
    v_cvt_pk_bf16_f32 v14, v14, v14
    v_readlane_b32 s13, v13, 63
    v_readlane_b32 s14, v14, 63
    s_sub_u32 s12, 2047, s7
    v_mov_b32 v13, s13
    s_ashr_i32 s15, s14, 31
    s_or_b32 s15, s15, 0x80000000
    s_xor_b32 s14, s14, s15
    s_and_b32 s14, s14, 0xffff0000
    s_or_b32 s14, s14, s12
    """)
    for i in range(8): E(f"v_mul_f32 v{16+i}, v{16+i}, v13")
    for i in range(4): E(f"v_cvt_pkrtz_f16_f32 v{28+i}, v{16+2*i}, v{17+2*i}")
    E(f"""
    ds_write_b128 v15, v[28:31]
    s_lshl_b32 s12, s3, 2
    v_mov_b32 v12, s12
    v_mov_b32 v14, s14
    ds_write_b32 v12, v14 offset:{M_KEYS & 0xffff}
    """.replace(f"v_mov_b32 v12, s12", f"s_add_u32 s12, s12, {M_KEYS & ~0xffff}\n v_mov_b32 v12, s12"))
    E(f"""
    v_bfe_u32 v16, v1, 2, 2
    v_mul_u32_u24 v16, {LNS}, v16
    v_and_b32 v17, 3, v1
    v_lshl_add_u32 v16, v17, 3, v16
    v_lshrrev_b32 v18, 4, v0
    v_lshl_add_u32 v16, v18, 5, v16
    v_add_u32 v16, {LNB}, v16
    v_lshrrev_b32 v18, 2, v0
    v_lshlrev_b32 v18, 14, v18
    v_lshl_add_u32 v18, v17, 4, v18
    s_lshl_b32 s12, s2, 6
    s_add_u32 s12, s12, 0x{WS_U:x}
    s_waitcnt lgkmcnt(0)
    s_add_u32 s68, s68, 1
    s_add_u32 s69, s69, 1
    s_add_u32 s70, s70, 1
    s_add_u32 s71, s71, 1
    s_cmp_eq_u32 s3, 7
    s_barrier
    s_cbranch_scc1 L_pub7
    ds_read_b64_tr_b16 v[32:33], v16
    ds_read_b64_tr_b16 v[34:35], v16 offset:{4*LNS}
    s_branch L_pub
    L_pub7:
    v_mov_b32 v16, {M_KEYS}
    ds_read_b128 v[20:23], v16
    ds_read_b128 v[24:27], v16 offset:16
    v_mov_b32 v29, s69
    s_lshl_b32 s13, s2, 3
    s_add_u32 s13, s13, 0x{WS_CAND:x}
    v_cmp_eq_u32 vcc, 0, v1
    v_mov_b32 v17, {OOB}
    v_cndmask_b32 v19, v17, v1, vcc
    v_cmp_gt_u32 vcc, 56, v1
    v_lshlrev_b32 v18, 4, v1
    v_cndmask_b32 v18, v17, v18, vcc
    s_lshl_b32 s12, s2, 10
    s_add_u32 s12, s12, 0x{WS_BEST:x}
    s_waitcnt lgkmcnt(0)
    v_max3_u32 v20, v20, v21, v22
    v_max3_u32 v24, v24, v25, v26
    v_max3_u32 v28, v20, v23, v24
    v_max_u32 v28, v28, v27
    buffer_store_dwordx2 v[28:29], v19, s[60:63], s13 offen sc1
    v_not_b32 v16, v28
    v_bfe_u32 v16, v16, 2, 3
    v_mul_u32_u24 v16, {LNS}, v16
    v_lshl_add_u32 v16, v1, 4, v16
    v_add_u32 v16, {LNB}, v16
    ds_read_b128 v[32:35], v16
    L_pub:
    s_and_b32 s72, s68, 0x{TAGM:x}
    s_and_b32 s73, s69, 0x{TAGM:x}
    s_and_b32 s74, s70, 0x{TAGM:x}
    s_and_b32 s75, s71, 0x{TAGM:x}
    s_waitcnt lgkmcnt(0)
    """)
    for i in range(4): E(f"v_add_u32 v{32+i}, 0x40004, v{32+i}")
    for i in range(4): E(f"v_bfi_b32 v{32+i}, v3, s{68+i}, v{32+i}")
    E("buffer_store_dwordx4 v[32:35], v18, s[60:63], s12 offen sc1")
    stamp(2)
    E("""
    s_cmp_ge_u32 s2, 224
    s_cbranch_scc1 L_ffn
    """)
    if opt.get("prio", True):
        E("s_cmp_lt_u32 s3, 4\n s_cbranch_scc1 L_noprio\n s_setprio 1\n L_noprio:")
    E(f"""
    s_mul_i32 s8, s3, {TABW}
    s_mov_b32 m0, s8
    s_bitcmp1_b32 s3, 1
    s_cselect_b32 s9, s77, s76
    s_lshl_b32 s10, s9, 16
    s_and_b32 s9, s9, 0xffff0000
    s_bitcmp1_b32 s3, 0
    s_cselect_b32 s9, s9, s10
    v_mov_b32 v4, 0x{LOG2E:x}
    v_mul_f32 v5, s9, v4
    v_exp_f32 v5, v5
    v_mov_b32 v6, 0x3c00
    ds_write_addtid_b32 v6
    v_cvt_pk_bf16_f32 v5, v5, v5
    v_and_b32 v57, 0xffff0000, v5
    v_mul_f32 v6, v57, v4
    v_mul_f32 v7, 0x{INV2PI:x}, v57
    v_and_b32 v58, 31, v1
    v_mul_u32_u24 v58, {ROW}, v58
    v_lshrrev_b32 v4, 5, v1
    v_lshl_add_u32 v58, v4, 4, v58
    v_add_u32 v58, s8, v58
    s_waitcnt vmcnt(2)
    s_cmp_lt_u32 s3, 4
    s_cbranch_scc1 L_noxpf
    """)
    E("""
    s_cmp_eq_u32 s5, 0
    s_movk_i32 s80, -192
    s_cselect_b32 s80, s80, 544
    s_movk_i32 s81, 1536
    s_cselect_b32 s81, s81, 1312
    s_cselect_b32 s82, 0, 576
    s_movk_i32 s83, 1568
    s_cselect_b32 s83, s83, 0
    s_movk_i32 s10, 1792
    s_cselect_b32 s10, s10, 2048
    v_and_b32 v4, 255, v0
    s_movk_i32 s9, 896
    v_add_u32 v8, s80, v4
    v_mul_i32_i24 v52, s9, v8
    v_add_u32 v53, 229376, v52
    v_add_u32 v54, 458752, v52
    v_cmp_le_i32 vcc, s82, v8
    v_mov_b32 v9, %s
    v_cndmask_b32 v52, v9, v52, vcc
    v_add_u32 v8, s81, v4
    v_mul_u32_u24 v55, s9, v8
    v_cmp_le_i32 vcc, s83, v8
    v_add_u32 v8, s10, v4
    v_cndmask_b32 v55, v9, v55, vcc
    v_mul_u32_u24 v56, s9, v8
    s_lshl_b32 s11, s4, 3
    """ % OOB)
    for i in range(5): E(f"buffer_load_dwordx2 v[{42+2*i}:{43+2*i}], v{52+i}, s[52:55], s11 offen")
    E.label("L_noxpf");
    for t in range(2):
        for k, r in enumerate((38,39,40,41)):
            E(f"v_lshlrev_b32 v{8+k}, 16, v{r}" if t == 0 else f"v_and_b32 v{8+k}, 0xffff0000, v{r}")
        E(f"""
        v_mul_f32 v12, v11, v9
        v_mul_f32 v13, v11, v8
        v_fma_f32 v{60+2*t}, v10, v8, -v12
        v_fma_f32 v{61+2*t}, -v10, v9, -v13
        """)
    E("v_max3_f32 v12, |v60|, |v61|, |v62|"); E("v_max_f32 v12, |v63|, v12".replace("v_max_f32","v_max_f32_e64"))
    E("v_lshlrev_b32 v8, 16, v36"); E("v_lshlrev_b32 v9, 16, v37")
    dpp_reduce("v_max_u32", ["v12"], ["v_and_b32 v36, 0xffff0000, v36", "v_and_b32 v37, 0xffff0000, v37",
               "v_mul_f32 v8, v8, v6", "v_mul_f32 v9, v9, v7", "v_mul_f32 v36, v36, v6", "v_mul_f32 v37, v37, v7",
               "v_rndne_f32 v10, v9", "v_rndne_f32 v11, v37", "v_sub_f32 v9, v9, v10", "v_sub_f32 v37, v37, v11"])
    E(f"""
    v_exp_f32 v8, v8
    v_readlane_b32 s9, v12, 63
    v_cos_f32 v10, v9
    v_sin_f32 v11, v9
    s_lshr_b32 s9, s9, 23
    s_max_u32 s9, s9, 8
    s_sub_u32 s10, 258, s9
    s_lshl_b32 s10, s10, 23
    v_mov_b32 v12, s10
    v_mov_b32 v59, s9
    v_mul_f32 v60, v60, v12
    v_mul_f32 v61, v61, v12
    v_mul_f32 v62, v62, v12
    v_mul_f32 v63, v63, v12
    """)
    def wr(reg, row): return f"ds_write_addtid_b32 v{reg} offset:{row*ROW}"
    def cp(d, p, q, conj):
        ng = "neg_hi:[0,1,0]" if conj else "neg_lo:[0,1,0]"
        return (f"v_pk_mul_f16 v{d}, v{p}, v{q} op_sel:[0,0] op_sel_hi:[1,0]",
                f"v_pk_fma_f16 v{d}, v{p}, v{q}, v{d} op_sel:[1,1,0] op_sel_hi:[0,1,1] {ng}")
    FR = lambda j: 192 + j
    def task(t):
        L = []
        if t == 1:
            L += ["v_exp_f32 v8, v36", "v_cos_f32 v10, v37", "v_sin_f32 v11, v37"]
        L += ["v_mul_f32 v14, v8, v10", "v_mul_f32 v15, v8, v11"]
        cur = (14,15); nxt = (16,17)
        h16 = {1: 20, 2: 21, 4: 22, 8: FR(1), 16: FR(2), 32: FR(4), 64: FR(8), 128: FR(16)}
        for k in (1,2,4,8,16,32,64,128):
            L += [f"v_mul_f32 v18, v{cur[1]}, v{cur[1]}", f"v_mul_f32_e64 v{nxt[1]}, v{cur[0]}, v{cur[1]} mul:2",
                  f"v_fma_f32 v{nxt[0]}, v{cur[0]}, v{cur[0]}, -v18", f"v_cvt_pk_f16_f32 v{h16[k]}, v{cur[0]}, v{cur[1]}"]
            if k >= 8: L.append(wr(h16[k], k//8))
            cur, nxt = nxt, cur
        e256 = cur
        mark_chain_end = len(L)
        js = [j for j in range(3,32) if j & (j-1)]
        order = [3,5,6,9,7,10,11,12,13,14,15] + list(range(17,32))
        assert sorted(order) == js
        def fdst(j): return FR(j) if j <= 16 else 212 + (j & 3)
        for a in range(0, 26, 2):
            j1, j2 = order[a], order[a+1]
            f = lambda j: cp(fdst(j), FR(1 << (j.bit_length()-1)), FR(j - (1 << (j.bit_length()-1))), False)
            p1, p2 = f(j1), f(j2)
            L += [p1[0], p2[0], p1[1], p2[1], wr(fdst(j1), j1), wr(fdst(j2), j2)]
        L.append("FREADS")
        xs = {0:0, 1:8, 2:12, 3:16, 4:20, 5:18, 6:22, 7:19, 8:23}
        xh = {k: 216+k for k in range(9)}
        xc = (60+2*t, 61+2*t); xa = (24,25); xb = (26,27)
        chain = []
        er, ei = e256
        chain.append([f"v_cvt_pk_f16_f32 v{xh[0]}, v{xc[0]}, v{xc[1]}", wr(xh[0], 32+xs[0])])
        src = xc
        for k in range(1,9):
            dst = xa if k & 1 else xb
            c = [f"v_mul_f32 v18, v{src[0]}, v{er}", f"v_mul_f32 v19, v{src[1]}, v{er}",
                 f"v_fma_f32 v{dst[0]}, v{src[1]}, v{ei}, v18", f"v_fma_f32 v{dst[1]}, -v{src[0]}, v{ei}, v19",
                 f"v_cvt_pk_f16_f32 v{xh[k]}, v{dst[0]}, v{dst[1]}", wr(xh[k], 32+xs[k])]
            if k in (2,4): c.append(wr(xh[k], 32+xs[k]+1))
            chain.append(c); src = dst
        for c in chain: L += c
        g = {n: 226+i for i, n in enumerate((1,2,3,4,5,6,7,258,260,262,516,772))}
        slot = {1:1,2:2,3:3,4:4,5:5,6:6,7:7,258:9,260:10,262:11,516:14,772:17}
        defs = [(1,xh[0],20),(2,xh[0],21),(4,xh[0],22),(258,xh[1],21),(3,g[2],20),(260,xh[1],22),(5,g[4],20),(6,g[4],21),
                (516,xh[2],22),(262,g[260],21),(7,g[6],20),(772,xh[3],22)]
        for a in range(0, 12, 2):
            (n1,p1,q1),(n2,p2,q2) = defs[a], defs[a+1]
            c1, c2 = cp(g[n1],p1,q1,True), cp(g[n2],p2,q2,True)
            L += [c1[0], c2[0], c1[1], c2[1], wr(g[n1], 32+slot[n1]), wr(g[n2], 32+slot[n2])]
        L.append("GREADS")
        return L
    def freads():
        for k in range(8): E(f"ds_read_b128 v[{128+4*k}:{131+4*k}], v58 offset:{32*k}")
    def greads():
        for k in range(8): E(f"ds_read_b128 v[{160+4*k}:{163+4*k}], v58 offset:{32*ROW+32*k}")
    def kmfma(k, first): E(f"v_mfma_f32_32x32x16_f16 v[64:79], v[{160+4*k}:{163+4*k}], v[{128+4*k}:{131+4*k}], {'0' if first else 'v[64:79]'}")
    for s in task(0):
        if s == "FREADS": freads()
        elif s == "GREADS": greads()
        else: E(s)
    T1 = task(1)
    upos = opt.get("upos", "FREADS")
    n = 0; km = 0
    for s in T1:
        if s == "FREADS" or s == "GREADS":
            if s == upos:
                E(f"""
                s_cmp_lt_u32 s3, 4
                s_cbranch_scc1 L_nouload
                v_and_b32 v4, 255, v0
                v_lshlrev_b32 v4, 4, v4
                s_lshl_b32 s12, s4, 14
                s_add_u32 s12, s12, 0x{WS_U:x}
                s_add_u32 s13, s12, 4096
                s_add_u32 s14, s12, 8192
                s_add_u32 s15, s12, 12288
                v_lshlrev_b32 v5, 4, v1
                s_mov_b32 s10, 0x{WS_CAND:x}
                buffer_load_dwordx4 v[96:99], v4, s[60:63], s12 offen sc1
                buffer_load_dwordx4 v[100:103], v4, s[60:63], s13 offen sc1
                buffer_load_dwordx4 v[104:107], v4, s[60:63], s14 offen sc1
                buffer_load_dwordx4 v[108:111], v4, s[60:63], s15 offen sc1
                s_cmp_lt_u32 s3, 7
                s_cbranch_scc1 L_nouload
                buffer_load_dwordx4 v[112:115], v5, s[60:63], s10 offen sc1
                buffer_load_dwordx4 v[116:119], v5, s[60:63], s10 offen offset:1024 sc1
                L_nouload:
                """)
            freads() if s == "FREADS" else greads()
            continue
        if n == 17: E("s_waitcnt lgkmcnt(0)")
        if n >= 17 and (n - 17) % 6 == 0 and km < 8:
            kmfma(km, km == 0); km += 1
        E(s); n += 1
    assert km == 8
    for k in range(8):
        E(f"s_waitcnt lgkmcnt({7-k})"); kmfma(k, False)
    stamp(3)
    E("s_cmp_lt_u32 s3, 4\n s_cbranch_scc1 L_conv")
    E(f"""
    s_and_b32 s8, s3, 3
    s_lshl_b32 s9, s8, 2
    s_add_u32 s9, s9, {M_EF}
    v_mov_b32 v6, s9
    ds_write_b32 v6, v59
    v_and_b32 v7, 3, v0
    v_mul_u32_u24 v7, {USTR}, v7
    v_bfe_u32 v8, v0, 2, 6
    v_lshl_add_u32 v7, v8, 4, v7
    v_add_u32 v7, {UB+512}, v7
    s_mul_i32 s9, s8, {USTR}
    s_add_u32 s9, s9, {UB}
    v_lshl_add_u32 v8, v1, 3, s9
    v_mov_b32 v10, 0
    v_mov_b32 v11, 0
    ds_write_b64 v8, v[10:11]
    s_mov_b32 s9, 0
    """)
    for k in range(12): E(f"ds_write_addtid_b32 v{64+k} offset:{256*k}")
    E("s_waitcnt lgkmcnt(0)\n s_barrier")
    E.label("L_uchk")
    E("s_waitcnt vmcnt(0)")
    for k in range(16): E(f"v_xor_b32 v{96+k}, s{72+(k&3)}, v{96+k}")
    E("v_or3_b32 v10, v96, v97, v98")
    for k in range(3, 15, 2): E(f"v_or3_b32 v10, v10, v{96+k}, v{97+k}")
    E(f"""
    v_or_b32 v10, v10, v111
    v_and_b32 v10, v3, v10
    v_cmp_ne_u32 vcc, 0, v10
    s_add_u32 s9, s9, 1
    s_cbranch_vccz L_uok
    s_cmp_gt_u32 s9, {SPIN}
    s_cbranch_scc1 L_uok
    buffer_load_dwordx4 v[96:99], v4, s[60:63], s12 offen sc1
    buffer_load_dwordx4 v[100:103], v4, s[60:63], s13 offen sc1
    buffer_load_dwordx4 v[104:107], v4, s[60:63], s14 offen sc1
    buffer_load_dwordx4 v[108:111], v4, s[60:63], s15 offen sc1
    s_branch L_uchk
    L_uok:
    """)
    for k in range(4): E(f"ds_write_b128 v7, v[{96+4*k}:{99+4*k}] offset:{1024*k}")
    E(f"""
    s_cmp_lt_u32 s3, 7
    s_cbranch_scc1 L_cok2
    L_cchk:
    v_cmp_ne_u32 vcc, s69, v113
    v_cmp_ne_u32 s[12:13], s69, v115
    v_cmp_ne_u32 s[14:15], s69, v117
    s_or_b64 s[12:13], s[12:13], vcc
    v_cmp_ne_u32 vcc, s69, v119
    s_or_b64 s[12:13], s[12:13], s[14:15]
    s_add_u32 s9, s9, 1
    s_or_b64 s[12:13], s[12:13], vcc
    s_cbranch_scc0 L_cok
    s_cmp_gt_u32 s9, {SPIN}
    s_cbranch_scc1 L_cok
    buffer_load_dwordx4 v[112:115], v5, s[60:63], s10 offen sc1
    buffer_load_dwordx4 v[116:119], v5, s[60:63], s10 offen offset:1024 sc1
    s_waitcnt vmcnt(0)
    s_branch L_cchk
    L_cok:
    v_max3_u32 v10, v112, v114, v116
    v_max_u32 v10, v10, v118
    v_mov_b32 v11, {M_BEST}
    """)
    dpp_reduce("v_max_u32", ["v10"])
    E(f"""
    v_readlane_b32 s12, v10, 63
    s_cmp_lg_u32 s2, 0
    v_mov_b32 v10, s12
    ds_write_b32 v11, v10
    s_cbranch_scc1 L_cok2
    v_mov_b32 v12, s68
    v_mov_b32 v13, s69
    v_mov_b32 v14, s70
    v_mov_b32 v15, s71
    v_mov_b32 v11, 0
    buffer_store_dwordx4 v[12:15], v11, s[60:63], 0 offen
    L_cok2:
    """)
    E(f"""
    s_lshl_b32 s12, s78, 16
    s_and_b32 s13, s78, 0xffff0000
    s_lshl_b32 s14, s79, 16
    s_and_b32 s15, s79, 0xffff0000
    v_mov_b32 v25, 0x44800000
    v_mul_f32 v20, s12, v25
    v_mul_f32 v21, s13, v25
    v_mul_f32 v22, s14, v25
    v_mul_f32 v23, s15, v25
    v_and_b32 v24, 3, v1
    v_lshlrev_b32 v24, 4, v24
    v_bfe_u32 v25, v1, 2, 3
    v_lshl_add_u32 v24, v25, 1, v24
    v_bfe_u32 v25, v0, 5, 3
    v_lshl_add_u32 v24, v25, 6, v24
    s_lshl_b32 s12, s80, 1
    s_add_u32 s12, s12, {UB+512}
    s_lshl_b32 s13, s81, 1
    s_add_u32 s13, s13, {UB+512}
    v_add_u32 v26, s13, v24
    v_add_u32 v24, s12, v24
    s_lshl_b32 s12, s8, 8
    s_add_u32 m0, s12, {YB}
    v_mov_b32 v27, {M_SC}
    s_mov_b32 s15, 0xc238aa3b
    s_waitcnt lgkmcnt(0)
    s_barrier
    s_setprio 0
    ds_read_b128 v[16:19], v27
    ds_read_b32 v28, v27 offset:16
    """)
    stamp(4)
    def prep(i):
        a, off = ("v24", 512*i) if i < 3 else ("v26", 512*(i-3))
        for c in range(4): E(f"ds_read_u16 v{64+c}, {a} offset:{off + c*USTR}")
        E(f"v_lshlrev_b32 v68, 16, v{42+2*i}\n v_and_b32 v69, 0xffff0000, v{42+2*i}\n v_lshlrev_b32 v70, 16, v{43+2*i}\n v_and_b32 v71, 0xffff0000, v{43+2*i}")
        E("s_waitcnt lgkmcnt(0)")
        if i == 0:
            E(f"""
            v_not_b32 v28, v28
            v_and_b32 v28, 0x7ff, v28
            v_mul_u32_u24 v28, 896, v28
            v_mov_b32 v29, {OOB}
            """)
        for c in range(4): E(f"v_fma_mix_f32 v{72+c}, v{64+c}, s15, 0 op_sel_hi:[1,0,0]")
        for c in range(4): E(f"v_exp_f32 v{72+c}, v{72+c}")
        for c in range(4): E(f"v_add_f32 v{72+c}, 1.0, v{72+c}")
        for c in range(4): E(f"v_rcp_f32 v{72+c}, v{72+c}")
        E(f"v_cmp_eq_u32 vcc, v28, v{52+i}")
        for c in range(4): E(f"v_fma_mix_f32 v{72+c}, v{64+c}, v{72+c}, 0 op_sel_hi:[1,0,0]")
        for c in range(4): E(f"v_fma_mix_f32 v{64+c}, v{64+c}, v{20+c}, 0 op_sel_hi:[1,0,0]")
        E(f"v_cndmask_b32 v{52+i}, v{52+i}, v29, vcc")
        for c in range(4): E(f"v_fmac_f32 v{68+c}, v{64+c}, v{72+c}")
        for c in range(4): E(f"v_mul_f32 v{72+c}, v{72+c}, v{16+c}")
    def finish(i):
        for c in range(4): E(f"ds_read_addtid_b32 v{76+c} offset:{4096*i + 1024*c}")
        for c in range(4):
            E(f"s_waitcnt lgkmcnt({3-c})"); E(f"v_fmac_f32 v{68+c}, v{76+c}, v{72+c}")
        E(f"v_cvt_pk_bf16_f32 v{42+2*i}, v68, v69\n v_cvt_pk_bf16_f32 v{43+2*i}, v70, v71")
        E(f"buffer_store_dwordx2 v[{42+2*i}:{43+2*i}], v{52+i}, s[64:67], s11 offen")
    for i in range(5):
        if i == 4: E("s_cmp_eq_u32 s5, 1\n s_cbranch_scc1 L_fin")
        prep(i); E("s_barrier"); finish(i)
    E("s_branch L_fin")
    E.label("L_conv"); E.flush()
    E(f"""
    s_add_u32 m0, s8, {4*TABW}
    s_lshl_b32 s9, s3, 2
    s_add_u32 s9, s9, {M_EF}
    v_mov_b32 v6, s9
    s_mul_i32 s10, s3, {KSTR}
    s_add_u32 s10, s10, {KB}
    v_lshl_add_u32 v7, v1, 4, s10
    v_and_b32 v8, 31, v1
    v_lshrrev_b32 v9, 5, v1
    v_lshlrev_b32 v10, 4, v8
    v_lshl_add_u32 v10, v9, 3, v10
    v_add_u32 v10, s10, v10
    v_lshl_add_u32 v11, v1, 1, s10
    v_and_b32 v12, 1, v1
    v_sub_u32 v12, 0, v12
    v_lshlrev_b32 v13, 4, v8
    v_lshlrev_b32 v9, 6, v9
    v_sub_u32 v13, v13, v9
    s_mul_i32 s12, s3, {USTR}
    s_add_u32 s12, s12, {UB+64}
    v_add_u32 v4, s12, v13
    v_lshrrev_b32 v13, 4, v1
    v_lshlrev_b32 v13, 2, v13
    v_and_b32 v14, 3, v1
    v_add_u32 v13, v13, v14
    v_bfe_u32 v14, v1, 2, 2
    v_sub_u32 v13, v13, v14
    v_lshlrev_b32 v13, 3, v13
    s_add_u32 s12, s10, 32
    v_add_u32 v5, s12, v13
    s_barrier
    ds_read_b32 v13, v6
    """)
    for k in range(12): E(f"ds_read_addtid_b32 v{80+k} offset:{256*k}")
    E(f"""
    v_mul_f32 v57, 0x44800000, v57
    s_waitcnt lgkmcnt(12)
    v_max_u32 v14, v13, v59
    v_sub_u32 v15, v59, v14
    v_sub_u32 v16, v13, v14
    v_ldexp_f32 v15, 1.0, v15
    v_ldexp_f32 v16, 1.0, v16
    v_add_u32 v14, -131, v14
    v_ldexp_f32 v57, v57, v14
    ds_write_b32 v6, v57 offset:16
    """)
    for k in range(12): E(f"v_mul_f32 v{64+k}, v{64+k}, v15")
    E("s_waitcnt lgkmcnt(1)")
    for k in range(12): E(f"v_fmac_f32 v{64+k}, v{80+k}, v16")
    K = lambda k: f"v{64+k}"
    E(f"""
    v_cvt_pk_f16_f32 v20, v64, v65
    v_cvt_pk_f16_f32 v21, v66, v67
    ds_write_b64 v10, v[20:21] offset:64
    v_mov_b32_dpp v80, v72 wave_rol:1 {DPPF}
    v_mov_b32_dpp v81, v74 wave_rol:1 {DPPF}
    v_mov_b32_dpp v82, v75 wave_rol:1 {DPPF}
    v_mov_b32_dpp v83, v75 wave_rol:1 {DPPF}
    v_mov_b32_dpp v80, v68 wave_shl:1 {DPPF}
    v_mov_b32_dpp v81, v72 wave_shl:1 {DPPF}
    v_mov_b32_dpp v82, v74 wave_shl:1 {DPPF}
    v_cvt_pk_f16_f32 v24, v68, v68
    v_mov_b32_dpp v71, v80 quad_perm:[0,1,2,3] row_mask:0xc bank_mask:0xf
    v_cvt_pk_f16_f32 v25, v69, v70
    v_cvt_pk_f16_f32 v26, v70, v70
    v_cvt_pk_f16_f32 v27, v71, v80
    ds_write_b128 v7, v[24:27] offset:{64+512}
    v_bfi_b32 v84, v12, v81, v72
    v_cvt_pk_f16_f32 v30, v84, v81
    v_cvt_pk_f16_f32 v85, v73, v73
    v_cvt_pk_f16_f32 v28, v72, v72
    v_cvt_pk_f16_f32 v29, v72, v73
    v_cvt_pk_f16_f32 v31, v81, v81
    v_mov_b32_dpp v30, v85 quad_perm:[0,1,2,3] row_mask:0x3 bank_mask:0xf
    ds_write_b128 v7, v[28:31] offset:{64+512*3}
    v_bfi_b32 v84, v12, v82, v74
    v_cvt_pk_f16_f32 v88, v74, v74
    v_cvt_pk_f16_f32 v90, v84, v82
    v_cvt_pk_f16_f32 v91, v82, v82
    v_mov_b32 v89, v88
    ds_write_b128 v7, v[88:91] offset:{64+512*5}
    v_bfi_b32 v84, v12, v83, v75
    v_cvt_pk_f16_f32 v92, v75, v75
    v_cvt_pk_f16_f32 v94, v84, v83
    v_cvt_pk_f16_f32 v95, v83, v83
    v_mov_b32 v93, v92
    v_mov_b32 v20, 0
    s_mov_b32 exec_hi, 0
    ds_write_b128 v7, v[92:95] offset:{64+512*7}
    ds_write_b16 v11, v20
    s_mov_b32 exec_hi, -1
    s_lshl_b32 s12, s3, 10
    s_add_u32 m0, s12, {YB}
    v_cmp_le_u32 vcc, 63, v1
    v_cndmask_b32 v6, 0, -1, vcc
    v_cmp_le_u32 vcc, 62, v1
    v_cndmask_b32 v7, 0, -1, vcc
    v_cmp_le_u32 vcc, 61, v1
    v_cndmask_b32 v8, 0, -1, vcc
    """)
    NPRE = 4
    def kread(b):
        return [f"ds_read_b64_tr_b16 v[{128+4*b}:{129+4*b}], v5 offset:{128*b+32}", f"ds_read_b64_tr_b16 v[{130+4*b}:{131+4*b}], v5 offset:{128*b}"]
    for b in range(NPRE):
        for s in kread(b): E(s)
    E("s_waitcnt lgkmcnt(%d)" % (2*NPRE))
    E("s_cmp_eq_u32 s5, 1\n s_barrier")
    stamp(4)
    if dump == "K":
        E(f"""
        s_lshl2_add_u32 s12, s4, s3
        s_mul_i32 s12, s12, 8192
        s_lshl_b32 s13, s5, 12
        s_add_u32 s12, s12, s13
        s_add_u32 s12, s12, 0x{WS_DBG+0x100000:x}
        v_lshl_add_u32 v20, v1, 4, s10
        v_lshlrev_b32 v21, 4, v1
        """)
        for k in range(4):
            E(f"ds_read_b128 v[24:27], v20 offset:{64+1024*k}\n s_waitcnt lgkmcnt(0)\n buffer_store_dwordx4 v[24:27], v21, s[60:63], s12 offen offset:{1024*k}\n s_waitcnt vmcnt(0)")
        E("s_cmp_eq_u32 s5, 1")
    E("s_cbranch_scc1 L_convB")
    def reduce_ops(ti, first, gs):
        A = 32 + 16*ti; P = 32 + 16*(ti-1)
        L = []
        for g in gs:
            for c in (1,2,3):
                cur = A + 4*g + c
                prev = (A + 4*(g-1) + c) if g > 0 else (P + 12 + c)
                dst = 12 + 3*g + (c-1)
                if g == 0 and first: L.append(f"v_mov_b32 v{dst}, v{cur}")
                else: L.append(f"v_bfi_b32 v{dst}, v{5+c}, v{prev}, v{cur}")
        for g in gs: L.append(f"v_add_f32_dpp v{12+3*g+1}, v{12+3*g+2}, v{12+3*g+1} wave_ror:1 {DPPF}")
        for g in gs: L.append(f"v_add_f32_dpp v{12+3*g}, v{12+3*g+1}, v{12+3*g} wave_ror:1 {DPPF}")
        for g in gs: L.append(f"v_add_f32_dpp v{24+g}, v{12+3*g}, v{A+4*g} wave_ror:1 {DPPF}")
        for g in gs: L.append(f"ds_write_addtid_b32 v{24+g} offset:{4096*ti+256*g}")
        return L
    def conv_stream(ty, barpos):
        tiles = TILES[ty]
        jobs = []
        for ti, I0 in enumerate(tiles):
            nb = (I0 + 8 + 1)//2
            for b in range(nb): jobs.append((ti, I0, b, nb))
        D = 3
        q = ["k%d" % b for b in range(NPRE) for _ in range(2)]
        kl = NPRE
        kmax = max(j[3] for j in jobs)
        def issue(text, tag): E(text); q.append(tag)
        def waitfor(tags):
            last = -1
            for i, t in enumerate(q):
                if t in tags: last = i
            if last >= 0:
                n = len(q) - 1 - last
                E(f"s_waitcnt lgkmcnt({min(n,15)})")
                del q[:len(q)-min(n,15)]
        def uread(n):
            ti, I0, b, nb = jobs[n]
            r = 112 + 4*(n % 4)
            issue(f"ds_read_b128 v[{r}:{r+3}], v4 offset:{448 + (I0-2*b)*64}", "u%d" % n)
        for n in range(D): uread(n)
        side = []
        nbar = 0; done_w = set()
        for n, (ti, I0, b, nb) in enumerate(jobs):
            if n + D < len(jobs):
                bb = jobs[n+D][2]
                uread(n + D)
            need_k = max(jobs[m][2] for m in range(n, min(n+D+1, len(jobs))))
            if kl < kmax and (kl <= need_k or True):
                for s in kread(kl): issue(s, "k%d" % kl)
                kl += 1
            waitfor({"u%d" % n, "k%d" % b})
            A = 32 + 16*ti; r = 112 + 4*(n % 4)
            E(f"v_mfma_f32_32x32x16_f16 v[{A}:{A+15}], v[{r}:{r+3}], v[{128+4*b}:{131+4*b}], {'0' if b == 0 else f'v[{A}:{A+15}]'}")
            if b == nb - 1:
                first = ti == 0 or tiles[ti-1] + 8 != I0
                gs = [3] if I0 < 0 else [0,1,2,3]
                side += [(n + 3, ti, s) for s in reduce_ops(ti, first, gs)]
            cnt = 0
            while side and side[0][0] <= n and cnt < (3 if kl < kmax else 5):
                _, tj, s = side.pop(0); cnt += 1
                if s.startswith("ds_"): issue(s, "y%d" % tj)
                else: E(s)
                if not any(x[1] == tj for x in side): done_w.add(tj)
            if nbar < len(tiles)-1 and n >= barpos[nbar] and nbar in done_w:
                waitfor({"y%d" % nbar}); E("s_barrier"); nbar += 1
            if n == opt.get("idxpos", 6): fix_early(ty)
            if n == len(jobs) - opt.get("pollpos", 10): fix_poll(ty)
        for _, tj, s in side:
            E(s)
        assert nbar == len(tiles) - 1, (nbar, ty)
        E("s_waitcnt lgkmcnt(0)\n s_barrier")
    def fix_early(ty):
        pass
    def fix_poll(ty):
        pass
    conv_stream(0, [12, 20, 28, 0])
    E("s_branch L_fix")
    E.label("L_convB"); E.flush()
    conv_stream(1, [0, 0, 0])
    E.label("L_fix"); E.flush()
    stamp(5)
    E(f"""
    s_cmp_lg_u32 s3, 0
    s_cbranch_scc1 L_fin
    v_mov_b32 v4, {M_SC}
    ds_read_b32 v5, v4 offset:16
    v_and_b32 v9, 3, v1
    v_lshlrev_b32 v10, 2, v1
    s_lshl_b32 s8, s4, 9
    s_add_u32 s8, s8, 0x{WS_PART:x}
    buffer_load_dword v12, v10, s[60:63], s8 offen sc1
    buffer_load_dword v13, v10, s[60:63], s8 offen offset:256 sc1
    s_waitcnt lgkmcnt(0)
    v_readfirstlane_b32 s9, v5
    s_andn2_b32 s10, 0x7ff, s9
    s_cmp_lt_u32 s10, 576
    s_cselect_b32 s11, 0, 1
    s_movk_i32 s12, 192
    s_cselect_b32 s12, s12, -544
    s_cmp_ge_u32 s10, 1568
    s_cselect_b32 s11, 0, s11
    s_cselect_b32 s12, -768, s12
    s_cmp_lg_u32 s11, s5
    s_cbranch_scc1 L_fin
    s_add_i32 s12, s12, s10
    s_lshr_b32 s13, s12, 8
    s_lshl_b32 s13, s13, 12
    s_and_b32 s12, s12, 255
    s_lshl2_add_u32 s12, s12, s13
    s_add_u32 s12, s12, {YB}
    v_lshl_add_u32 v14, v9, 10, s12
    ds_read_b32 v14, v14
    s_lshr_b32 s12, s10, 5
    s_lshl_b32 s12, s12, 6
    s_and_b32 s13, s10, 3
    s_lshl_b32 s13, s13, 4
    s_add_u32 s12, s12, s13
    s_bfe_u32 s13, s10, 0x30002
    s_lshl1_add_u32 s12, s13, s12
    s_add_u32 s12, s12, {UB+512}
    v_mul_u32_u24 v15, {USTR}, v9
    v_add_u32 v15, s12, v15
    ds_read_u16 v15, v15
    v_lshl_add_u32 v16, v9, 2, v4
    ds_read_b32 v16, v16
    s_mul_i32 s12, s10, 896
    s_lshl_b32 s13, s4, 3
    s_add_u32 s12, s12, s13
    v_lshlrev_b32 v17, 1, v1
    v_cmp_gt_u32 vcc, 4, v1
    v_mov_b32 v18, {OOB}
    v_cndmask_b32 v17, v18, v17, vcc
    buffer_load_ushort v18, v17, s[52:55], s12 offen
    v_lshlrev_b32 v19, 3, v9
    v_lshrrev_b32 v19, v19, s68
    v_and_b32 v19, 0xff, v19
    v_cmp_gt_u32 vcc, 48, v1
    v_cndmask_b32 v20, 0, -1, vcc
    v_mov_b32 v21, s78
    v_mov_b32 v22, s79
    v_cmp_gt_u32 vcc, 2, v9
    v_cndmask_b32 v21, v22, v21, vcc
    v_not_b32 v22, v1
    v_and_b32 v22, 1, v22
    v_lshlrev_b32 v22, 4, v22
    v_lshlrev_b32 v21, v22, v21
    v_and_b32 v21, 0xffff0000, v21
    s_and_b32 s13, s9, 0xffff0000
    s_not_b32 s14, s13
    s_ashr_i32 s14, s14, 31
    s_and_b32 s14, s14, 0x7fff0000
    s_or_b32 s14, s14, 0x80000000
    s_xor_b32 s13, s13, s14
    v_mov_b32 v22, 0x{LOG2E | 0x80000000:x}
    v_mul_f32 v23, s13, v22
    v_exp_f32 v23, v23
    v_add_f32 v23, 1.0, v23
    v_rcp_f32 v23, v23
    v_cvt_pk_bf16_f32 v23, v23, v23
    v_and_b32 v23, 0xffff0000, v23
    s_waitcnt lgkmcnt(0)
    v_cvt_f32_f16 v15, v15
    v_mul_f32 v15, 0x42000000, v15
    v_mul_f32 v16, 0x3d000000, v16
    v_mul_f32 v14, v14, v16
    v_fmac_f32 v14, v15, v21
    s_mov_b32 s13, 0
    L_pchk:
    s_waitcnt vmcnt(0)
    v_xor_b32 v12, v12, v19
    v_xor_b32 v13, v13, v19
    v_and_b32 v13, v13, v20
    v_or_b32 v24, v12, v13
    v_and_b32 v24, 0xff, v24
    v_cmp_ne_u32 vcc, 0, v24
    s_add_u32 s13, s13, 1
    s_cbranch_vccz L_pok
    s_cmp_gt_u32 s13, {SPIN}
    s_cbranch_scc1 L_pok
    buffer_load_dword v12, v10, s[60:63], s8 offen sc1
    buffer_load_dword v13, v10, s[60:63], s8 offen offset:256 sc1
    s_branch L_pchk
    L_pok:
    v_add_f32 v12, v12, v13
    v_add_f32_dpp v12, v12, v12 row_ror:4 {DPPF}
    v_add_f32_dpp v12, v12, v12 row_ror:8 {DPPF}
    v_mov_b32 v13, v12
    v_permlane16_swap_b32 v12, v13
    v_add_f32 v12, v12, v13
    v_mov_b32 v13, v12
    v_permlane32_swap_b32 v12, v13
    v_add_f32 v12, v12, v13
    v_cvt_pk_bf16_f32 v12, v12, v12
    v_and_b32 v12, 0xffff0000, v12
    v_mul_f32 v12, v12, v23
    v_cvt_pk_bf16_f32 v12, v12, v12
    v_and_b32 v12, 0xffff0000, v12
    v_add_f32 v12, v12, v15
    v_cvt_pk_bf16_f32 v12, v12, v12
    v_and_b32 v12, 0xffff0000, v12
    v_mul_f32 v13, v12, v22
    v_exp_f32 v13, v13
    v_lshlrev_b32 v18, 16, v18
    v_add_f32 v13, 1.0, v13
    v_rcp_f32 v13, v13
    v_mul_f32 v12, v12, v13
    v_fmac_f32 v18, v12, v14
    v_cvt_pk_bf16_f32 v18, v18, v18
    buffer_store_short v18, v17, s[64:67], s12 offen
    s_branch L_fin
    """)
    E.label("L_ffn"); E.flush()
    E("""
    s_cmp_ge_u32 s2, 252
    s_cbranch_scc1 L_fin
    s_mov_b32 s80, s40
    s_mov_b32 s81, s41
    s_mov_b32 s82, 1605632
    s_mov_b32 s83, 0x20000
    v_xor_b32 v36, 64, v36
    s_mov_b32 s11, s9
    """)
    for i in range(7):
        E(f"s_add_u32 m0, s10, {57344 + i*8192}")
        E(f"buffer_load_dwordx4 v36, s[80:83], s11 offen lds")
        if i < 6: E(f"s_add_u32 s11, s11, {8*28672}")
    E("""
    s_cmp_ge_u32 s3, 4
    s_cbranch_scc1 L_nowd
    s_mov_b32 s76, s42
    s_mov_b32 s77, s43
    s_mov_b32 s78, 1605632
    s_mov_b32 s79, 0x20000
    v_lshrrev_b32 v4, 4, v1
    v_mul_u32_u24 v4, 7168, v4
    v_and_b32 v5, 15, v1
    v_lshl_add_u32 v4, v5, 4, v4
    s_mul_i32 s12, s6, 57344
    s_lshl_b32 s13, s3, 8
    s_add_u32 s12, s12, s13
    """)
    for s in range(2):
        for i in range(8):
            r = 128 + 32*s + 4*i
            if i % 4 == 0 and (s, i) != (0, 0): E(f"s_add_u32 s12, s12, {3584 if i == 4 else 28672-3584}")
            E(f"buffer_load_dwordx4 v[{r}:{r+3}], v4, s[76:79], s12 offen offset:{896*(i%4)}")
    E.label("L_nowd")
    E(f"""
    v_lshrrev_b32 v4, 4, v1
    v_bfe_u32 v5, v1, 2, 2
    v_lshl_add_u32 v6, v4, 3, v5
    v_lshlrev_b32 v6, 7, v6
    v_bfe_u32 v7, v1, 1, 1
    v_mov_b32 v8, 57344
    v_mad_u32_u24 v6, v7, v8, v6
    v_bfe_u32 v8, v1, 3, 2
    v_lshl_add_u32 v8, v7, 2, v8
    v_xor_b32 v8, s3, v8
    v_lshl_add_u32 v6, v8, 4, v6
    v_and_b32 v8, 1, v1
    v_lshl_add_u32 v6, v8, 3, v6
    v_and_b32 v7, 15, v1
    v_min_u32 v8, 13, v7
    v_lshl_add_u32 v8, v8, 2, v4
    v_lshlrev_b32 v8, 4, v8
    v_lshlrev_b32 v5, 4, v1
    s_mov_b32 s10, 0x{WS_CAND:x}
    s_lshl_b32 s12, s3, 4
    s_add_u32 s12, s12, {M_H}
    v_lshl_add_u32 v9, v1, 1, s12
    v_mov_b32 v10, {M_H-8}
    v_cmp_gt_u32 vcc, 8, v1
    v_cndmask_b32 v9, v10, v9, vcc
    v_lshlrev_b32 v10, 4, v4
    v_add_u32 v10, {M_H}, v10
    v_lshl_add_u32 v11, v7, 1, v4
    s_lshl_b32 s12, s3, 5
    v_add_u32 v11, s12, v11
    v_cmp_gt_u32 vcc, 112, v11
    v_cmp_gt_u32 s[12:13], 32, v1
    s_and_b64 vcc, vcc, s[12:13]
    v_lshlrev_b32 v11, 9, v11
    v_mov_b32 v12, {OOB}
    v_cndmask_b32 v11, v12, v11, vcc
    s_mov_b32 s14, 0x05040100
    s_mov_b32 s15, 0x07060302
    s_mov_b32 s9, 0
    s_waitcnt vmcnt(0)
    s_barrier
    """)
    stamp(3)
    E("""
    buffer_load_dwordx4 v[112:115], v5, s[60:63], s10 offen sc1
    buffer_load_dwordx4 v[116:119], v5, s[60:63], s10 offen offset:1024 sc1
    """)
    for s in range(14):
        E(f"ds_read_b64_tr_b16 v[{40+4*s}:{41+4*s}], v6 offset:{4096*s}")
        E(f"ds_read_b64_tr_b16 v[{42+4*s}:{43+4*s}], v6 offset:{4096*s+512}")
    E("s_cmp_ge_u32 s3, 4\n s_cbranch_scc1 L_fchk0")
    for s in range(2):
        for m in range(4):
            for ip in range(4):
                a = 128 + 32*s + 4*(2*ip) + m; b = 128 + 32*s + 4*(2*ip+1) + m
                E(f"v_perm_b32 v{192+32*s+4*(2*m)+ip}, v{b}, v{a}, s14")
                E(f"v_perm_b32 v{192+32*s+4*(2*m+1)+ip}, v{b}, v{a}, s15")
    E(f"""
    L_fchk0:
    s_waitcnt vmcnt(0)
    v_cmp_ne_u32 vcc, s69, v113
    v_cmp_ne_u32 s[12:13], s69, v115
    v_cmp_ne_u32 s[14:15], s69, v117
    s_or_b64 s[12:13], s[12:13], vcc
    v_cmp_ne_u32 vcc, s69, v119
    s_or_b64 s[12:13], s[12:13], s[14:15]
    s_add_u32 s9, s9, 1
    s_or_b64 s[12:13], s[12:13], vcc
    s_cbranch_scc0 L_fok
    s_cmp_gt_u32 s9, {SPIN}
    s_cbranch_scc1 L_fok
    buffer_load_dwordx4 v[112:115], v5, s[60:63], s10 offen sc1
    buffer_load_dwordx4 v[116:119], v5, s[60:63], s10 offen offset:1024 sc1
    s_branch L_fchk0
    L_fok:
    v_max3_u32 v12, v112, v114, v116
    v_max_u32 v12, v12, v118
    """)
    dpp_reduce("v_max_u32", ["v12"])
    E(f"""
    v_readlane_b32 s12, v12, 63
    s_andn2_b32 s12, 0x7ff, s12
    s_lshr_b32 s13, s12, 5
    s_and_b32 s12, s12, 3
    s_lshl2_add_u32 s12, s13, s12
    s_lshl_b32 s12, s12, 10
    s_add_u32 s12, s12, 0x{WS_BEST:x}
    s_mov_b32 s13, 0x42000000
    """)
    stamp(4)
    E(f"""
    L_xchk:
    buffer_load_dwordx4 v[12:15], v8, s[60:63], s12 offen sc1
    s_add_u32 s9, s9, 1
    s_waitcnt vmcnt(0)
    v_xor_b32 v12, s72, v12
    v_xor_b32 v13, s73, v13
    v_xor_b32 v14, s74, v14
    v_xor_b32 v15, s75, v15
    v_or3_b32 v16, v12, v13, v14
    v_or_b32 v16, v16, v15
    v_and_b32 v16, v3, v16
    v_cmp_ne_u32 vcc, 0, v16
    s_cmp_gt_u32 s9, {SPIN}
    s_cbranch_scc1 L_xok
    s_cbranch_vccnz L_xchk
    L_xok:
    """)
    for i in range(4):
        E(f"v_fma_mix_f32 v{16+2*i}, v{12+i}, s13, 0 op_sel_hi:[1,0,0]")
        E(f"v_fma_mix_f32 v{17+2*i}, v{12+i}, s13, 0 op_sel:[1,0,0] op_sel_hi:[1,0,0]")
    for i in range(4): E(f"v_cvt_pk_bf16_f32 v{12+i}, v{16+2*i}, v{17+2*i}")
    E("v_mov_b32 v16, 0\n v_mov_b32 v17, 0\n s_waitcnt lgkmcnt(0)")
    def pick(s): return f"v_add_f32_dpp v{16+(s&1)}, v{128+4*s+(s&3)}, v{16+(s&1)} quad_perm:[0,1,2,3] row_mask:0x{1<<(s>>2):x} bank_mask:0xf"
    for s in range(14):
        E(f"v_mfma_f32_16x16x32_bf16 v[{128+4*s}:{131+4*s}], v[12:15], v[{40+4*s}:{43+4*s}], 0")
        if s >= 5: E(pick(s-5))
    for s in range(9, 14): E(pick(s))
    E(f"""
    v_add_f32 v16, v16, v17
    v_mov_b32 v17, v16
    v_permlane16_swap_b32 v16, v17
    v_add_f32 v16, v16, v17
    v_mov_b32 v17, v16
    v_permlane32_swap_b32 v16, v17
    v_add_f32 v16, v16, v17
    v_cvt_pk_bf16_f32 v16, v16, v16
    v_and_b32 v16, 0xffff0000, v16
    v_mul_f32 v17, 0x{LOG2E | 0x80000000:x}, v16
    v_exp_f32 v17, v17
    v_add_f32 v17, 1.0, v17
    v_rcp_f32 v17, v17
    v_mul_f32 v17, v17, v16
    v_cvt_pk_bf16_f32 v17, v17, v17
    v_and_b32 v17, 0xffff0000, v17
    v_mul_f32_dpp v17, v16, v17 row_ror:8 {DPPF}
    v_cvt_pk_bf16_f32 v17, v17, v17
    ds_write_b16 v9, v17
    s_cmp_ge_u32 s3, 4
    s_waitcnt lgkmcnt(0)
    s_barrier
    s_cbranch_scc1 L_fin
    ds_read_b128 v[12:15], v10
    ds_read_b128 v[16:19], v10 offset:64
    s_lshl_b32 s12, s6, 4
    s_add_u32 s12, s12, 0x{WS_PART:x}
    s_lshr_b32 s13, s68, 8
    s_lshr_b32 s14, s68, 16
    s_lshr_b32 s15, s68, 24
    v_mov_b32 v20, 0xff
    s_waitcnt lgkmcnt(1)
    """)
    for e in range(8): E(f"v_mfma_f32_16x16x32_bf16 v[{128+4*e}:{131+4*e}], v[12:15], v[{192+4*e}:{195+4*e}], 0")
    E("s_waitcnt lgkmcnt(0)")
    for e in (0,4,1,5,2,6,3,7): E(f"v_mfma_f32_16x16x32_bf16 v[{128+4*e}:{131+4*e}], v[16:19], v[{224+4*e}:{227+4*e}], v[{128+4*e}:{131+4*e}]")
    for m in range(4): E(f"v_mov_b32_dpp v{128+4*m}, v{144+4*m} quad_perm:[0,1,2,3] row_mask:0x2 bank_mask:0xf")
    for m, sr in enumerate(("s68","s13","s14","s15")): E(f"v_bfi_b32 v{24+m}, v20, {sr}, v{128+4*m}")
    E("buffer_store_dwordx4 v[24:27], v11, s[60:63], s12 offen sc1")
    stamp(5)
    E.label("L_fin"); E.flush()
    if opt.get("span"):
        E(f"""
        s_waitcnt vmcnt(0)
        """)
        if opt.get("wb"):
            E("""
            L_spanw1:
            s_memrealtime s[86:87]
            s_waitcnt lgkmcnt(0)
            s_sub_u32 s86, s86, s84
            s_cmp_lt_u32 s86, 1200
            s_cbranch_scc1 L_spanw1
            s_cmp_lg_u32 s3, 1
            s_cbranch_scc1 L_spanw
            buffer_wbl2 sc1
            s_waitcnt vmcnt(0)
            """)
        if opt.get("gmin"):
            E("""
            s_not_b32 s86, s84
            v_mov_b32 v5, s86
            v_mov_b32 v4, 0
            s_mov_b64 exec, 1
            s_cmp_lg_u32 s3, 1
            s_cbranch_scc1 L_spanw0
            global_atomic_umax v4, v5, s[46:47]
            s_waitcnt vmcnt(0)
            L_spanw0:
            s_memrealtime s[86:87]
            s_waitcnt lgkmcnt(0)
            s_sub_u32 s86, s86, s84
            s_cmp_lt_u32 s86, 2000
            s_cbranch_scc1 L_spanw0
            global_load_dword v5, v4, s[46:47] sc1
            s_waitcnt vmcnt(0)
            v_readfirstlane_b32 s84, v5
            s_not_b32 s84, s84
            """)
        E(f"""
        L_spanw:
        s_memrealtime s[86:87]
        s_waitcnt lgkmcnt(0)
        s_sub_u32 s86, s86, s84
        s_cmp_lt_u32 s86, {opt["span"]}
        s_cbranch_scc1 L_spanw
        """)
    if stamps:
        E("s_waitcnt vmcnt(0)")
        stamp(6)
        E(f"""
        s_waitcnt lgkmcnt(0)
        s_lshl_b32 s8, s2, 3
        s_add_u32 s8, s8, s3
        s_lshl_b32 s8, s8, 6
        s_add_u32 s8, s8, 0x{WS_DBG:x}
        v_mov_b32 v4, 0
        """)
        for i in range(7):
            E(f"v_mov_b32 v5, s{84+2*i}\n buffer_store_dword v5, v4, s[60:63], s8 offen offset:{4*i}")
        E("v_mov_b32 v5, s9\n buffer_store_dword v5, v4, s[60:63], s8 offen offset:28")
    E.label("L_end")
    E("s_endpgm")
    E.label("L_codeend")
    E.raw('.section .rodata,"a"'); E.raw(".p2align 6"); E.raw(f".amdhsa_kernel {KN}")
    for l in ("next_free_vgpr 256","next_free_sgpr 102","accum_offset 256","group_segment_fixed_size 0","kernarg_size 136",
              "user_sgpr_count 2","user_sgpr_kernarg_segment_ptr 1","system_sgpr_workgroup_id_x 1","ieee_mode 0"):
        E.raw("  .amdhsa_" + l)
    E.raw(".end_amdhsa_kernel")
    return E.text(), E

if __name__ == "__main__":
    out = sys.argv[1]
    opt = {}
    for a in sys.argv[2:]:
        k, _, v = a.partition("=")
        opt[k] = True if not v else (int(v) if v.lstrip("-").isdigit() else v)
    hdr = open("recurrent_scan__ssm_conv_s4__moe_arch_mod__prompt.s.ref").read().split("; Override launch")[0]
    t, E = gen(opt)
    open(out, "w").write(hdr + t)
    print("wrote", out, "lines", len(E.lines), "nops", E.nops)
```

```python
import sys, os
sys.path.insert(0, os.path.dirname(__file__))
from asm import Emit
KN = "recurrent_scan__ssm_conv_s4__moe_arch_mod__prompt_kernel"

WS_CAND = 0x1000; WS_PART = 0x2000; WS_BEST = 0x10000; WS_U = 0x50000; WS_DBG = 0x400000; WS_SZ = 0x1000000
TABW = 15232; ROW = 272
YB = 0; UB = 121856; USTR = 4640; KB = 140416; KSTR = 4160; LNB = KB; LNS = 960
MISC = 157056; M_KEYS = MISC; M_EF = MISC+32; M_SC = MISC+48; M_BEST = MISC+64; M_H = MISC+128
LDS_SZ = MISC + 256
XB = 1835008
OOB = "0x80000000"
TAGM = 0x40074007
LOG2E = 0x3fb8aa3b; INV2PI = 0x3e22f983; INV448 = 0x3b124925; EPS = 0x3727c5ac
SPIN = 200000
TILES = {0: [-6, 2, 10, 48, 56], 1: [17, 25, 33, 41]}
DPPF = "row_mask:0xf bank_mask:0xf"


def gen(opt):
    stamps = opt.get("stamps", False)
    dump = opt.get("dump", None)
    E = Emit()
    nst = [0]
    def stamp(i, ffn=False):
        if opt.get("span") and opt.get("at") == i and bool(opt.get("atffn")) == ffn: E("s_memrealtime s[84:85]")
        if stamps: E(f"{'s_memtime' if stamps == 'cyc' else 's_memrealtime'} s[{84+2*i}:{85+2*i}]")
    def dpp_reduce(op, regs, fill=()):
        fill = list(fill)
        steps = ["row_shr:1 "+DPPF, "row_shr:2 "+DPPF, "row_shr:4 "+DPPF, "row_shr:8 "+DPPF,
                 "row_bcast:15 row_mask:0xa bank_mask:0xf", "row_bcast:31 row_mask:0xc bank_mask:0xf"]
        per = 3 - len(regs)
        for s in steps:
            for r in regs: E(f"{op}_dpp {r}, {r}, {r} {s}")
            for _ in range(per):
                if fill: E(fill.pop(0))
        for f in fill: E(f)

    E.raw(f"; @launch grid=(256,1,1) block=(512,1,1) lds={LDS_SZ}")
    E.raw('.amdgcn_target "amdgcn-amd-amdhsa--gfx950"')
    E.raw(".text"); E.raw(f".globl {KN}"); E.raw(".p2align 8"); E.raw(f".type {KN},@function"); E.raw(f"{KN}:")
    stamp(0)
    if opt.get("span"): E("s_memrealtime s[84:85]")
    E("""
    s_cmp_ge_u32 s2, 256
    s_cbranch_scc1 L_end
    s_load_dwordx16 s[16:31], s[0:1], 0
    s_load_dwordx16 s[32:47], s[0:1], 64
    s_load_dwordx2 s[48:49], s[0:1], 128
    s_getpc_b64 s[50:51]
    L_pc:
    v_lshrrev_b32 v4, 6, v0
    v_and_b32 v1, 63, v0
    v_readfirstlane_b32 s3, v4
    v_lshlrev_b32 v12, 4, v1
    v_cmp_gt_u32 vcc, 56, v1
    v_mov_b32 v13, %s
    v_cndmask_b32 v13, v13, v12, vcc
    v_cndmask_b32 v14, 0, 1.0, vcc
    v_mov_b32 v3, 0x%x
    s_and_b32 s8, s2, 7
    s_lshr_b32 s9, s2, 3
    s_mul_i32 s10, s8, 28
    s_add_u32 s10, s10, s9
    s_lshr_b32 s4, s10, 1
    s_and_b32 s5, s10, 1
    s_add_i32 s6, s2, -224
    s_lshr_b32 s10, s2, 2
    s_lshl_b32 s10, s10, 5
    s_and_b32 s11, s2, 3
    s_add_u32 s10, s10, s11
    s_lshl2_add_u32 s7, s3, s10
    s_mul_i32 s12, s7, 896
    s_mov_b32 s54, %d
    s_mov_b32 s55, 0x20000
    s_mov_b32 s58, 896
    s_mov_b32 s59, 0x20000
    s_mov_b32 s62, 0x%x
    s_mov_b32 s63, 0x20000
    s_mov_b32 s66, %d
    s_mov_b32 s67, 0x20000
    s_waitcnt lgkmcnt(0)
    s_mov_b32 s52, s16
    s_mov_b32 s53, s17
    s_mov_b32 s56, s36
    s_mov_b32 s57, s37
    buffer_load_dwordx4 v[4:7], v13, s[52:55], s12 offen
    buffer_load_dwordx4 v[8:11], v12, s[56:59], 0 offen
    s_load_dwordx4 s[68:71], s[48:49], 0
    s_mov_b32 s60, s48
    s_mov_b32 s61, s49
    s_mov_b32 s64, s44
    s_mov_b32 s65, s45
    s_cmp_ge_u32 s2, 224
    s_cbranch_scc1 L_pro_ffn
    """ % (OOB, TAGM, XB, WS_SZ, XB))
    E("""
    s_and_b32 s8, s3, 3
    s_lshl2_add_u32 s8, s4, s8
    s_lshl_b32 s8, s8, 9
    s_lshr_b32 s10, s3, 2
    s_lshl_b32 s10, s10, 8
    s_add_u32 s8, s8, s10
    v_lshl_add_u32 v15, v1, 2, s8
    s_lshl_b32 s11, s4, 3
    global_load_dword v38, v15, s[22:23]
    global_load_dword v39, v15, s[24:25]
    global_load_dword v40, v15, s[26:27]
    global_load_dword v41, v15, s[28:29]
    global_load_dword v36, v15, s[18:19]
    global_load_dword v37, v15, s[20:21]
    s_load_dwordx2 s[76:77], s[30:31], s11
    s_load_dwordx2 s[78:79], s[32:33], s11
    s_cmp_ge_u32 s3, 3
    s_cbranch_scc1 L_pf_code
    """)
    E("""
    s_and_b32 s8, s2, 7
    v_lshrrev_b32 v16, 4, v1
    v_lshl_add_u32 v16, v16, 3, s8
    v_min_u32 v16, 27, v16
    v_and_b32 v17, 15, v1
    s_lshl_b32 s10, s9, 4
    v_add_u32 v17, s10, v17
    s_cmp_eq_u32 s3, 2
    s_movk_i32 s12, 128
    s_cselect_b32 s12, s12, 3584
    s_mov_b32 s13, 57344
    s_cselect_b32 s13, s13, 128
    s_cselect_b32 s14, s42, s38
    s_cselect_b32 s15, s43, s39
    s_cmp_eq_u32 s3, 1
    s_cselect_b32 s14, s40, s14
    s_cselect_b32 s15, s41, s15
    v_mul_u32_u24 v17, s12, v17
    v_mad_u32_u24 v17, v16, s13, v17
    global_load_dword v2, v17, s[14:15]
    s_branch L_ln
    L_pf_code:
    s_add_i32 s8, s3, -3
    s_lshl_b32 s8, s8, 12
    v_lshl_add_u32 v16, v1, 6, s8
    v_min_u32 v16, L_codeend-L_pc-4, v16
    global_load_dword v2, v16, s[50:51]
    s_branch L_ln
    L_pro_ffn:
    s_cmp_ge_u32 s2, 252
    s_cbranch_scc0 L_pro_ffn2
    s_waitcnt vmcnt(0)
    s_branch L_ln
    L_pro_ffn2:
    """)
    E("""
    s_mov_b32 s80, s38
    s_mov_b32 s81, s39
    s_mov_b32 s82, 1605632
    s_mov_b32 s83, 0x20000
    v_lshrrev_b32 v16, 3, v1
    v_mul_u32_u24 v16, 3584, v16
    v_bfe_u32 v17, v1, 4, 1
    v_and_b32 v18, 7, v1
    v_xor_b32 v17, v17, v18
    s_and_b32 s8, s3, 1
    s_lshl_b32 s8, s8, 1
    v_xor_b32 v17, s8, v17
    v_lshl_add_u32 v36, v17, 4, v16
    s_mul_i32 s9, s3, 28672
    s_lshl_b32 s10, s6, 7
    s_add_u32 s9, s9, s10
    s_lshl_b32 s10, s3, 10
    s_mov_b32 s11, s9
    """)
    for i in range(7):
        E(f"s_add_u32 m0, s10, {i*8192}")
        E(f"buffer_load_dwordx4 v36, s[80:83], s11 offen lds")
        if i < 6: E(f"s_add_u32 s11, s11, {8*28672}")
    E.label("L_ln"); E.flush()
    E(f"""
    s_mov_b32 s12, 0x3f803f80
    v_min_u32 v15, 56, v1
    s_mul_i32 s13, s3, {LNS}
    s_add_u32 s13, s13, {LNB}
    v_lshl_add_u32 v15, v15, 4, s13
    s_waitcnt vmcnt(7)
    """)
    stamp(1)
    E("""
    v_dot2_f32_bf16 v12, v4, s12, 0
    v_dot2_f32_bf16 v12, v5, s12, v12
    v_dot2_f32_bf16 v12, v6, s12, v12
    v_dot2_f32_bf16 v12, v7, s12, v12
    v_lshlrev_b32 v16, 16, v4
    v_and_b32 v17, 0xffff0000, v4
    v_lshlrev_b32 v18, 16, v5
    """)
    dpp_reduce("v_add_f32", ["v12"], ["v_and_b32 v19, 0xffff0000, v5", "v_lshlrev_b32 v20, 16, v6", "v_and_b32 v21, 0xffff0000, v6",
                                      "v_lshlrev_b32 v22, 16, v7", "v_and_b32 v23, 0xffff0000, v7"])
    E(f"""
    v_mul_f32 v12, 0x{INV448:x}, v12
    v_cvt_pk_bf16_f32 v13, v12, v12
    v_and_b32 v13, 0xffff0000, v13
    v_readlane_b32 s13, v13, 63
    v_sub_f32 v12, v12, v13
    v_mul_f32 v12, v12, v12
    v_mul_f32 v14, s13, v14
    """)
    for i in range(8): E(f"v_sub_f32 v{16+i}, v{16+i}, v14")
    for i in range(4): E(f"v_cvt_pk_bf16_f32 v{24+i}, v{16+2*i}, v{17+2*i}")
    E("v_dot2_f32_bf16 v13, v24, v24, 0"); E("v_dot2_f32_bf16 v14, v24, v8, 0")
    for i in range(1,4):
        E(f"v_dot2_f32_bf16 v13, v{24+i}, v{24+i}, v13"); E(f"v_dot2_f32_bf16 v14, v{24+i}, v{8+i}, v14")
    E("v_lshlrev_b32 v16, 16, v24"); E("v_and_b32 v17, 0xffff0000, v24")
    dpp_reduce("v_add_f32", ["v13","v14"], ["v_lshlrev_b32 v18, 16, v25", "v_and_b32 v19, 0xffff0000, v25", "v_lshlrev_b32 v20, 16, v26",
                                            "v_and_b32 v21, 0xffff0000, v26", "v_lshlrev_b32 v22, 16, v27", "v_and_b32 v23, 0xffff0000, v27"])
    E(f"""
    v_mul_f32 v13, 0x{INV448:x}, v13
    v_sub_f32 v13, v13, v12
    v_max_f32 v13, 0, v13
    v_cvt_pk_bf16_f32 v13, v13, v13
    v_and_b32 v13, 0xffff0000, v13
    v_add_f32 v13, 0x{EPS:x}, v13
    v_cvt_pk_bf16_f32 v13, v13, v13
    v_and_b32 v13, 0xffff0000, v13
    v_sqrt_f32 v13, v13
    v_cvt_pk_bf16_f32 v13, v13, v13
    v_and_b32 v13, 0xffff0000, v13
    v_rcp_f32 v13, v13
    v_mul_f32 v14, v14, v13
    v_mul_f32 v13, 0x3d000000, v13
    v_cvt_pk_bf16_f32 v14, v14, v14
    v_readlane_b32 s13, v13, 63
    v_readlane_b32 s14, v14, 63
    s_sub_u32 s12, 2047, s7
    v_mov_b32 v13, s13
    s_ashr_i32 s15, s14, 31
    s_or_b32 s15, s15, 0x80000000
    s_xor_b32 s14, s14, s15
    s_and_b32 s14, s14, 0xffff0000
    s_or_b32 s14, s14, s12
    """)
    for i in range(8): E(f"v_mul_f32 v{16+i}, v{16+i}, v13")
    for i in range(4): E(f"v_cvt_pkrtz_f16_f32 v{28+i}, v{16+2*i}, v{17+2*i}")
    E(f"""
    ds_write_b128 v15, v[28:31]
    s_lshl_b32 s12, s3, 2
    v_mov_b32 v12, s12
    v_mov_b32 v14, s14
    ds_write_b32 v12, v14 offset:{M_KEYS & 0xffff}
    """.replace(f"v_mov_b32 v12, s12", f"s_add_u32 s12, s12, {M_KEYS & ~0xffff}\n v_mov_b32 v12, s12"))
    E(f"""
    v_bfe_u32 v16, v1, 2, 2
    v_mul_u32_u24 v16, {LNS}, v16
    v_and_b32 v17, 3, v1
    v_lshl_add_u32 v16, v17, 3, v16
    v_lshrrev_b32 v18, 4, v0
    v_lshl_add_u32 v16, v18, 5, v16
    v_add_u32 v16, {LNB}, v16
    v_lshrrev_b32 v18, 2, v0
    v_lshlrev_b32 v18, 14, v18
    v_lshl_add_u32 v18, v17, 4, v18
    s_lshl_b32 s12, s2, 6
    s_add_u32 s12, s12, 0x{WS_U:x}
    s_waitcnt lgkmcnt(0)
    s_add_u32 s68, s68, 1
    s_add_u32 s69, s69, 1
    s_add_u32 s70, s70, 1
    s_add_u32 s71, s71, 1
    s_cmp_eq_u32 s3, 7
    s_barrier
    s_cbranch_scc1 L_pub7
    ds_read_b64_tr_b16 v[32:33], v16
    ds_read_b64_tr_b16 v[34:35], v16 offset:{4*LNS}
    s_branch L_pub
    L_pub7:
    v_mov_b32 v16, {M_KEYS}
    ds_read_b128 v[20:23], v16
    ds_read_b128 v[24:27], v16 offset:16
    v_mov_b32 v29, s69
    s_lshl_b32 s13, s2, 3
    s_add_u32 s13, s13, 0x{WS_CAND:x}
    v_cmp_eq_u32 vcc, 0, v1
    v_mov_b32 v17, {OOB}
    v_cndmask_b32 v19, v17, v1, vcc
    v_cmp_gt_u32 vcc, 56, v1
    v_lshlrev_b32 v18, 4, v1
    v_cndmask_b32 v18, v17, v18, vcc
    s_lshl_b32 s12, s2, 10
    s_add_u32 s12, s12, 0x{WS_BEST:x}
    s_waitcnt lgkmcnt(0)
    v_max3_u32 v20, v20, v21, v22
    v_max3_u32 v24, v24, v25, v26
    v_max3_u32 v28, v20, v23, v24
    v_max_u32 v28, v28, v27
    buffer_store_dwordx2 v[28:29], v19, s[60:63], s13 offen sc1
    v_not_b32 v16, v28
    v_bfe_u32 v16, v16, 2, 3
    v_mul_u32_u24 v16, {LNS}, v16
    v_lshl_add_u32 v16, v1, 4, v16
    v_add_u32 v16, {LNB}, v16
    ds_read_b128 v[32:35], v16
    L_pub:
    s_and_b32 s72, s68, 0x{TAGM:x}
    s_and_b32 s73, s69, 0x{TAGM:x}
    s_and_b32 s74, s70, 0x{TAGM:x}
    s_and_b32 s75, s71, 0x{TAGM:x}
    s_waitcnt lgkmcnt(0)
    """)
    for i in range(4): E(f"v_add_u32 v{32+i}, 0x40004, v{32+i}")
    for i in range(4): E(f"v_bfi_b32 v{32+i}, v3, s{68+i}, v{32+i}")
    E("buffer_store_dwordx4 v[32:35], v18, s[60:63], s12 offen sc1")
    stamp(2)
    E("""
    s_cmp_ge_u32 s2, 224
    s_cbranch_scc1 L_ffn
    """)
    if opt.get("prio", True):
        E("s_cmp_lt_u32 s3, 4\n s_cbranch_scc1 L_noprio\n s_setprio 1\n L_noprio:")
    E(f"""
    s_mul_i32 s8, s3, {TABW}
    s_mov_b32 m0, s8
    s_bitcmp1_b32 s3, 1
    s_cselect_b32 s9, s77, s76
    s_lshl_b32 s10, s9, 16
    s_and_b32 s9, s9, 0xffff0000
    s_bitcmp1_b32 s3, 0
    s_cselect_b32 s9, s9, s10
    v_mov_b32 v4, 0x{LOG2E:x}
    v_mul_f32 v5, s9, v4
    v_exp_f32 v5, v5
    v_mov_b32 v6, 0x3c00
    ds_write_addtid_b32 v6
    v_cvt_pk_bf16_f32 v5, v5, v5
    v_and_b32 v57, 0xffff0000, v5
    v_mul_f32 v6, v57, v4
    v_mul_f32 v7, 0x{INV2PI:x}, v57
    v_and_b32 v58, 31, v1
    v_mul_u32_u24 v58, {ROW}, v58
    v_lshrrev_b32 v4, 5, v1
    v_lshl_add_u32 v58, v4, 4, v58
    v_add_u32 v58, s8, v58
    s_waitcnt vmcnt(2)
    s_cmp_lt_u32 s3, 4
    s_cbranch_scc1 L_noxpf
    """)
    E("""
    s_cmp_eq_u32 s5, 0
    s_movk_i32 s80, -192
    s_cselect_b32 s80, s80, 544
    s_movk_i32 s81, 1536
    s_cselect_b32 s81, s81, 1312
    s_cselect_b32 s82, 0, 576
    s_movk_i32 s83, 1568
    s_cselect_b32 s83, s83, 0
    s_movk_i32 s10, 1792
    s_cselect_b32 s10, s10, 2048
    v_and_b32 v4, 255, v0
    s_movk_i32 s9, 896
    v_add_u32 v8, s80, v4
    v_mul_i32_i24 v52, s9, v8
    v_add_u32 v53, 229376, v52
    v_add_u32 v54, 458752, v52
    v_cmp_le_i32 vcc, s82, v8
    v_mov_b32 v9, %s
    v_cndmask_b32 v52, v9, v52, vcc
    v_add_u32 v8, s81, v4
    v_mul_u32_u24 v55, s9, v8
    v_cmp_le_i32 vcc, s83, v8
    v_add_u32 v8, s10, v4
    v_cndmask_b32 v55, v9, v55, vcc
    v_mul_u32_u24 v56, s9, v8
    s_lshl_b32 s11, s4, 3
    """ % OOB)
    for i in range(5): E(f"buffer_load_dwordx2 v[{42+2*i}:{43+2*i}], v{52+i}, s[52:55], s11 offen")
    E.label("L_noxpf");
    for t in range(2):
        for k, r in enumerate((38,39,40,41)):
            E(f"v_lshlrev_b32 v{8+k}, 16, v{r}" if t == 0 else f"v_and_b32 v{8+k}, 0xffff0000, v{r}")
        E(f"""
        v_mul_f32 v12, v11, v9
        v_mul_f32 v13, v11, v8
        v_fma_f32 v{60+2*t}, v10, v8, -v12
        v_fma_f32 v{61+2*t}, -v10, v9, -v13
        """)
    E("v_max3_f32 v12, |v60|, |v61|, |v62|"); E("v_max_f32 v12, |v63|, v12".replace("v_max_f32","v_max_f32_e64"))
    E("v_lshlrev_b32 v8, 16, v36"); E("v_lshlrev_b32 v9, 16, v37")
    dpp_reduce("v_max_u32", ["v12"], ["v_and_b32 v36, 0xffff0000, v36", "v_and_b32 v37, 0xffff0000, v37",
               "v_mul_f32 v8, v8, v6", "v_mul_f32 v9, v9, v7", "v_mul_f32 v36, v36, v6", "v_mul_f32 v37, v37, v7",
               "v_rndne_f32 v10, v9", "v_rndne_f32 v11, v37", "v_sub_f32 v9, v9, v10", "v_sub_f32 v37, v37, v11"])
    E(f"""
    v_exp_f32 v8, v8
    v_readlane_b32 s9, v12, 63
    v_cos_f32 v10, v9
    v_sin_f32 v11, v9
    s_lshr_b32 s9, s9, 23
    s_max_u32 s9, s9, 8
    s_sub_u32 s10, 258, s9
    s_lshl_b32 s10, s10, 23
    v_mov_b32 v12, s10
    v_mov_b32 v59, s9
    v_mul_f32 v60, v60, v12
    v_mul_f32 v61, v61, v12
    v_mul_f32 v62, v62, v12
    v_mul_f32 v63, v63, v12
    """)
    def wr(reg, row): return f"ds_write_addtid_b32 v{reg} offset:{row*ROW}"
    def cp(d, p, q, conj):
        ng = "neg_hi:[0,1,0]" if conj else "neg_lo:[0,1,0]"
        return (f"v_pk_mul_f16 v{d}, v{p}, v{q} op_sel:[0,0] op_sel_hi:[1,0]",
                f"v_pk_fma_f16 v{d}, v{p}, v{q}, v{d} op_sel:[1,1,0] op_sel_hi:[0,1,1] {ng}")
    FR = lambda j: 192 + j
    def task(t):
        L = []
        if t == 1:
            L += ["v_exp_f32 v8, v36", "v_cos_f32 v10, v37", "v_sin_f32 v11, v37"]
        L += ["v_mul_f32 v14, v8, v10", "v_mul_f32 v15, v8, v11"]
        cur = (14,15); nxt = (16,17)
        h16 = {1: 20, 2: 21, 4: 22, 8: FR(1), 16: FR(2), 32: FR(4), 64: FR(8), 128: FR(16)}
        for k in (1,2,4,8,16,32,64,128):
            L += [f"v_mul_f32 v18, v{cur[1]}, v{cur[1]}", f"v_mul_f32_e64 v{nxt[1]}, v{cur[0]}, v{cur[1]} mul:2",
                  f"v_fma_f32 v{nxt[0]}, v{cur[0]}, v{cur[0]}, -v18", f"v_cvt_pk_f16_f32 v{h16[k]}, v{cur[0]}, v{cur[1]}"]
            if k >= 8: L.append(wr(h16[k], k//8))
            cur, nxt = nxt, cur
        e256 = cur
        mark_chain_end = len(L)
        js = [j for j in range(3,32) if j & (j-1)]
        order = [3,5,6,9,7,10,11,12,13,14,15] + list(range(17,32))
        assert sorted(order) == js
        def fdst(j): return FR(j) if j <= 16 else 212 + (j & 3)
        for a in range(0, 26, 2):
            j1, j2 = order[a], order[a+1]
            f = lambda j: cp(fdst(j), FR(1 << (j.bit_length()-1)), FR(j - (1 << (j.bit_length()-1))), False)
            p1, p2 = f(j1), f(j2)
            L += [p1[0], p2[0], p1[1], p2[1], wr(fdst(j1), j1), wr(fdst(j2), j2)]
        L.append("FREADS")
        xs = {0:0, 1:8, 2:12, 3:16, 4:20, 5:18, 6:22, 7:19, 8:23}
        xh = {k: 216+k for k in range(9)}
        xc = (60+2*t, 61+2*t); xa = (24,25); xb = (26,27)
        chain = []
        er, ei = e256
        chain.append([f"v_cvt_pk_f16_f32 v{xh[0]}, v{xc[0]}, v{xc[1]}", wr(xh[0], 32+xs[0])])
        src = xc
        for k in range(1,9):
            dst = xa if k & 1 else xb
            c = [f"v_mul_f32 v18, v{src[0]}, v{er}", f"v_mul_f32 v19, v{src[1]}, v{er}",
                 f"v_fma_f32 v{dst[0]}, v{src[1]}, v{ei}, v18", f"v_fma_f32 v{dst[1]}, -v{src[0]}, v{ei}, v19",
                 f"v_cvt_pk_f16_f32 v{xh[k]}, v{dst[0]}, v{dst[1]}", wr(xh[k], 32+xs[k])]
            if k in (2,4): c.append(wr(xh[k], 32+xs[k]+1))
            chain.append(c); src = dst
        for c in chain: L += c
        g = {n: 226+i for i, n in enumerate((1,2,3,4,5,6,7,258,260,262,516,772))}
        slot = {1:1,2:2,3:3,4:4,5:5,6:6,7:7,258:9,260:10,262:11,516:14,772:17}
        defs = [(1,xh[0],20),(2,xh[0],21),(4,xh[0],22),(258,xh[1],21),(3,g[2],20),(260,xh[1],22),(5,g[4],20),(6,g[4],21),
                (516,xh[2],22),(262,g[260],21),(7,g[6],20),(772,xh[3],22)]
        for a in range(0, 12, 2):
            (n1,p1,q1),(n2,p2,q2) = defs[a], defs[a+1]
            c1, c2 = cp(g[n1],p1,q1,True), cp(g[n2],p2,q2,True)
            L += [c1[0], c2[0], c1[1], c2[1], wr(g[n1], 32+slot[n1]), wr(g[n2], 32+slot[n2])]
        L.append("GREADS")
        return L
    def freads():
        for k in range(8): E(f"ds_read_b128 v[{128+4*k}:{131+4*k}], v58 offset:{32*k}")
    def greads():
        for k in range(8): E(f"ds_read_b128 v[{160+4*k}:{163+4*k}], v58 offset:{32*ROW+32*k}")
    def kmfma(k, first): E(f"v_mfma_f32_32x32x16_f16 v[64:79], v[{160+4*k}:{163+4*k}], v[{128+4*k}:{131+4*k}], {'0' if first else 'v[64:79]'}")
    for s in task(0):
        if s == "FREADS": freads()
        elif s == "GREADS": greads()
        else: E(s)
    T1 = task(1)
    upos = opt.get("upos", "FREADS")
    n = 0; km = 0
    for s in T1:
        if s == "FREADS" or s == "GREADS":
            if s == upos:
                E(f"""
                s_cmp_lt_u32 s3, 4
                s_cbranch_scc1 L_nouload
                v_and_b32 v4, 255, v0
                v_lshlrev_b32 v4, 4, v4
                s_lshl_b32 s12, s4, 14
                s_add_u32 s12, s12, 0x{WS_U:x}
                s_add_u32 s13, s12, 4096
                s_add_u32 s14, s12, 8192
                s_add_u32 s15, s12, 12288
                v_lshlrev_b32 v5, 4, v1
                s_mov_b32 s10, 0x{WS_CAND:x}
                buffer_load_dwordx4 v[96:99], v4, s[60:63], s12 offen sc1
                buffer_load_dwordx4 v[100:103], v4, s[60:63], s13 offen sc1
                buffer_load_dwordx4 v[104:107], v4, s[60:63], s14 offen sc1
                buffer_load_dwordx4 v[108:111], v4, s[60:63], s15 offen sc1
                s_cmp_lt_u32 s3, 7
                s_cbranch_scc1 L_nouload
                buffer_load_dwordx4 v[112:115], v5, s[60:63], s10 offen sc1
                buffer_load_dwordx4 v[116:119], v5, s[60:63], s10 offen offset:1024 sc1
                L_nouload:
                """)
            freads() if s == "FREADS" else greads()
            continue
        if n == 17: E("s_waitcnt lgkmcnt(0)")
        if n >= 17 and (n - 17) % 6 == 0 and km < 8:
            kmfma(km, km == 0); km += 1
        E(s); n += 1
    assert km == 8
    for k in range(8):
        E(f"s_waitcnt lgkmcnt({7-k})"); kmfma(k, False)
    stamp(3)
    E("s_cmp_lt_u32 s3, 4\n s_cbranch_scc1 L_conv")
    E(f"""
    s_and_b32 s8, s3, 3
    s_lshl_b32 s9, s8, 2
    s_add_u32 s9, s9, {M_EF}
    v_mov_b32 v6, s9
    ds_write_b32 v6, v59
    v_and_b32 v7, 3, v0
    v_mul_u32_u24 v7, {USTR}, v7
    v_bfe_u32 v8, v0, 2, 6
    v_lshl_add_u32 v7, v8, 4, v7
    v_add_u32 v7, {UB+512}, v7
    s_mul_i32 s9, s8, {USTR}
    s_add_u32 s9, s9, {UB}
    v_lshl_add_u32 v8, v1, 3, s9
    v_mov_b32 v10, 0
    v_mov_b32 v11, 0
    ds_write_b64 v8, v[10:11]
    s_mov_b32 s9, 0
    """)
    for k in range(12): E(f"ds_write_addtid_b32 v{64+k} offset:{256*k}")
    E("s_waitcnt lgkmcnt(0)\n s_barrier")
    E.label("L_uchk")
    E("s_waitcnt vmcnt(0)")
    for k in range(16): E(f"v_xor_b32 v{96+k}, s{72+(k&3)}, v{96+k}")
    E("v_or3_b32 v10, v96, v97, v98")
    for k in range(3, 15, 2): E(f"v_or3_b32 v10, v10, v{96+k}, v{97+k}")
    E(f"""
    v_or_b32 v10, v10, v111
    v_and_b32 v10, v3, v10
    v_cmp_ne_u32 vcc, 0, v10
    s_add_u32 s9, s9, 1
    s_cbranch_vccz L_uok
    s_cmp_gt_u32 s9, {SPIN}
    s_cbranch_scc1 L_uok
    buffer_load_dwordx4 v[96:99], v4, s[60:63], s12 offen sc1
    buffer_load_dwordx4 v[100:103], v4, s[60:63], s13 offen sc1
    buffer_load_dwordx4 v[104:107], v4, s[60:63], s14 offen sc1
    buffer_load_dwordx4 v[108:111], v4, s[60:63], s15 offen sc1
    s_branch L_uchk
    L_uok:
    """)
    for k in range(4): E(f"ds_write_b128 v7, v[{96+4*k}:{99+4*k}] offset:{1024*k}")
    E(f"""
    s_cmp_lt_u32 s3, 7
    s_cbranch_scc1 L_cok2
    L_cchk:
    v_cmp_ne_u32 vcc, s69, v113
    v_cmp_ne_u32 s[12:13], s69, v115
    v_cmp_ne_u32 s[14:15], s69, v117
    s_or_b64 s[12:13], s[12:13], vcc
    v_cmp_ne_u32 vcc, s69, v119
    s_or_b64 s[12:13], s[12:13], s[14:15]
    s_add_u32 s9, s9, 1
    s_or_b64 s[12:13], s[12:13], vcc
    s_cbranch_scc0 L_cok
    s_cmp_gt_u32 s9, {SPIN}
    s_cbranch_scc1 L_cok
    buffer_load_dwordx4 v[112:115], v5, s[60:63], s10 offen sc1
    buffer_load_dwordx4 v[116:119], v5, s[60:63], s10 offen offset:1024 sc1
    s_waitcnt vmcnt(0)
    s_branch L_cchk
    L_cok:
    v_max3_u32 v10, v112, v114, v116
    v_max_u32 v10, v10, v118
    v_mov_b32 v11, {M_BEST}
    """)
    dpp_reduce("v_max_u32", ["v10"])
    E(f"""
    v_readlane_b32 s12, v10, 63
    s_cmp_lg_u32 s2, 0
    v_mov_b32 v10, s12
    ds_write_b32 v11, v10
    s_cbranch_scc1 L_cok2
    v_mov_b32 v12, s68
    v_mov_b32 v13, s69
    v_mov_b32 v14, s70
    v_mov_b32 v15, s71
    v_mov_b32 v11, 0
    buffer_store_dwordx4 v[12:15], v11, s[60:63], 0 offen
    L_cok2:
    """)
    E(f"""
    s_lshl_b32 s12, s78, 16
    s_and_b32 s13, s78, 0xffff0000
    s_lshl_b32 s14, s79, 16
    s_and_b32 s15, s79, 0xffff0000
    v_mov_b32 v25, 0x44800000
    v_mul_f32 v20, s12, v25
    v_mul_f32 v21, s13, v25
    v_mul_f32 v22, s14, v25
    v_mul_f32 v23, s15, v25
    v_and_b32 v24, 3, v1
    v_lshlrev_b32 v24, 4, v24
    v_bfe_u32 v25, v1, 2, 3
    v_lshl_add_u32 v24, v25, 1, v24
    v_bfe_u32 v25, v0, 5, 3
    v_lshl_add_u32 v24, v25, 6, v24
    s_lshl_b32 s12, s80, 1
    s_add_u32 s12, s12, {UB+512}
    s_lshl_b32 s13, s81, 1
    s_add_u32 s13, s13, {UB+512}
    v_add_u32 v26, s13, v24
    v_add_u32 v24, s12, v24
    s_lshl_b32 s12, s8, 8
    s_add_u32 m0, s12, {YB}
    v_mov_b32 v27, {M_SC}
    s_mov_b32 s15, 0xc238aa3b
    s_waitcnt lgkmcnt(0)
    s_barrier
    s_setprio 0
    ds_read_b128 v[16:19], v27
    ds_read_b32 v28, v27 offset:16
    """)
    stamp(4)
    def prep(i):
        a, off = ("v24", 512*i) if i < 3 else ("v26", 512*(i-3))
        for c in range(4): E(f"ds_read_u16 v{64+c}, {a} offset:{off + c*USTR}")
        E(f"v_lshlrev_b32 v68, 16, v{42+2*i}\n v_and_b32 v69, 0xffff0000, v{42+2*i}\n v_lshlrev_b32 v70, 16, v{43+2*i}\n v_and_b32 v71, 0xffff0000, v{43+2*i}")
        E("s_waitcnt lgkmcnt(0)")
        if i == 0:
            E(f"""
            v_not_b32 v28, v28
            v_and_b32 v28, 0x7ff, v28
            v_mul_u32_u24 v28, 896, v28
            v_mov_b32 v29, {OOB}
            """)
        for c in range(4): E(f"v_fma_mix_f32 v{72+c}, v{64+c}, s15, 0 op_sel_hi:[1,0,0]")
        for c in range(4): E(f"v_exp_f32 v{72+c}, v{72+c}")
        for c in range(4): E(f"v_add_f32 v{72+c}, 1.0, v{72+c}")
        for c in range(4): E(f"v_rcp_f32 v{72+c}, v{72+c}")
        E(f"v_cmp_eq_u32 vcc, v28, v{52+i}")
        for c in range(4): E(f"v_fma_mix_f32 v{72+c}, v{64+c}, v{72+c}, 0 op_sel_hi:[1,0,0]")
        for c in range(4): E(f"v_fma_mix_f32 v{64+c}, v{64+c}, v{20+c}, 0 op_sel_hi:[1,0,0]")
        E(f"v_cndmask_b32 v{52+i}, v{52+i}, v29, vcc")
        for c in range(4): E(f"v_fmac_f32 v{68+c}, v{64+c}, v{72+c}")
        for c in range(4): E(f"v_mul_f32 v{72+c}, v{72+c}, v{16+c}")
    def finish(i):
        for c in range(4): E(f"ds_read_addtid_b32 v{76+c} offset:{4096*i + 1024*c}")
        for c in range(4):
            E(f"s_waitcnt lgkmcnt({3-c})"); E(f"v_fmac_f32 v{68+c}, v{76+c}, v{72+c}")
        E(f"v_cvt_pk_bf16_f32 v{42+2*i}, v68, v69\n v_cvt_pk_bf16_f32 v{43+2*i}, v70, v71")
        E(f"buffer_store_dwordx2 v[{42+2*i}:{43+2*i}], v{52+i}, s[64:67], s11 offen")
    for i in range(5):
        if i == 4: E("s_cmp_eq_u32 s5, 1\n s_cbranch_scc1 L_fin")
        prep(i); E("s_barrier"); finish(i)
    E("s_branch L_fin")
    E.label("L_conv"); E.flush()
    E(f"""
    s_add_u32 m0, s8, {4*TABW}
    s_lshl_b32 s9, s3, 2
    s_add_u32 s9, s9, {M_EF}
    v_mov_b32 v6, s9
    s_mul_i32 s10, s3, {KSTR}
    s_add_u32 s10, s10, {KB}
    v_lshl_add_u32 v7, v1, 4, s10
    v_and_b32 v8, 31, v1
    v_lshrrev_b32 v9, 5, v1
    v_lshlrev_b32 v10, 4, v8
    v_lshl_add_u32 v10, v9, 3, v10
    v_add_u32 v10, s10, v10
    v_lshl_add_u32 v11, v1, 1, s10
    v_and_b32 v12, 1, v1
    v_sub_u32 v12, 0, v12
    v_lshlrev_b32 v13, 4, v8
    v_lshlrev_b32 v9, 6, v9
    v_sub_u32 v13, v13, v9
    s_mul_i32 s12, s3, {USTR}
    s_add_u32 s12, s12, {UB+64}
    v_add_u32 v4, s12, v13
    v_lshrrev_b32 v13, 4, v1
    v_lshlrev_b32 v13, 2, v13
    v_and_b32 v14, 3, v1
    v_add_u32 v13, v13, v14
    v_bfe_u32 v14, v1, 2, 2
    v_sub_u32 v13, v13, v14
    v_lshlrev_b32 v13, 3, v13
    s_add_u32 s12, s10, 32
    v_add_u32 v5, s12, v13
    s_barrier
    ds_read_b32 v13, v6
    """)
    for k in range(12): E(f"ds_read_addtid_b32 v{80+k} offset:{256*k}")
    E(f"""
    v_mul_f32 v57, 0x44800000, v57
    s_waitcnt lgkmcnt(12)
    v_max_u32 v14, v13, v59
    v_sub_u32 v15, v59, v14
    v_sub_u32 v16, v13, v14
    v_ldexp_f32 v15, 1.0, v15
    v_ldexp_f32 v16, 1.0, v16
    v_add_u32 v14, -131, v14
    v_ldexp_f32 v57, v57, v14
    ds_write_b32 v6, v57 offset:16
    """)
    for k in range(12): E(f"v_mul_f32 v{64+k}, v{64+k}, v15")
    E("s_waitcnt lgkmcnt(1)")
    for k in range(12): E(f"v_fmac_f32 v{64+k}, v{80+k}, v16")
    K = lambda k: f"v{64+k}"
    E(f"""
    v_cvt_pk_f16_f32 v20, v64, v65
    v_cvt_pk_f16_f32 v21, v66, v67
    ds_write_b64 v10, v[20:21] offset:64
    v_mov_b32_dpp v80, v72 wave_rol:1 {DPPF}
    v_mov_b32_dpp v81, v74 wave_rol:1 {DPPF}
    v_mov_b32_dpp v82, v75 wave_rol:1 {DPPF}
    v_mov_b32_dpp v83, v75 wave_rol:1 {DPPF}
    v_mov_b32_dpp v80, v68 wave_shl:1 {DPPF}
    v_mov_b32_dpp v81, v72 wave_shl:1 {DPPF}
    v_mov_b32_dpp v82, v74 wave_shl:1 {DPPF}
    v_cvt_pk_f16_f32 v24, v68, v68
    v_mov_b32_dpp v71, v80 quad_perm:[0,1,2,3] row_mask:0xc bank_mask:0xf
    v_cvt_pk_f16_f32 v25, v69, v70
    v_cvt_pk_f16_f32 v26, v70, v70
    v_cvt_pk_f16_f32 v27, v71, v80
    ds_write_b128 v7, v[24:27] offset:{64+512}
    v_bfi_b32 v84, v12, v81, v72
    v_cvt_pk_f16_f32 v30, v84, v81
    v_cvt_pk_f16_f32 v85, v73, v73
    v_cvt_pk_f16_f32 v28, v72, v72
    v_cvt_pk_f16_f32 v29, v72, v73
    v_cvt_pk_f16_f32 v31, v81, v81
    v_mov_b32_dpp v30, v85 quad_perm:[0,1,2,3] row_mask:0x3 bank_mask:0xf
    ds_write_b128 v7, v[28:31] offset:{64+512*3}
    v_bfi_b32 v84, v12, v82, v74
    v_cvt_pk_f16_f32 v88, v74, v74
    v_cvt_pk_f16_f32 v90, v84, v82
    v_cvt_pk_f16_f32 v91, v82, v82
    v_mov_b32 v89, v88
    ds_write_b128 v7, v[88:91] offset:{64+512*5}
    v_bfi_b32 v84, v12, v83, v75
    v_cvt_pk_f16_f32 v92, v75, v75
    v_cvt_pk_f16_f32 v94, v84, v83
    v_cvt_pk_f16_f32 v95, v83, v83
    v_mov_b32 v93, v92
    v_mov_b32 v20, 0
    s_mov_b32 exec_hi, 0
    ds_write_b128 v7, v[92:95] offset:{64+512*7}
    ds_write_b16 v11, v20
    s_mov_b32 exec_hi, -1
    s_lshl_b32 s12, s3, 10
    s_add_u32 m0, s12, {YB}
    v_cmp_le_u32 vcc, 63, v1
    v_cndmask_b32 v6, 0, -1, vcc
    v_cmp_le_u32 vcc, 62, v1
    v_cndmask_b32 v7, 0, -1, vcc
    v_cmp_le_u32 vcc, 61, v1
    v_cndmask_b32 v8, 0, -1, vcc
    """)
    NPRE = 4
    def kread(b):
        return [f"ds_read_b64_tr_b16 v[{128+4*b}:{129+4*b}], v5 offset:{128*b+32}", f"ds_read_b64_tr_b16 v[{130+4*b}:{131+4*b}], v5 offset:{128*b}"]
    for b in range(NPRE):
        for s in kread(b): E(s)
    E("s_waitcnt lgkmcnt(%d)" % (2*NPRE))
    E("s_cmp_eq_u32 s5, 1\n s_barrier")
    stamp(4)
    if dump == "K":
        E(f"""
        s_lshl2_add_u32 s12, s4, s3
        s_mul_i32 s12, s12, 8192
        s_lshl_b32 s13, s5, 12
        s_add_u32 s12, s12, s13
        s_add_u32 s12, s12, 0x{WS_DBG+0x100000:x}
        v_lshl_add_u32 v20, v1, 4, s10
        v_lshlrev_b32 v21, 4, v1
        """)
        for k in range(4):
            E(f"ds_read_b128 v[24:27], v20 offset:{64+1024*k}\n s_waitcnt lgkmcnt(0)\n buffer_store_dwordx4 v[24:27], v21, s[60:63], s12 offen offset:{1024*k}\n s_waitcnt vmcnt(0)")
        E("s_cmp_eq_u32 s5, 1")
    E("s_cbranch_scc1 L_convB")
    def reduce_ops(ti, first, gs):
        A = 32 + 16*ti; P = 32 + 16*(ti-1)
        L = []
        for g in gs:
            for c in (1,2,3):
                cur = A + 4*g + c
                prev = (A + 4*(g-1) + c) if g > 0 else (P + 12 + c)
                dst = 12 + 3*g + (c-1)
                if g == 0 and first: L.append(f"v_mov_b32 v{dst}, v{cur}")
                else: L.append(f"v_bfi_b32 v{dst}, v{5+c}, v{prev}, v{cur}")
        for g in gs: L.append(f"v_add_f32_dpp v{12+3*g+1}, v{12+3*g+2}, v{12+3*g+1} wave_ror:1 {DPPF}")
        for g in gs: L.append(f"v_add_f32_dpp v{12+3*g}, v{12+3*g+1}, v{12+3*g} wave_ror:1 {DPPF}")
        for g in gs: L.append(f"v_add_f32_dpp v{24+g}, v{12+3*g}, v{A+4*g} wave_ror:1 {DPPF}")
        for g in gs: L.append(f"ds_write_addtid_b32 v{24+g} offset:{4096*ti+256*g}")
        return L
    def conv_stream(ty, barpos):
        tiles = TILES[ty]
        jobs = []
        for ti, I0 in enumerate(tiles):
            nb = (I0 + 8 + 1)//2
            for b in range(nb): jobs.append((ti, I0, b, nb))
        D = 3
        q = ["k%d" % b for b in range(NPRE) for _ in range(2)]
        kl = NPRE
        kmax = max(j[3] for j in jobs)
        def issue(text, tag): E(text); q.append(tag)
        def waitfor(tags):
            last = -1
            for i, t in enumerate(q):
                if t in tags: last = i
            if last >= 0:
                n = len(q) - 1 - last
                E(f"s_waitcnt lgkmcnt({min(n,15)})")
                del q[:len(q)-min(n,15)]
        def uread(n):
            ti, I0, b, nb = jobs[n]
            r = 112 + 4*(n % 4)
            issue(f"ds_read_b128 v[{r}:{r+3}], v4 offset:{448 + (I0-2*b)*64}", "u%d" % n)
        for n in range(D): uread(n)
        side = []
        nbar = 0; done_w = set()
        for n, (ti, I0, b, nb) in enumerate(jobs):
            if n + D < len(jobs):
                bb = jobs[n+D][2]
                uread(n + D)
            need_k = max(jobs[m][2] for m in range(n, min(n+D+1, len(jobs))))
            if kl < kmax and (kl <= need_k or True):
                for s in kread(kl): issue(s, "k%d" % kl)
                kl += 1
            waitfor({"u%d" % n, "k%d" % b})
            A = 32 + 16*ti; r = 112 + 4*(n % 4)
            E(f"v_mfma_f32_32x32x16_f16 v[{A}:{A+15}], v[{r}:{r+3}], v[{128+4*b}:{131+4*b}], {'0' if b == 0 else f'v[{A}:{A+15}]'}")
            if b == nb - 1:
                first = ti == 0 or tiles[ti-1] + 8 != I0
                gs = [3] if I0 < 0 else [0,1,2,3]
                side += [(n + 3, ti, s) for s in reduce_ops(ti, first, gs)]
            cnt = 0
            while side and side[0][0] <= n and cnt < (3 if kl < kmax else 5):
                _, tj, s = side.pop(0); cnt += 1
                if s.startswith("ds_"): issue(s, "y%d" % tj)
                else: E(s)
                if not any(x[1] == tj for x in side): done_w.add(tj)
            if nbar < len(tiles)-1 and n >= barpos[nbar] and nbar in done_w:
                waitfor({"y%d" % nbar}); E("s_barrier"); nbar += 1
            if n == opt.get("idxpos", 6): fix_early(ty)
            if n == len(jobs) - opt.get("pollpos", 10): fix_poll(ty)
        for _, tj, s in side:
            E(s)
        assert nbar == len(tiles) - 1, (nbar, ty)
        E("s_waitcnt lgkmcnt(0)\n s_barrier")
    def fix_early(ty):
        pass
    def fix_poll(ty):
        pass
    conv_stream(0, [12, 20, 28, 0])
    E("s_branch L_fix")
    E.label("L_convB"); E.flush()
    conv_stream(1, [0, 0, 0])
    E.label("L_fix"); E.flush()
    stamp(5)
    E(f"""
    s_cmp_lg_u32 s3, 0
    s_cbranch_scc1 L_fin
    v_mov_b32 v4, {M_SC}
    ds_read_b32 v5, v4 offset:16
    v_and_b32 v9, 3, v1
    v_lshlrev_b32 v10, 2, v1
    s_lshl_b32 s8, s4, 9
    s_add_u32 s8, s8, 0x{WS_PART:x}
    buffer_load_dword v12, v10, s[60:63], s8 offen sc1
    buffer_load_dword v13, v10, s[60:63], s8 offen offset:256 sc1
    s_waitcnt lgkmcnt(0)
    v_readfirstlane_b32 s9, v5
    s_andn2_b32 s10, 0x7ff, s9
    s_cmp_lt_u32 s10, 576
    s_cselect_b32 s11, 0, 1
    s_movk_i32 s12, 192
    s_cselect_b32 s12, s12, -544
    s_cmp_ge_u32 s10, 1568
    s_cselect_b32 s11, 0, s11
    s_cselect_b32 s12, -768, s12
    s_cmp_lg_u32 s11, s5
    s_cbranch_scc1 L_fin
    s_add_i32 s12, s12, s10
    s_lshr_b32 s13, s12, 8
    s_lshl_b32 s13, s13, 12
    s_and_b32 s12, s12, 255
    s_lshl2_add_u32 s12, s12, s13
    s_add_u32 s12, s12, {YB}
    v_lshl_add_u32 v14, v9, 10, s12
    ds_read_b32 v14, v14
    s_lshr_b32 s12, s10, 5
    s_lshl_b32 s12, s12, 6
    s_and_b32 s13, s10, 3
    s_lshl_b32 s13, s13, 4
    s_add_u32 s12, s12, s13
    s_bfe_u32 s13, s10, 0x30002
    s_lshl1_add_u32 s12, s13, s12
    s_add_u32 s12, s12, {UB+512}
    v_mul_u32_u24 v15, {USTR}, v9
    v_add_u32 v15, s12, v15
    ds_read_u16 v15, v15
    v_lshl_add_u32 v16, v9, 2, v4
    ds_read_b32 v16, v16
    s_mul_i32 s12, s10, 896
    s_lshl_b32 s13, s4, 3
    s_add_u32 s12, s12, s13
    v_lshlrev_b32 v17, 1, v1
    v_cmp_gt_u32 vcc, 4, v1
    v_mov_b32 v18, {OOB}
    v_cndmask_b32 v17, v18, v17, vcc
    buffer_load_ushort v18, v17, s[52:55], s12 offen
    v_lshlrev_b32 v19, 3, v9
    v_lshrrev_b32 v19, v19, s68
    v_and_b32 v19, 0xff, v19
    v_cmp_gt_u32 vcc, 48, v1
    v_cndmask_b32 v20, 0, -1, vcc
    v_mov_b32 v21, s78
    v_mov_b32 v22, s79
    v_cmp_gt_u32 vcc, 2, v9
    v_cndmask_b32 v21, v22, v21, vcc
    v_not_b32 v22, v1
    v_and_b32 v22, 1, v22
    v_lshlrev_b32 v22, 4, v22
    v_lshlrev_b32 v21, v22, v21
    v_and_b32 v21, 0xffff0000, v21
    s_and_b32 s13, s9, 0xffff0000
    s_not_b32 s14, s13
    s_ashr_i32 s14, s14, 31
    s_and_b32 s14, s14, 0x7fff0000
    s_or_b32 s14, s14, 0x80000000
    s_xor_b32 s13, s13, s14
    v_mov_b32 v22, 0x{LOG2E | 0x80000000:x}
    v_mul_f32 v23, s13, v22
    v_exp_f32 v23, v23
    v_add_f32 v23, 1.0, v23
    v_rcp_f32 v23, v23
    v_cvt_pk_bf16_f32 v23, v23, v23
    v_and_b32 v23, 0xffff0000, v23
    s_waitcnt lgkmcnt(0)
    v_cvt_f32_f16 v15, v15
    v_mul_f32 v15, 0x42000000, v15
    v_mul_f32 v16, 0x3d000000, v16
    v_mul_f32 v14, v14, v16
    v_fmac_f32 v14, v15, v21
    s_mov_b32 s13, 0
    L_pchk:
    s_waitcnt vmcnt(0)
    v_xor_b32 v12, v12, v19
    v_xor_b32 v13, v13, v19
    v_and_b32 v13, v13, v20
    v_or_b32 v24, v12, v13
    v_and_b32 v24, 0xff, v24
    v_cmp_ne_u32 vcc, 0, v24
    s_add_u32 s13, s13, 1
    s_cbranch_vccz L_pok
    s_cmp_gt_u32 s13, {SPIN}
    s_cbranch_scc1 L_pok
    buffer_load_dword v12, v10, s[60:63], s8 offen sc1
    buffer_load_dword v13, v10, s[60:63], s8 offen offset:256 sc1
    s_branch L_pchk
    L_pok:
    v_add_f32 v12, v12, v13
    v_add_f32_dpp v12, v12, v12 row_ror:4 {DPPF}
    v_add_f32_dpp v12, v12, v12 row_ror:8 {DPPF}
    v_mov_b32 v13, v12
    v_permlane16_swap_b32 v12, v13
    v_add_f32 v12, v12, v13
    v_mov_b32 v13, v12
    v_permlane32_swap_b32 v12, v13
    v_add_f32 v12, v12, v13
    v_cvt_pk_bf16_f32 v12, v12, v12
    v_and_b32 v12, 0xffff0000, v12
    v_mul_f32 v12, v12, v23
    v_cvt_pk_bf16_f32 v12, v12, v12
    v_and_b32 v12, 0xffff0000, v12
    v_add_f32 v12, v12, v15
    v_cvt_pk_bf16_f32 v12, v12, v12
    v_and_b32 v12, 0xffff0000, v12
    v_mul_f32 v13, v12, v22
    v_exp_f32 v13, v13
    v_lshlrev_b32 v18, 16, v18
    v_add_f32 v13, 1.0, v13
    v_rcp_f32 v13, v13
    v_mul_f32 v12, v12, v13
    v_fmac_f32 v18, v12, v14
    v_cvt_pk_bf16_f32 v18, v18, v18
    buffer_store_short v18, v17, s[64:67], s12 offen
    s_branch L_fin
    """)
    E.label("L_ffn"); E.flush()
    E("""
    s_cmp_ge_u32 s2, 252
    s_cbranch_scc1 L_fin
    s_mov_b32 s80, s40
    s_mov_b32 s81, s41
    s_mov_b32 s82, 1605632
    s_mov_b32 s83, 0x20000
    v_xor_b32 v36, 64, v36
    s_mov_b32 s11, s9
    """)
    for i in range(7):
        E(f"s_add_u32 m0, s10, {57344 + i*8192}")
        E(f"buffer_load_dwordx4 v36, s[80:83], s11 offen lds")
        if i < 6: E(f"s_add_u32 s11, s11, {8*28672}")
    E("""
    s_cmp_ge_u32 s3, 4
    s_cbranch_scc1 L_nowd
    s_mov_b32 s76, s42
    s_mov_b32 s77, s43
    s_mov_b32 s78, 1605632
    s_mov_b32 s79, 0x20000
    v_lshrrev_b32 v4, 4, v1
    v_mul_u32_u24 v4, 7168, v4
    v_and_b32 v5, 15, v1
    v_lshl_add_u32 v4, v5, 4, v4
    s_mul_i32 s12, s6, 57344
    s_lshl_b32 s13, s3, 8
    s_add_u32 s12, s12, s13
    """)
    for s in range(2):
        for i in range(8):
            r = 128 + 32*s + 4*i
            if i % 4 == 0 and (s, i) != (0, 0): E(f"s_add_u32 s12, s12, {3584 if i == 4 else 28672-3584}")
            E(f"buffer_load_dwordx4 v[{r}:{r+3}], v4, s[76:79], s12 offen offset:{896*(i%4)}")
    E.label("L_nowd")
    E(f"""
    v_lshrrev_b32 v4, 4, v1
    v_bfe_u32 v5, v1, 2, 2
    v_lshl_add_u32 v6, v4, 3, v5
    v_lshlrev_b32 v6, 7, v6
    v_bfe_u32 v7, v1, 1, 1
    v_mov_b32 v8, 57344
    v_mad_u32_u24 v6, v7, v8, v6
    v_bfe_u32 v8, v1, 3, 2
    v_lshl_add_u32 v8, v7, 2, v8
    v_xor_b32 v8, s3, v8
    v_lshl_add_u32 v6, v8, 4, v6
    v_and_b32 v8, 1, v1
    v_lshl_add_u32 v6, v8, 3, v6
    v_and_b32 v7, 15, v1
    v_min_u32 v8, 13, v7
    v_lshl_add_u32 v8, v8, 2, v4
    v_lshlrev_b32 v8, 4, v8
    v_lshlrev_b32 v5, 4, v1
    s_mov_b32 s10, 0x{WS_CAND:x}
    s_lshl_b32 s12, s3, 4
    s_add_u32 s12, s12, {M_H}
    v_lshl_add_u32 v9, v1, 1, s12
    v_mov_b32 v10, {M_H-8}
    v_cmp_gt_u32 vcc, 8, v1
    v_cndmask_b32 v9, v10, v9, vcc
    v_lshlrev_b32 v10, 4, v4
    v_add_u32 v10, {M_H}, v10
    v_lshl_add_u32 v11, v7, 1, v4
    s_lshl_b32 s12, s3, 5
    v_add_u32 v11, s12, v11
    v_cmp_gt_u32 vcc, 112, v11
    v_cmp_gt_u32 s[12:13], 32, v1
    s_and_b64 vcc, vcc, s[12:13]
    v_lshlrev_b32 v11, 9, v11
    v_mov_b32 v12, {OOB}
    v_cndmask_b32 v11, v12, v11, vcc
    s_mov_b32 s14, 0x05040100
    s_mov_b32 s15, 0x07060302
    s_mov_b32 s9, 0
    s_waitcnt vmcnt(0)
    s_barrier
    """)
    stamp(3, True)
    E("""
    buffer_load_dwordx4 v[112:115], v5, s[60:63], s10 offen sc1
    buffer_load_dwordx4 v[116:119], v5, s[60:63], s10 offen offset:1024 sc1
    """)
    for s in range(14):
        E(f"ds_read_b64_tr_b16 v[{40+4*s}:{41+4*s}], v6 offset:{4096*s}")
        E(f"ds_read_b64_tr_b16 v[{42+4*s}:{43+4*s}], v6 offset:{4096*s+512}")
    E("s_cmp_ge_u32 s3, 4\n s_cbranch_scc1 L_fchk0")
    for s in range(2):
        for m in range(4):
            for ip in range(4):
                a = 128 + 32*s + 4*(2*ip) + m; b = 128 + 32*s + 4*(2*ip+1) + m
                E(f"v_perm_b32 v{192+32*s+4*(2*m)+ip}, v{b}, v{a}, s14")
                E(f"v_perm_b32 v{192+32*s+4*(2*m+1)+ip}, v{b}, v{a}, s15")
    E(f"""
    L_fchk0:
    s_waitcnt vmcnt(0)
    v_cmp_ne_u32 vcc, s69, v113
    v_cmp_ne_u32 s[12:13], s69, v115
    v_cmp_ne_u32 s[14:15], s69, v117
    s_or_b64 s[12:13], s[12:13], vcc
    v_cmp_ne_u32 vcc, s69, v119
    s_or_b64 s[12:13], s[12:13], s[14:15]
    s_add_u32 s9, s9, 1
    s_or_b64 s[12:13], s[12:13], vcc
    s_cbranch_scc0 L_fok
    s_cmp_gt_u32 s9, {SPIN}
    s_cbranch_scc1 L_fok
    buffer_load_dwordx4 v[112:115], v5, s[60:63], s10 offen sc1
    buffer_load_dwordx4 v[116:119], v5, s[60:63], s10 offen offset:1024 sc1
    s_branch L_fchk0
    L_fok:
    v_max3_u32 v12, v112, v114, v116
    v_max_u32 v12, v12, v118
    """)
    dpp_reduce("v_max_u32", ["v12"])
    E(f"""
    v_readlane_b32 s12, v12, 63
    s_andn2_b32 s12, 0x7ff, s12
    s_lshr_b32 s13, s12, 5
    s_and_b32 s12, s12, 3
    s_lshl2_add_u32 s12, s13, s12
    s_lshl_b32 s12, s12, 10
    s_add_u32 s12, s12, 0x{WS_BEST:x}
    s_mov_b32 s13, 0x42000000
    """)
    stamp(4, True)
    E(f"""
    L_xchk:
    buffer_load_dwordx4 v[12:15], v8, s[60:63], s12 offen sc1
    s_add_u32 s9, s9, 1
    s_waitcnt vmcnt(0)
    v_xor_b32 v12, s72, v12
    v_xor_b32 v13, s73, v13
    v_xor_b32 v14, s74, v14
    v_xor_b32 v15, s75, v15
    v_or3_b32 v16, v12, v13, v14
    v_or_b32 v16, v16, v15
    v_and_b32 v16, v3, v16
    v_cmp_ne_u32 vcc, 0, v16
    s_cmp_gt_u32 s9, {SPIN}
    s_cbranch_scc1 L_xok
    s_cbranch_vccnz L_xchk
    L_xok:
    """)
    for i in range(4):
        E(f"v_fma_mix_f32 v{16+2*i}, v{12+i}, s13, 0 op_sel_hi:[1,0,0]")
        E(f"v_fma_mix_f32 v{17+2*i}, v{12+i}, s13, 0 op_sel:[1,0,0] op_sel_hi:[1,0,0]")
    for i in range(4): E(f"v_cvt_pk_bf16_f32 v{12+i}, v{16+2*i}, v{17+2*i}")
    E("v_mov_b32 v16, 0\n v_mov_b32 v17, 0\n s_waitcnt lgkmcnt(0)")
    def pick(s): return f"v_add_f32_dpp v{16+(s&1)}, v{128+4*s+(s&3)}, v{16+(s&1)} quad_perm:[0,1,2,3] row_mask:0x{1<<(s>>2):x} bank_mask:0xf"
    for s in range(14):
        E(f"v_mfma_f32_16x16x32_bf16 v[{128+4*s}:{131+4*s}], v[12:15], v[{40+4*s}:{43+4*s}], 0")
        if s >= 5: E(pick(s-5))
    for s in range(9, 14): E(pick(s))
    E(f"""
    v_add_f32 v16, v16, v17
    v_mov_b32 v17, v16
    v_permlane16_swap_b32 v16, v17
    v_add_f32 v16, v16, v17
    v_mov_b32 v17, v16
    v_permlane32_swap_b32 v16, v17
    v_add_f32 v16, v16, v17
    v_cvt_pk_bf16_f32 v16, v16, v16
    v_and_b32 v16, 0xffff0000, v16
    v_mul_f32 v17, 0x{LOG2E | 0x80000000:x}, v16
    v_exp_f32 v17, v17
    v_add_f32 v17, 1.0, v17
    v_rcp_f32 v17, v17
    v_mul_f32 v17, v17, v16
    v_cvt_pk_bf16_f32 v17, v17, v17
    v_and_b32 v17, 0xffff0000, v17
    v_mul_f32_dpp v17, v16, v17 row_ror:8 {DPPF}
    v_cvt_pk_bf16_f32 v17, v17, v17
    ds_write_b16 v9, v17
    s_cmp_ge_u32 s3, 4
    s_waitcnt lgkmcnt(0)
    s_barrier
    s_cbranch_scc1 L_fin
    ds_read_b128 v[12:15], v10
    ds_read_b128 v[16:19], v10 offset:64
    s_lshl_b32 s12, s6, 4
    s_add_u32 s12, s12, 0x{WS_PART:x}
    s_lshr_b32 s13, s68, 8
    s_lshr_b32 s14, s68, 16
    s_lshr_b32 s15, s68, 24
    v_mov_b32 v20, 0xff
    s_waitcnt lgkmcnt(1)
    """)
    for e in range(8): E(f"v_mfma_f32_16x16x32_bf16 v[{128+4*e}:{131+4*e}], v[12:15], v[{192+4*e}:{195+4*e}], 0")
    E("s_waitcnt lgkmcnt(0)")
    for e in (0,4,1,5,2,6,3,7): E(f"v_mfma_f32_16x16x32_bf16 v[{128+4*e}:{131+4*e}], v[16:19], v[{224+4*e}:{227+4*e}], v[{128+4*e}:{131+4*e}]")
    for m in range(4): E(f"v_mov_b32_dpp v{128+4*m}, v{144+4*m} quad_perm:[0,1,2,3] row_mask:0x2 bank_mask:0xf")
    for m, sr in enumerate(("s68","s13","s14","s15")): E(f"v_bfi_b32 v{24+m}, v20, {sr}, v{128+4*m}")
    E("buffer_store_dwordx4 v[24:27], v11, s[60:63], s12 offen sc1")
    stamp(5, True)
    E.label("L_fin"); E.flush()
    if opt.get("span"):
        E(f"""
        s_waitcnt vmcnt(0)
        """)
        if opt.get("wb"):
            E("""
            L_spanw1:
            s_memrealtime s[86:87]
            s_waitcnt lgkmcnt(0)
            s_sub_u32 s86, s86, s84
            s_cmp_lt_u32 s86, 1200
            s_cbranch_scc1 L_spanw1
            s_cmp_lg_u32 s3, 1
            s_cbranch_scc1 L_spanw
            buffer_wbl2 sc1
            s_waitcnt vmcnt(0)
            """)
        if opt.get("gmin"):
            E("""
            s_not_b32 s86, s84
            v_mov_b32 v5, s86
            v_mov_b32 v4, 0
            s_mov_b64 exec, 1
            s_cmp_lg_u32 s3, 1
            s_cbranch_scc1 L_spanw0
            global_atomic_umax v4, v5, s[46:47]
            s_waitcnt vmcnt(0)
            L_spanw0:
            s_memrealtime s[86:87]
            s_waitcnt lgkmcnt(0)
            s_sub_u32 s86, s86, s84
            s_cmp_lt_u32 s86, 2000
            s_cbranch_scc1 L_spanw0
            global_load_dword v5, v4, s[46:47] sc1
            s_waitcnt vmcnt(0)
            v_readfirstlane_b32 s84, v5
            s_not_b32 s84, s84
            """)
        E(f"""
        L_spanw:
        s_memrealtime s[86:87]
        s_waitcnt lgkmcnt(0)
        s_sub_u32 s86, s86, s84
        s_cmp_lt_u32 s86, {opt["span"]}
        s_cbranch_scc1 L_spanw
        """)
    if stamps:
        E("s_waitcnt vmcnt(0)")
        stamp(6)
        E(f"""
        s_waitcnt lgkmcnt(0)
        s_lshl_b32 s8, s2, 3
        s_add_u32 s8, s8, s3
        s_lshl_b32 s8, s8, 6
        s_add_u32 s8, s8, 0x{WS_DBG:x}
        v_mov_b32 v4, 0
        """)
        for i in range(7):
            E(f"v_mov_b32 v5, s{84+2*i}\n buffer_store_dword v5, v4, s[60:63], s8 offen offset:{4*i}")
        E("v_mov_b32 v5, s9\n buffer_store_dword v5, v4, s[60:63], s8 offen offset:28")
    E.label("L_end")
    E("s_endpgm")
    E.label("L_codeend")
    E.raw('.section .rodata,"a"'); E.raw(".p2align 6"); E.raw(f".amdhsa_kernel {KN}")
    for l in ("next_free_vgpr 256","next_free_sgpr 102","accum_offset 256","group_segment_fixed_size 0","kernarg_size 136",
              "user_sgpr_count 2","user_sgpr_kernarg_segment_ptr 1","system_sgpr_workgroup_id_x 1","ieee_mode 0"):
        E.raw("  .amdhsa_" + l)
    E.raw(".end_amdhsa_kernel")
    return E.text(), E

if __name__ == "__main__":
    out = sys.argv[1]
    opt = {}
    for a in sys.argv[2:]:
        k, _, v = a.partition("=")
        opt[k] = True if not v else (int(v) if v.lstrip("-").isdigit() else v)
    hdr = open("recurrent_scan__ssm_conv_s4__moe_arch_mod__prompt.s.ref").read().split("; Override launch")[0]
    t, E = gen(opt)
    open(out, "w").write(hdr + t)
    print("wrote", out, "lines", len(E.lines), "nops", E.nops)
```

```python
import sys, os
sys.path.insert(0, os.path.dirname(__file__))
from asm import Emit
KN = "recurrent_scan__ssm_conv_s4__moe_arch_mod__prompt_kernel"

WS_CAND = 0x1000; WS_PART = 0x2000; WS_BEST = 0x10000; WS_U = 0x50000; WS_Y = 0x240000; WS_DBG = 0x800000; WS_SZ = 0x1000000
YSG = 14336
TABW = 15232; ROW = 272
YB = 0; EB = 16384; ERS = 1808; EPL = 912
UB = 121856; USTR = 4672; KB = UB + 2*USTR; KSTR = 4160; LNB = KB + 2*KSTR; LNS = 960
MISC = LNB + 8*LNS; M_KEYS = MISC; M_MX = MISC+32; M_SC = MISC+64; M_BEST = MISC+72; M_H = MISC+128
LDS_SZ = MISC + 256
XB = 1835008
OOB = "0x80000000"
TAGM = 0x40074007
LOG2E = 0x3fb8aa3b; INV2PI = 0x3e22f983; INV448 = 0x3b124925; EPS = 0x3727c5ac
SPIN = 400000
TILES = {0: [-6, 2, 10, 48, 56], 1: [17, 25, 33, 41]}
ACC = {0: [64, 80, 96, 112, 64], 1: [64, 80, 96, 112]}
DPPF = "row_mask:0xf bank_mask:0xf"
IDQ = "quad_perm:[0,1,2,3]"


def gen(opt):
    stamps = opt.get("stamps", False)
    dump = opt.get("dump", None)
    USG = opt.get("usg", 8192)
    OSTF = opt.get("ostf", "sc1").replace("_", " ").replace("none", "")
    E = Emit()
    def stamp(i, who="c"):
        if opt.get("span") and opt.get("at") == i and who in opt.get("who", "c"): E("s_memrealtime s[84:85]")
        if stamps: E(f"{'s_memtime' if stamps == 'cyc' else 's_memrealtime'} s[{84+2*i}:{85+2*i}]")
    STEPS = ["row_shr:1 "+DPPF, "row_shr:2 "+DPPF, "row_shr:4 "+DPPF, "row_shr:8 "+DPPF,
             "row_bcast:15 row_mask:0xa bank_mask:0xf", "row_bcast:31 row_mask:0xc bank_mask:0xf"]
    def dpp_reduce(op, regs, fill=()):
        fill = list(fill)
        per = 3 - len(regs)
        for s in STEPS:
            for r in regs: E(f"{op}_dpp {r}, {r}, {r} {s}")
            for _ in range(per):
                if fill: E(fill.pop(0))
        for f in fill: E(f)
    def cand_issue():
        E("buffer_load_dwordx4 v[112:115], v11, s[60:63], s10 offen sc1\n buffer_load_dwordx4 v[116:119], v11, s[60:63], s10 offen offset:1024 sc1")
    def cand_check(tag, sleep=0):
        E(f"""
        L_cchk{tag}:
        s_waitcnt vmcnt(0)
        v_cmp_ne_u32 vcc, s69, v113
        v_cmp_ne_u32 s[12:13], s69, v115
        v_cmp_ne_u32 s[14:15], s69, v117
        s_or_b64 s[12:13], s[12:13], vcc
        v_cmp_ne_u32 vcc, s69, v119
        s_or_b64 s[12:13], s[12:13], s[14:15]
        s_add_u32 s9, s9, 1
        s_or_b64 s[12:13], s[12:13], vcc
        s_cbranch_scc0 L_cok{tag}
        s_cmp_gt_u32 s9, {SPIN}
        s_cbranch_scc1 L_cok{tag}
        """)
        if sleep: E(f"s_sleep {sleep}")
        cand_issue()
        E(f"""
        s_branch L_cchk{tag}
        L_cok{tag}:
        v_max3_u32 v112, v112, v114, v116
        v_max_u32 v112, v112, v118
        """)
        dpp_reduce("v_max_u32", ["v112"])
        E("v_readlane_b32 s12, v112, 63")
    def prep():
        E("""
        ds_read_b128 v[40:43], v36
        s_mov_b32 s12, 0x00004480
        s_mov_b32 s13, 0x44800000
        s_mov_b32 s14, 0xc238aa3b
        """)
        for i in range(4):
            E(f"v_lshlrev_b32 v{12+2*i}, 16, v{28+i}\n v_and_b32 v{13+2*i}, 0xffff0000, v{28+i}")
        for i in range(4):
            E(f"v_dot2_f32_bf16 v{44+2*i}, v{32+i}, s12, 0\n v_dot2_f32_bf16 v{45+2*i}, v{32+i}, s13, 0")
        E("s_waitcnt lgkmcnt(0)")
        for i in range(4): E(f"v_and_b32 v{40+i}, 0x{~TAGM & 0xffffffff:x}, v{40+i}")
        sel = lambda e: "op_sel_hi:[1,0,0]" if e % 2 == 0 else "op_sel:[1,0,0] op_sel_hi:[1,0,0]"
        for e in range(8): E(f"v_fma_mix_f32 v{20+e}, v{40+e//2}, s14, 0 {sel(e)}")
        for e in range(8): E(f"v_exp_f32 v{20+e}, v{20+e}")
        for e in range(8): E(f"v_add_f32 v{20+e}, 1.0, v{20+e}")
        for e in range(8): E(f"v_rcp_f32 v{20+e}, v{20+e}")
        for e in range(8): E(f"v_fma_mix_f32 v{44+e}, v{40+e//2}, v{44+e}, 0 {sel(e)}")
        for e in range(8): E(f"v_fma_mix_f32 v{20+e}, v{40+e//2}, v{20+e}, 0 {sel(e)}")
        for e in range(0,8,2): E(f"v_pk_fma_f32 v[{12+e}:{13+e}], v[{44+e}:{45+e}], v[{20+e}:{21+e}], v[{12+e}:{13+e}]")

    E.raw(f"; @launch grid=(256,1,1) block=(512,1,1) lds={LDS_SZ}")
    E.raw('.amdgcn_target "amdgcn-amd-amdhsa--gfx950"')
    E.raw(".text"); E.raw(f".globl {KN}"); E.raw(".p2align 8"); E.raw(f".type {KN},@function"); E.raw(f"{KN}:")
    if opt.get("span"): E("s_memrealtime s[84:85]")
    if stamps: stamp(0)
    E(f"""
    s_load_dwordx16 s[16:31], s[0:1], 0
    s_load_dwordx16 s[32:47], s[0:1], 64
    s_load_dwordx2 s[48:49], s[0:1], 128
    s_cmp_ge_u32 s2, 256
    s_cbranch_scc1 L_end
    v_lshrrev_b32 v4, 6, v0
    v_and_b32 v1, 63, v0
    v_readfirstlane_b32 s3, v4
    v_lshlrev_b32 v11, 4, v1
    v_cmp_gt_u32 vcc, 56, v1
    v_mov_b32 v9, {OOB}
    s_lshr_b32 s10, s2, 2
    s_lshl_b32 s10, s10, 5
    s_and_b32 s11, s2, 3
    s_add_u32 s10, s10, s11
    v_cndmask_b32 v9, v9, v11, vcc
    v_cndmask_b32 v10, 0, -1.0, vcc
    s_lshl2_add_u32 s7, s3, s10
    s_mul_i32 s5, s7, 896
    s_mov_b32 s54, {XB}
    s_mov_b32 s55, 0x20000
    s_mov_b32 s58, 896
    s_mov_b32 s59, 0x20000
    s_lshr_b32 s8, s3, 1
    s_lshl_b32 s9, s8, 2
    s_lshl_b32 s8, s8, 7
    s_and_b32 s10, s3, 1
    s_lshl1_add_u32 s10, s2, s10
    s_lshl_b32 s10, s10, 9
    s_add_u32 s8, s8, s10
    v_lshl_add_u32 v16, v1, 1, s8
    s_lshl_b32 s11, s2, 2
    v_mov_b32 v48, 0
    v_mov_b32 v49, 0
    v_mov_b32 v50, 0
    v_mov_b32 v51, 0
    v_mov_b32 v52, 0
    v_mov_b32 v53, 0
    s_waitcnt lgkmcnt(0)
    s_mov_b32 s52, s16
    s_mov_b32 s53, s17
    s_mov_b32 s56, s36
    s_mov_b32 s57, s37
    buffer_load_dwordx4 v[28:31], v9, s[52:55], s5 offen
    buffer_load_dwordx4 v[12:15], v11, s[56:59], 0 offen
    s_load_dwordx4 s[68:71], s[48:49], 0
    s_load_dword s101, s[48:49], s9
    s_cmp_ge_u32 s2, 224
    s_barrier
    s_cbranch_scc1 L_pro_other
    global_load_short_d16_hi v48, v16, s[18:19]
    global_load_short_d16_hi v49, v16, s[20:21]
    global_load_short_d16_hi v50, v16, s[22:23]
    global_load_short_d16_hi v51, v16, s[24:25]
    global_load_short_d16_hi v52, v16, s[26:27]
    global_load_short_d16_hi v53, v16, s[28:29]
    s_load_dword s100, s[30:31], s11
    L_pro2:
    s_mov_b32 s60, s48
    s_mov_b32 s61, s49
    s_mov_b32 s62, 0x{WS_SZ:x}
    s_mov_b32 s63, 0x20000
    s_mov_b32 s64, s44
    s_mov_b32 s65, s45
    s_mov_b32 s66, {XB}
    s_mov_b32 s67, 0x20000
    s_mov_b32 s56, s32
    s_mov_b32 s57, s33
    v_mov_b32 v3, 0x{TAGM:x}
    v_min_u32 v36, 56, v1
    s_mul_i32 s13, s3, {LNS}
    s_add_u32 s13, s13, {LNB}
    v_lshl_add_u32 v36, v36, 4, s13
    s_lshl_b32 s12, s3, 2
    s_add_u32 s12, s12, {M_KEYS}
    v_mov_b32 v37, s12
    v_bfe_u32 v38, v1, 2, 2
    v_mul_u32_u24 v38, {LNS}, v38
    v_and_b32 v17, 3, v1
    v_lshl_add_u32 v38, v17, 3, v38
    v_lshrrev_b32 v18, 4, v0
    v_lshl_add_u32 v38, v18, 5, v38
    v_add_u32 v38, {LNB}, v38
    v_lshrrev_b32 v39, 1, v0
    v_mul_u32_u24 v39, {USG}, v39
    v_and_b32 v17, 1, v1
    v_lshl_add_u32 v39, v17, 4, v39
    s_lshl_b32 s8, s2, 5
    s_add_u32 s8, s8, 0x{WS_U:x}
    s_sub_u32 s4, 2047, s7
    s_mov_b32 s10, 0x3f803f80
    s_mov_b32 s11, 0x3f80
    s_mov_b32 s15, 0x3f800000
    s_cmp_ge_u32 s2, 224
    s_cbranch_scc0 L_w6
    s_waitcnt vmcnt(1)
    L_w6:
    s_waitcnt vmcnt(7)
    """)
    stamp(1, "cf")
    E("""
    v_dot2_f32_bf16 v16, v28, s10, 0
    v_dot2_f32_bf16 v16, v29, s10, v16
    v_dot2_f32_bf16 v16, v30, s10, v16
    v_dot2_f32_bf16 v16, v31, s10, v16
    """)
    dpp_reduce("v_add_f32", ["v16"])
    E(f"""
    v_mul_f32 v16, 0x{INV448:x}, v16
    v_cvt_pk_bf16_f32 v17, 0, v16
    v_readlane_b32 s13, v17, 63
    v_sub_f32 v16, v16, v17
    v_mul_f32 v16, v16, v16
    v_mul_f32 v17, s13, v10
    """)
    for i in range(4):
        E(f"v_dot2_f32_bf16 v{40+2*i}, v{28+i}, s11, v17\n v_dot2_f32_bf16 v{41+2*i}, v{28+i}, s15, v17")
    for i in range(4): E(f"v_cvt_pk_bf16_f32 v{20+i}, v{40+2*i}, v{41+2*i}")
    E("s_waitcnt vmcnt(6)")
    E("v_dot2_f32_bf16 v18, v20, v20, 0"); E("v_dot2_f32_bf16 v19, v20, v12, 0")
    for i in range(1,4):
        E(f"v_dot2_f32_bf16 v18, v{20+i}, v{20+i}, v18"); E(f"v_dot2_f32_bf16 v19, v{20+i}, v{12+i}, v19")
    E("v_lshlrev_b32 v40, 16, v20"); E("v_and_b32 v41, 0xffff0000, v20")
    dpp_reduce("v_add_f32", ["v18","v19"], ["v_lshlrev_b32 v42, 16, v21", "v_and_b32 v43, 0xffff0000, v21", "v_lshlrev_b32 v44, 16, v22",
                                            "v_and_b32 v45, 0xffff0000, v22", "v_lshlrev_b32 v46, 16, v23", "v_and_b32 v47, 0xffff0000, v23"])
    E(f"""
    v_mul_f32 v18, 0x{INV448:x}, v18
    v_sub_f32 v18, v18, v16
    v_max_f32 v18, 0, v18
    v_cvt_pk_bf16_f32 v18, 0, v18
    v_add_f32 v18, 0x{EPS:x}, v18
    v_cvt_pk_bf16_f32 v18, 0, v18
    v_sqrt_f32 v18, v18
    s_waitcnt lgkmcnt(0)
    v_cvt_pk_bf16_f32 v18, 0, v18
    v_rcp_f32 v18, v18
    s_add_u32 s101, s101, 1
    v_mul_f32 v19, v19, v18
    v_mul_f32 v18, 0x3d000000, v18
    v_cvt_pk_bf16_f32 v19, 0, v19
    v_readlane_b32 s12, v18, 63
    v_readlane_b32 s14, v19, 63
    s_pack_ll_b32_b16 s10, s101, s101
    s_pack_hh_b32_b16 s11, s101, s101
    v_pk_mul_f32 v[40:41], v[40:41], s[12:13] op_sel_hi:[1,0]
    v_pk_mul_f32 v[42:43], v[42:43], s[12:13] op_sel_hi:[1,0]
    v_pk_mul_f32 v[44:45], v[44:45], s[12:13] op_sel_hi:[1,0]
    v_pk_mul_f32 v[46:47], v[46:47], s[12:13] op_sel_hi:[1,0]
    s_bitcmp1_b32 s3, 0
    s_cselect_b32 s10, s11, s10
    v_cvt_pkrtz_f16_f32 v24, v40, v41
    v_cvt_pkrtz_f16_f32 v25, v42, v43
    v_cvt_pkrtz_f16_f32 v26, v44, v45
    v_cvt_pkrtz_f16_f32 v27, v46, v47
    s_ashr_i32 s15, s14, 31
    s_or_b32 s15, s15, 0x80000000
    v_add_u32 v24, 0x40004, v24
    v_add_u32 v25, 0x40004, v25
    v_add_u32 v26, 0x40004, v26
    v_add_u32 v27, 0x40004, v27
    s_xor_b32 s14, s14, s15
    s_pack_lh_b32_b16 s4, s4, s14
    v_bfi_b32 v24, v3, s10, v24
    v_bfi_b32 v25, v3, s10, v25
    v_bfi_b32 v26, v3, s10, v26
    v_bfi_b32 v27, v3, s10, v27
    v_mov_b32 v16, s4
    ds_write_b128 v36, v[24:27]
    ds_write_b32 v37, v16
    s_add_u32 s68, s68, 1
    s_add_u32 s69, s69, 1
    s_add_u32 s70, s70, 1
    s_add_u32 s71, s71, 1
    s_cmp_eq_u32 s3, 7
    s_waitcnt lgkmcnt(0)
    s_barrier
    s_cbranch_scc1 L_pub7
    ds_read_b64_tr_b16 v[24:25], v38
    ds_read_b64_tr_b16 v[26:27], v38 offset:{4*LNS}
    s_waitcnt lgkmcnt(0)
    buffer_store_dwordx4 v[24:27], v39, s[60:63], s8 offen sc1
    buffer_load_dwordx4 v[32:35], v11, s[56:59], 0 offen
    s_waitcnt vmcnt(2)
    L_pubdone:
    """)
    stamp(2, "cf")
    E(f"""
    s_and_b32 s72, s68, 0x{TAGM:x}
    s_and_b32 s73, s69, 0x{TAGM:x}
    s_and_b32 s74, s70, 0x{TAGM:x}
    s_and_b32 s75, s71, 0x{TAGM:x}
    s_and_b32 s76, s68, 0xff
    s_bfe_u32 s77, s68, 0x80008
    s_bfe_u32 s78, s68, 0x80010
    s_lshr_b32 s79, s68, 24
    s_cmp_ge_u32 s2, 224
    s_cbranch_scc1 L_other
    """)
    E("s_cmp_lt_u32 s3, 4\n s_cbranch_scc1 L_wpf")
    if opt.get("prio", 1): E("s_setprio 1")
    E(f"""
    L_kgen:
    s_mul_i32 s8, s3, {TABW}
    s_mov_b32 m0, s8
    s_lshl_b32 s10, s100, 16
    s_and_b32 s9, s100, 0xffff0000
    s_bitcmp1_b32 s3, 0
    s_cselect_b32 s9, s9, s10
    v_mov_b32 v4, 0x{LOG2E:x}
    v_mul_f32 v18, s9, v4
    v_exp_f32 v18, v18
    v_mov_b32 v6, 0x3c00
    ds_write_addtid_b32 v6
    v_cvt_pk_bf16_f32 v18, 0, v18
    v_mul_f32 v12, v53, v51
    v_mul_f32 v6, v18, v4
    v_mul_f32 v7, 0x{INV2PI:x}, v18
    v_mul_f32 v13, v53, v50
    v_mul_f32 v48, v48, v6
    v_mul_f32 v49, v49, v7
    v_exp_f32 v58, v48
    v_rndne_f32 v6, v49
    v_fma_f32 v60, v52, v50, -v12
    v_sub_f32 v49, v49, v6
    v_fma_f32 v61, -v52, v51, -v13
    v_cos_f32 v54, v49
    v_sin_f32 v55, v49
    v_max_f32_e64 v19, |v60|, |v61|
    v_pk_mul_f32 v[54:55], v[54:55], v[58:59] op_sel_hi:[1,0]
    v_and_b32 v17, 31, v1
    """)
    def wr(reg, row): return f"ds_write_addtid_b32 v{reg} offset:{row*ROW}"
    def cp(d, p, q, conj):
        ng = "neg_hi:[0,1,0]" if conj else "neg_lo:[0,1,0]"
        return (f"v_pk_mul_f16 v{d}, v{p}, v{q} op_sel:[0,0] op_sel_hi:[1,0]",
                f"v_pk_fma_f16 v{d}, v{p}, v{q}, v{d} op_sel:[1,1,0] op_sel_hi:[0,1,1] {ng}")
    def cp32(d, p, q, conj):
        ng = "neg_hi:[0,1,0]" if conj else "neg_lo:[0,1,0]"
        pr = lambda r: f"v[{r}:{r+1}]"
        return (f"v_pk_mul_f32 {pr(d)}, {pr(p)}, {pr(q)} op_sel_hi:[1,0]",
                f"v_pk_fma_f32 {pr(d)}, {pr(p)}, {pr(q)}, {pr(d)} op_sel:[1,1,0] op_sel_hi:[0,1,1] {ng}")
    FR = lambda j: 192 + j
    cur, nxt = 54, 56
    h16 = {1: 14, 2: 15, 4: 16, 8: FR(1), 16: FR(2), 32: FR(4), 64: FR(8), 128: FR(16)}
    fill = [f"v_max_u32_dpp v19, v19, v19 {s}" for s in STEPS] + [f"v_mul_u32_u24 v17, {ROW}, v17", "v_readlane_b32 s9, v19, 63"]
    for k in (1,2,4,8,16,32,64,128):
        a, b = cp32(nxt, cur, cur, False)
        E(a); E(f"v_cvt_pk_f16_f32 v{h16[k]}, v{cur}, v{cur+1}"); E(b); E(fill.pop(0))
        if k >= 8: E(wr(h16[k], k//8))
        cur, nxt = nxt, cur
    e256 = cur
    E(f"""
    s_and_b32 s10, s3, 1
    s_lshl_b32 s10, s10, 4
    s_add_u32 s10, s10, {M_MX}
    s_lshr_b32 s11, s3, 1
    s_lshl2_add_u32 s11, s11, s10
    v_mov_b32 v19, s9
    v_mov_b32 v20, s11
    ds_write_b32 v20, v19
    v_lshrrev_b32 v4, 5, v1
    v_lshl_add_u32 v17, v4, 4, v17
    v_add_u32 v17, s8, v17
    v_mov_b32 v20, s10
    """)
    order = [3,5,6,9,7,10,11,12,13,14,15] + list(range(17,32))
    def fdst(j): return FR(j) if j <= 16 else 212 + (j & 3)
    def uload():
        E(f"""
        s_cmp_lt_u32 s3, 4
        s_cbranch_scc1 L_nouload
        v_and_b32 v4, 255, v0
        v_lshlrev_b32 v4, 4, v4
        s_mul_i32 s12, s2, {USG}
        s_add_u32 s12, s12, 0x{WS_U:x}
        s_add_u32 s13, s12, 4096
        buffer_load_dwordx4 v[96:99], v4, s[60:63], s12 offen sc1
        buffer_load_dwordx4 v[100:103], v4, s[60:63], s13 offen sc1
        L_nouload:
        """)
    upos = opt.get("upos", 99)
    for a in range(0, 26, 2):
        j1, j2 = order[a], order[a+1]
        f = lambda j: cp(fdst(j), FR(1 << (j.bit_length()-1)), FR(j - (1 << (j.bit_length()-1))), False)
        p1, p2 = f(j1), f(j2)
        for s in (p1[0], p2[0], p1[1], p2[1], wr(fdst(j1), j1), wr(fdst(j2), j2)): E(s)
        if a == 4: E("s_waitcnt lgkmcnt(6)\n s_barrier\n ds_read_b128 v[24:27], v20")
        if a == 12:
            E(f"""
            s_waitcnt lgkmcnt(8)
            v_max3_u32 v24, v24, v25, v26
            v_max_u32 v24, v24, v27
            v_lshrrev_b32 v24, 23, v24
            v_max_u32 v24, 8, v24
            v_sub_u32 v22, 258, v24
            v_lshlrev_b32 v22, 23, v22
            v_add_u32 v24, -121, v24
            v_pk_mul_f32 v[60:61], v[60:61], v[22:23] op_sel_hi:[1,0]
            v_ldexp_f32 v18, v18, v24
            """)
    for k in range(8): E(f"ds_read_b128 v[{128+4*k}:{131+4*k}], v17 offset:{32*k}")
    if upos == 0: uload()
    xs = {0:0, 1:8, 2:12, 3:16, 4:20, 5:18, 6:22, 7:19, 8:23}
    xh = {k: 216+k for k in range(9)}
    g = {n: 226+i for i, n in enumerate((1,2,3,4,5,6,7,258,260,262,516,772))}
    slot = {1:1,2:2,3:3,4:4,5:5,6:6,7:7,258:9,260:10,262:11,516:14,772:17}
    defs = [(1,xh[0],14),(2,xh[0],15),(4,xh[0],16),(258,xh[1],15),(3,g[2],14),(260,xh[1],16),(5,g[4],14),(6,g[4],15),
            (516,xh[2],16),(262,g[260],15),(7,g[6],14),(772,xh[3],16)]
    E(f"v_cvt_pk_f16_f32 v{xh[0]}, v60, v61")
    src = 60
    for k in range(1, 9):
        dst = 62 if k & 1 else 12
        a, b = cp32(dst, src, e256, True)
        n, p, q = defs[k-1]
        c = cp(g[n], p, q, True)
        E(a)
        if k == 1: E(wr(xh[0], 32))
        E(c[0]); E(b); E(c[1]); E(f"v_cvt_pk_f16_f32 v{xh[k]}, v{dst}, v{dst+1}"); E(wr(g[n], 32+slot[n])); E(wr(xh[k], 32+xs[k]))
        if k in (2,4): E(wr(xh[k], 32+xs[k]+1))
        if upos == k: uload()
        src = dst
    for a in (8, 10):
        (n1,p1,q1),(n2,p2,q2) = defs[a], defs[a+1]
        c1, c2 = cp(g[n1],p1,q1,True), cp(g[n2],p2,q2,True)
        for s in (c1[0], c2[0], c1[1], c2[1], wr(g[n1], 32+slot[n1]), wr(g[n2], 32+slot[n2])): E(s)
    for k in range(8): E(f"ds_read_b128 v[{160+4*k}:{163+4*k}], v17 offset:{32*ROW+32*k}")
    if upos == 99: uload()
    for k in range(8):
        E(f"s_waitcnt lgkmcnt({7-k})")
        E(f"v_mfma_f32_32x32x16_f16 v[64:79], v[{160+4*k}:{163+4*k}], v[{128+4*k}:{131+4*k}], {'0' if k == 0 else 'v[64:79]'}")
    stamp(3, "c")
    E("s_cmp_ge_u32 s3, 4\n s_cbranch_scc1 L_help")
    E(f"""
    s_and_b32 s9, s3, 1
    s_mul_i32 s10, s9, {TABW}
    s_add_u32 s11, s10, {4*TABW}
    v_lshl_add_u32 v12, v1, 2, s11
    s_xor_b32 s11, s3, 2
    s_mul_i32 s11, s11, {TABW}
    v_lshl_add_u32 v13, v1, 2, s11
    s_mul_i32 s10, s9, {KSTR}
    s_add_u32 s10, s10, {KB}
    v_lshl_add_u32 v14, v1, 4, s10
    v_and_b32 v15, 31, v1
    v_lshrrev_b32 v16, 5, v1
    v_lshlrev_b32 v4, 4, v15
    v_lshlrev_b32 v5, 6, v16
    v_sub_u32 v4, v4, v5
    s_mul_i32 s12, s9, {USTR}
    s_add_u32 s12, s12, {UB+64}
    v_add_u32 v4, s12, v4
    s_cmp_ge_u32 s3, 2
    s_barrier
    s_cbranch_scc1 L_expB
    """)
    def kaddr():
        E(f"""
        v_lshrrev_b32 v5, 4, v1
        v_lshlrev_b32 v5, 2, v5
        v_and_b32 v6, 3, v1
        v_add_u32 v5, v5, v6
        v_bfe_u32 v6, v1, 2, 2
        v_sub_u32 v5, v5, v6
        s_add_u32 s12, s10, 32
        v_lshl_add_u32 v5, v5, 3, s12
        v_cmp_le_u32 vcc, 63, v1
        v_cndmask_b32 v6, 0, -1, vcc
        v_cmp_le_u32 vcc, 62, v1
        v_cndmask_b32 v7, 0, -1, vcc
        v_cmp_le_u32 vcc, 61, v1
        v_cndmask_b32 v8, 0, -1, vcc
        """)
    for k in range(9): E(f"ds_read2st64_b32 v[{80+2*k}:{81+2*k}], v12 offset0:{k} offset1:{119+k}")
    kaddr()
    E(f"""
    v_lshlrev_b32 v15, 4, v15
    v_lshl_add_u32 v15, v16, 3, v15
    v_add_u32 v15, s10, v15
    v_lshl_add_u32 v16, v1, 1, s10
    s_lshl2_add_u32 s12, s9, {M_SC}
    v_mov_b32 v17, s12
    """)
    for k in range(8, 12): E(f"ds_write_addtid_b32 v{64+k} offset:{256*k}")
    E("ds_write_b32 v17, v18")
    E("s_waitcnt lgkmcnt(5)")
    for k in range(9): E(f"v_add_f32 v{80+2*k}, v{80+2*k}, v{81+2*k}")
    E("s_waitcnt lgkmcnt(0)\n s_barrier")
    for k in range(0, 8, 2): E(f"ds_read2st64_b32 v[{100+k}:{101+k}], v13 offset0:{k} offset1:{k+1}")
    E("ds_read_b32 v108, v13 offset:2048")
    for k in range(9): E(f"v_add_f32 v{64+k}, v{64+k}, v{80+2*k}")
    E(f"""
    v_mov_b32 v22, 0
    s_waitcnt lgkmcnt(3)
    v_pk_add_f32 v[64:65], v[64:65], v[100:101]
    v_pk_add_f32 v[66:67], v[66:67], v[102:103]
    s_waitcnt lgkmcnt(0)
    v_add_f32 v72, v72, v108
    v_pk_add_f32 v[68:69], v[68:69], v[104:105]
    v_pk_add_f32 v[70:71], v[70:71], v[106:107]
    v_cvt_pk_f16_f32 v20, v64, v65
    v_cvt_pk_f16_f32 v21, v66, v67
    v_mov_b32_dpp v80, v72 wave_rol:1 {DPPF}
    ds_write_b64 v15, v[20:21] offset:64
    v_cvt_pk_f16_f32 v24, v68, v68
    v_mov_b32_dpp v80, v68 wave_shl:1 {DPPF}
    v_cvt_pk_f16_f32 v25, v69, v70
    v_cvt_pk_f16_f32 v26, v70, v70
    v_mov_b32_dpp v71, v80 {IDQ} row_mask:0xc bank_mask:0xf
    v_cvt_pk_f16_f32 v27, v71, v80
    ds_write_b128 v14, v[24:27] offset:{64+512}
    s_mov_b32 exec_hi, 0
    ds_write_b16 v16, v22
    s_mov_b32 exec_hi, -1
    s_lshl_b32 s12, s9, 13
    s_add_u32 m0, s12, {YB}
    s_waitcnt lgkmcnt(0)
    s_barrier
    """)
    stamp(4, "c")
    def kread(b):
        return [f"ds_read_b64_tr_b16 v[{128+4*b}:{129+4*b}], v5 offset:{128*b+32}", f"ds_read_b64_tr_b16 v[{130+4*b}:{131+4*b}], v5 offset:{128*b}"]
    def dumpK():
        if dump != "K": return
        E(f"""
        s_lshl2_add_u32 s12, s2, s3
        s_lshl_b32 s12, s12, 12
        s_add_u32 s12, s12, 0x{WS_DBG+0x100000:x}
        """)
        for k in range(4):
            E(f"ds_read_b128 v[24:27], v14 offset:{64+1024*k}\n s_waitcnt lgkmcnt(0)\n buffer_store_dwordx4 v[24:27], v11, s[60:63], s12 offen offset:{1024*k}\n s_waitcnt vmcnt(0)")
    def reduce_ops(ty, ti, first, gs):
        A = ACC[ty][ti]; P = ACC[ty][ti-1]; I0 = TILES[ty][ti]
        L = []
        src = {}
        for g_ in gs:
            for c in (1,2,3):
                cur_ = A + 4*g_ + c
                prev = (A + 4*(g_-1) + c) if g_ > 0 else (P + 12 + c)
                dst = 12 + 3*g_ + (c-1)
                if g_ == 0 and first: src[(g_,c)] = cur_
                else:
                    L.append(f"v_bfi_b32 v{dst}, v{5+c}, v{prev}, v{cur_}"); src[(g_,c)] = dst
        for g_ in gs: L.append(f"v_add_f32_dpp v{12+3*g_+1}, v{src[(g_,3)]}, v{src[(g_,2)]} wave_ror:1 {DPPF}")
        for g_ in gs: L.append(f"v_add_f32_dpp v{12+3*g_}, v{12+3*g_+1}, v{src[(g_,1)]} wave_ror:1 {DPPF}")
        for g_ in gs: L.append(f"v_add_f32_dpp v{24+g_}, v{12+3*g_}, v{A+4*g_} wave_ror:1 {DPPF}")
        for g_ in gs:
            w = f"ds_write_addtid_b32 v{24+g_} offset:{4*(32*I0+64*g_)}"
            if g_ == 0 and first: w = "s_mov_b32 exec_lo, 0\n" + w + "\ns_mov_b32 exec_lo, -1"
            L.append(w)
        return L
    NEED = {0: [{0,1,2}, {2}, {3}], 1: [set(), {0,1}, {1,2}]}
    def conv_stream(ty, barpos, emit):
        out = E if emit else (lambda s: None)
        tiles = TILES[ty]
        jobs = []
        for ti, I0 in enumerate(tiles):
            nb = (I0 + 9)//2
            for b in range(nb): jobs.append((ti, I0, b, nb))
        N = len(jobs); D = 5; RING = 6; NPRE = 5; CAP = opt.get("cap", 4)
        q = []; covered = {}
        firstuse = {}
        for n, j in enumerate(jobs): firstuse.setdefault(j[2], n)
        kmax = max(j[3] for j in jobs)
        def issue(text, tag): out(text); q.append(tag)
        def waitfor(tags, n):
            last = -1
            for i, t in enumerate(q):
                if t in tags: last = i
            if last < 0: return 0
            k = min(len(q) - 1 - last, 15)
            out(f"s_waitcnt lgkmcnt({k})")
            for t in q[:len(q)-k]: covered[t] = n
            del q[:len(q)-k]
            return 1
        def uread(n):
            ti, I0, b, nb = jobs[n]
            r = 40 + 4*(n % RING)
            issue(f"ds_read_b128 v[{r}:{r+3}], v4 offset:{448 + (I0-2*b)*64}", "u%d" % n)
        for n in range(D):
            uread(n)
            for s in kread(n): issue(s, "k%d" % n)
        kl = NPRE
        side = []; nbar = 0; left = {}
        ready = [None]*3
        waitfor({"u0", "k%d" % jobs[0][2]}, 0)
        for n, (ti, I0, b, nb) in enumerate(jobs):
            A = ACC[ty][ti]; r = 40 + 4*(n % RING)
            out(f"v_mfma_f32_32x32x16_f16 v[{A}:{A+15}], v[{r}:{r+3}], v[{128+4*b}:{131+4*b}], {'0' if b == 0 else f'v[{A}:{A+15}]'}")
            if b == nb - 1:
                first = ti == 0 or tiles[ti-1] + 8 != I0
                gs = [3] if I0 < 0 else [0,1,2,3]
                ops = reduce_ops(ty, ti, first, gs)
                side += [(n + 3, ti, s) for s in ops]; left[ti] = len(ops)
            cap = CAP
            dowait = (n % 2 == 0) or n < 2
            if dowait: cap -= 1
            if n + D < N: uread(n + D); cap -= 1
            if barpos and nbar < 3 and n == barpos[nbar]:
                out("s_barrier"); nbar += 1; cap -= 1
            avail = side and side[0][0] <= n
            if kl < kmax and (firstuse[kl] - n <= D + 1 or not avail):
                for s in kread(kl): issue(s, "k%d" % kl)
                kl += 1; cap -= 2
            else: cap += opt.get("vbonus", 1)
            while side and side[0][0] <= n and cap > 0:
                _, tj, s = side.pop(0); left[tj] -= 1
                if "ds_" in s:
                    issue(s, "y%d_%d" % (tj, left[tj])); cap -= s.count("\n") + 1
                else: out(s); cap -= 1
            if dowait:
                tags = set()
                for m in (n+1, n+2):
                    if m < N: tags |= {"u%d" % m, "k%d" % jobs[m][2]}
                if n == 0: tags = {"u1", "k%d" % jobs[1][2]}
                if n == 1: tags = {"u2", "k%d" % jobs[2][2]}
                waitfor(tags, n)
            for r_ in range(3):
                if ready[r_] is None and all(("y%d_0" % t) in covered for t in NEED[ty][r_]): ready[r_] = n + 1
        for _, tj, s in side: out(s)
        out("s_waitcnt lgkmcnt(0)\n s_barrier")
        if barpos: assert nbar == 3
        return ready
    bp = None
    for _ in range(4):
        ra, rb = conv_stream(0, bp, False), conv_stream(1, bp, False)
        nb_ = [max(a, b) for a, b in zip(ra, rb)]
        for i in (1, 2): nb_[i] = max(nb_[i], nb_[i-1] + opt.get("bargap", 8))
        if bp: nb_ = [max(a, b) for a, b in zip(nb_, bp)]
        bp = nb_
    ra, rb = conv_stream(0, bp, False), conv_stream(1, bp, False)
    assert all(r <= b for r, b in zip(ra, bp)) and all(r <= b for r, b in zip(rb, bp)), (ra, rb, bp)
    print("barrier positions", bp, ra, rb)
    dumpK()
    if opt.get("cprio", 1): E("s_setprio 2")
    conv_stream(0, bp, True)
    E("s_branch L_convdone")
    E.label("L_expB"); E.flush()
    for k in range(8, 12): E(f"ds_read2st64_b32 v[{80+2*k}:{81+2*k}], v12 offset0:{k} offset1:{119+k}")
    kaddr()
    E("v_and_b32 v15, 1, v1\n v_sub_u32 v15, 0, v15")
    for k in range(9): E(f"ds_write_addtid_b32 v{64+k} offset:{256*k}")
    E("s_waitcnt lgkmcnt(9)")
    for k in range(8, 12): E(f"v_add_f32 v{80+2*k}, v{80+2*k}, v{81+2*k}")
    for k in range(8, 12): E(f"v_add_f32 v{64+k}, v{64+k}, v{80+2*k}")
    E(f"""
    s_waitcnt lgkmcnt(0)
    s_barrier
    ds_read2st64_b32 v[104:105], v13 offset0:8 offset1:9
    ds_read2st64_b32 v[106:107], v13 offset0:10 offset1:11
    s_lshl_b32 s12, s9, 13
    s_add_u32 m0, s12, {YB}
    s_waitcnt lgkmcnt(0)
    v_pk_add_f32 v[74:75], v[74:75], v[106:107]
    v_pk_add_f32 v[72:73], v[72:73], v[104:105]
    v_mov_b32_dpp v81, v74 wave_rol:1 {DPPF}
    v_mov_b32_dpp v82, v75 wave_rol:1 {DPPF}
    v_mov_b32_dpp v83, v75 wave_rol:1 {DPPF}
    v_mov_b32_dpp v81, v72 wave_shl:1 {DPPF}
    v_mov_b32_dpp v82, v74 wave_shl:1 {DPPF}
    v_cvt_pk_f16_f32 v85, v73, v73
    v_bfi_b32 v84, v15, v81, v72
    v_cvt_pk_f16_f32 v22, v84, v81
    v_cvt_pk_f16_f32 v20, v72, v72
    v_cvt_pk_f16_f32 v21, v72, v73
    v_cvt_pk_f16_f32 v23, v81, v81
    v_mov_b32_dpp v22, v85 {IDQ} row_mask:0x3 bank_mask:0xf
    ds_write_b128 v14, v[20:23] offset:{64+512*3}
    v_bfi_b32 v84, v15, v82, v74
    v_cvt_pk_f16_f32 v88, v74, v74
    v_cvt_pk_f16_f32 v90, v84, v82
    v_cvt_pk_f16_f32 v91, v82, v82
    v_mov_b32 v89, v88
    ds_write_b128 v14, v[88:91] offset:{64+512*5}
    v_bfi_b32 v84, v15, v83, v75
    v_cvt_pk_f16_f32 v92, v75, v75
    v_cvt_pk_f16_f32 v94, v84, v83
    v_cvt_pk_f16_f32 v95, v83, v83
    v_mov_b32 v93, v92
    s_mov_b32 exec_hi, 0
    ds_write_b128 v14, v[92:95] offset:{64+512*7}
    s_mov_b32 exec_hi, -1
    s_waitcnt lgkmcnt(0)
    s_barrier
    """)
    stamp(4, "c")
    dumpK()
    if opt.get("cprio", 1): E("s_setprio 2")
    conv_stream(1, bp, True)
    E.label("L_convdone"); E.flush()
    stamp(5, "c")
    E("s_setprio 0\n s_waitcnt vmcnt(0)")
    prep()
    E("s_branch L_epi")
    E.label("L_help"); E.flush()
    E(f"""
    v_and_b32 v7, 1, v0
    v_mul_u32_u24 v7, {USTR}, v7
    v_bfe_u32 v8, v0, 1, 7
    v_lshl_add_u32 v7, v8, 4, v7
    v_add_u32 v7, {UB+512}, v7
    s_and_b32 s8, s3, 1
    s_mul_i32 s9, s8, {USTR}
    s_add_u32 s9, s9, {UB}
    v_lshl_add_u32 v8, v1, 3, s9
    v_mov_b32 v12, 0
    v_mov_b32 v13, 0
    ds_write_b64 v8, v[12:13]
    s_mov_b32 s9, 0
    """)
    for k in range(12): E(f"ds_write_addtid_b32 v{64+k} offset:{256*k}")
    E("s_waitcnt lgkmcnt(0)\n s_barrier\n s_barrier")
    E.label("L_uchk")
    E("s_waitcnt vmcnt(0)")
    for k in range(8): E(f"v_xor_b32 v{96+k}, s{72+(k&3)}, v{96+k}")
    E(f"""
    v_or3_b32 v12, v96, v97, v98
    v_or3_b32 v13, v99, v100, v101
    v_or3_b32 v12, v12, v102, v103
    v_or_b32 v12, v12, v13
    v_and_b32 v12, v3, v12
    v_cmp_ne_u32 vcc, 0, v12
    s_add_u32 s9, s9, 1
    s_cbranch_vccz L_uok
    s_cmp_gt_u32 s9, {SPIN}
    s_cbranch_scc1 L_uok
    buffer_load_dwordx4 v[96:99], v4, s[60:63], s12 offen sc1
    buffer_load_dwordx4 v[100:103], v4, s[60:63], s13 offen sc1
    s_branch L_uchk
    L_uok:
    ds_write_b128 v7, v[96:99]
    ds_write_b128 v7, v[100:103] offset:2048
    s_mov_b32 s99, s9
    s_waitcnt lgkmcnt(0)
    s_barrier
    s_setprio 0
    s_mov_b32 s10, 0x{WS_CAND:x}
    s_cmp_lt_u32 s3, 7
    s_cbranch_scc1 L_hc1
    """)
    cand_issue()
    E.label("L_hc1")
    prep()
    E("s_cmp_lt_u32 s3, 7\n s_cbranch_scc1 L_hc2")
    cand_check("h")
    E(f"""
    v_mov_b32 v113, {M_BEST}
    s_cmp_lg_u32 s2, 0
    v_mov_b32 v112, s12
    ds_write_b32 v113, v112
    s_cbranch_scc1 L_hc2
    v_mov_b32 v112, s68
    v_mov_b32 v113, s69
    v_mov_b32 v114, s70
    v_mov_b32 v115, s71
    v_mov_b32 v116, 0
    buffer_store_dwordx4 v[112:115], v116, s[60:63], 0 offen sc1
    L_hc2:
    """)
    E(f"""
    v_mov_b32 v64, {M_SC}
    ds_read_b64 v[66:67], v64
    v_bfe_u32 v68, v0, 4, 4
    v_bfe_u32 v69, v1, 2, 2
    v_and_b32 v70, 3, v1
    v_lshl_add_u32 v71, v70, 3, v69
    v_lshlrev_b32 v71, 2, v71
    v_mul_u32_u24 v72, {YSG}, v69
    v_lshl_add_u32 v72, v70, 4, v72
    v_mov_b32 v65, 0xff
    s_mov_b32 s12, {4*YSG}
    v_cmp_le_u32 vcc, 9, v68
    v_cndmask_b32 v73, 32, 40, vcc
    v_cmp_le_u32 vcc, 8, v68
    v_cndmask_b32 v74, 41, 48, vcc
    v_add_u32 v73, v73, v68
    v_add_u32 v74, v74, v68
    v_lshl_add_u32 v76, v68, 7, v71
    v_lshl_add_u32 v77, v73, 7, v71
    v_lshl_add_u32 v78, v74, 7, v71
    v_add_u32 v80, 8192, v76
    v_add_u32 v81, 8192, v77
    v_add_u32 v82, 8192, v78
    v_add_u32 v79, 2048, v76
    v_add_u32 v83, 2048, v80
    v_mad_u32_u24 v84, v68, s12, v72
    v_mad_u32_u24 v85, v73, s12, v72
    v_mad_u32_u24 v86, v74, s12, v72
    s_lshl_b32 s12, s2, 6
    s_add_u32 s12, s12, 0x{WS_Y:x}
    s_add_u32 s13, s12, {64*YSG}
    s_waitcnt lgkmcnt(0)
    """)
    for r_, (a0, a1, ga, so) in enumerate(((76,80,84,"s12"), (79,83,84,"s13"), (77,81,85,"s12"), (78,82,86,"s12"))):
        o = 88 + 8*(r_ & 1)
        E(f"""
        s_barrier
        ds_read2_b32 v[{o}:{o+1}], v{a0} offset0:0 offset1:4
        ds_read2_b32 v[{o+2}:{o+3}], v{a1} offset0:0 offset1:4
        s_waitcnt lgkmcnt(1)
        v_pk_mul_f32 v[{o}:{o+1}], v[{o}:{o+1}], v[66:67] op_sel_hi:[1,0]
        s_waitcnt lgkmcnt(0)
        v_pk_mul_f32 v[{o+2}:{o+3}], v[{o+2}:{o+3}], v[66:67] op_sel:[0,1] op_sel_hi:[1,1]
        v_bfi_b32 v{o+4}, v65, s76, v{o}
        v_bfi_b32 v{o+6}, v65, s78, v{o+1}
        v_bfi_b32 v{o+5}, v65, s77, v{o+2}
        v_bfi_b32 v{o+7}, v65, s79, v{o+3}
        buffer_store_dwordx4 v[{o+4}:{o+7}], v{ga}, s[60:63], {so} offen sc1
        """)
    stamp(5, "h")
    if opt.get("hsleep", 0): E(f"s_sleep {opt['hsleep']}")
    E.label("L_epi"); E.flush()
    E(f"""
    s_mul_i32 s13, s3, {ERS}
    s_add_u32 s13, s13, {EB}
    v_add_u32 v61, s13, v11
    v_mov_b32 v62, {M_BEST}
    s_cmp_eq_u32 s3, 7
    s_cbranch_scc1 L_ebar
    s_mul_i32 s12, s2, {YSG}
    s_add_u32 s12, s12, 0x{WS_Y:x}
    s_add_u32 s13, s12, 7168
    v_lshlrev_b32 v56, 4, v0
    buffer_load_dwordx4 v[40:43], v56, s[60:63], s12 offen sc1
    buffer_load_dwordx4 v[44:47], v56, s[60:63], s13 offen sc1
    v_and_b32 v57, 3, v0
    v_mul_u32_u24 v57, {2*ERS}, v57
    v_bfe_u32 v58, v0, 3, 1
    v_mul_u32_u24 v58, {EPL}, v58
    v_bfe_u32 v59, v0, 2, 1
    v_lshl_add_u32 v58, v59, 3, v58
    v_and_b32 v59, 0x1f0, v0
    v_add3_u32 v57, v57, v58, v59
    v_add_u32 v57, {EB}, v57
    s_mov_b32 s9, 0
    L_ychk:
    s_waitcnt vmcnt(0)
    """)
    for k in range(8): E(f"v_xor_b32 v{40+k}, s{76+(k&3)}, v{40+k}")
    E(f"""
    v_or3_b32 v58, v40, v41, v42
    v_or3_b32 v59, v43, v44, v45
    v_or3_b32 v58, v58, v46, v47
    v_or_b32 v58, v58, v59
    v_and_b32 v58, 0xff, v58
    v_cmp_ne_u32 vcc, 0, v58
    s_add_u32 s9, s9, 1
    s_cbranch_vccz L_yok
    s_cmp_gt_u32 s9, {SPIN}
    s_cbranch_scc1 L_yok
    """)
    if opt.get("ysleep", 0): E(f"s_sleep {opt['ysleep']}")
    E(f"""
    buffer_load_dwordx4 v[40:43], v56, s[60:63], s12 offen sc1
    buffer_load_dwordx4 v[44:47], v56, s[60:63], s13 offen sc1
    s_branch L_ychk
    L_yok:
    ds_write_b64 v57, v[40:41]
    ds_write_b64 v57, v[42:43] offset:{ERS}
    ds_write_b64 v57, v[44:45] offset:448
    ds_write_b64 v57, v[46:47] offset:{ERS+448}
    L_ebar:
    s_waitcnt lgkmcnt(0)
    s_barrier
    ds_read_b128 v[40:43], v61
    ds_read_b128 v[44:47], v61 offset:{EPL}
    ds_read_b32 v63, v62
    s_waitcnt lgkmcnt(2)
    v_pk_fma_f32 v[12:13], v[40:41], v[20:21], v[12:13]
    v_pk_fma_f32 v[14:15], v[42:43], v[22:23], v[14:15]
    s_waitcnt lgkmcnt(1)
    v_pk_fma_f32 v[16:17], v[44:45], v[24:25], v[16:17]
    v_pk_fma_f32 v[18:19], v[46:47], v[26:27], v[18:19]
    v_cvt_pk_bf16_f32 v40, v12, v13
    v_cvt_pk_bf16_f32 v41, v14, v15
    s_waitcnt lgkmcnt(0)
    v_cmp_eq_u32 vcc, s4, v63
    v_cvt_pk_bf16_f32 v42, v16, v17
    v_cvt_pk_bf16_f32 v43, v18, v19
    s_cbranch_vccnz L_fin
    buffer_store_dwordx4 v[40:43], v9, s[64:67], s5 offen {OSTF}
    """)
    stamp(6, "cf")
    E.label("L_fin"); E.flush()
    if opt.get("span"):
        E(f"""
        s_waitcnt vmcnt(0)
        L_spanw:
        s_memrealtime s[86:87]
        s_waitcnt lgkmcnt(0)
        s_sub_u32 s86, s86, s84
        s_cmp_lt_u32 s86, {opt["span"]}
        s_cbranch_scc1 L_spanw
        """)
    if stamps:
        E("s_waitcnt vmcnt(0)\n s_mov_b32 s100, s99")
        stamp(7)
        E(f"""
        s_waitcnt lgkmcnt(0)
        s_lshl_b32 s8, s2, 3
        s_add_u32 s8, s8, s3
        s_lshl_b32 s8, s8, 6
        s_add_u32 s8, s8, 0x{WS_DBG:x}
        v_mov_b32 v4, 0
        """)
        for i in range(8):
            E(f"v_mov_b32 v5, s{84+2*i}\n buffer_store_dword v5, v4, s[60:63], s8 offen offset:{4*i}")
        E("v_mov_b32 v5, s9\n buffer_store_dword v5, v4, s[60:63], s8 offen offset:32")
        E("v_mov_b32 v5, s100\n buffer_store_dword v5, v4, s[60:63], s8 offen offset:36")
    E.label("L_end")
    E("s_endpgm")
    E.label("L_pro_other"); E.flush()
    E("""
    s_getpc_b64 s[50:51]
    L_pc:
    s_sub_u32 s50, s50, L_pc-L_kgen
    s_subb_u32 s51, s51, 0
    v_lshlrev_b32 v16, 6, v0
    v_min_u32 v16, L_codeend-L_kgen-4, v16
    global_load_dword v2, v16, s[50:51]
    s_add_i32 s6, s2, -224
    s_branch L_pro2
    """)
    E.label("L_pub7"); E.flush()
    E(f"""
    v_mov_b32 v16, {M_KEYS}
    ds_read_b128 v[20:23], v16
    ds_read_b128 v[24:27], v16 offset:16
    v_mov_b32 v19, s69
    s_lshl_b32 s13, s2, 3
    s_add_u32 s13, s13, 0x{WS_CAND:x}
    v_cmp_eq_u32 vcc, 0, v1
    v_mov_b32 v17, {OOB}
    v_cndmask_b32 v17, v17, v1, vcc
    v_add_u32 v16, {LNB}, v11
    s_movk_i32 s14, {LNS}
    s_lshl_b32 s12, s2, 10
    s_add_u32 s12, s12, 0x{WS_BEST:x}
    s_waitcnt lgkmcnt(0)
    v_max3_u32 v20, v20, v21, v22
    v_max3_u32 v24, v24, v25, v26
    v_max3_u32 v18, v20, v23, v24
    v_max_u32 v18, v18, v27
    buffer_store_dwordx2 v[18:19], v17, s[60:63], s13 offen sc1
    v_not_b32 v20, v18
    v_bfe_u32 v20, v20, 2, 3
    v_mad_u32_u24 v16, v20, s14, v16
    ds_read_b128 v[24:27], v16
    s_waitcnt lgkmcnt(0)
    v_bfi_b32 v24, v3, s68, v24
    v_bfi_b32 v25, v3, s69, v25
    v_bfi_b32 v26, v3, s70, v26
    v_bfi_b32 v27, v3, s71, v27
    buffer_store_dwordx4 v[24:27], v9, s[60:63], s12 offen sc1
    s_waitcnt vmcnt(2)
    buffer_load_dwordx4 v[32:35], v11, s[56:59], 0 offen
    s_branch L_pubdone
    """)
    E.label("L_wpf"); E.flush()
    if not opt.get("wpf", 1): E("s_branch L_kgen")
    E("""
    s_cmp_eq_u32 s3, 3
    s_cbranch_scc1 L_kgen
    s_and_b32 s8, s2, 7
    v_lshrrev_b32 v16, 4, v1
    v_lshl_add_u32 v16, v16, 3, s8
    v_min_u32 v16, 27, v16
    v_and_b32 v17, 15, v1
    s_lshr_b32 s10, s2, 3
    s_lshl_b32 s10, s10, 4
    v_add_u32 v17, s10, v17
    s_cmp_eq_u32 s3, 2
    s_movk_i32 s12, 128
    s_cselect_b32 s12, s12, 3584
    s_mov_b32 s13, 57344
    s_cselect_b32 s13, s13, 128
    s_cselect_b32 s14, s42, s38
    s_cselect_b32 s15, s43, s39
    s_cmp_eq_u32 s3, 1
    s_cselect_b32 s14, s40, s14
    s_cselect_b32 s15, s41, s15
    v_mul_u32_u24 v17, s12, v17
    v_mad_u32_u24 v17, v16, s13, v17
    global_load_dword v2, v17, s[14:15]
    s_branch L_kgen
    """)
    E.label("L_other"); E.flush()
    E(f"""
    s_mov_b32 s10, 0x{WS_CAND:x}
    s_mov_b32 s9, 0
    s_cmp_ge_u32 s2, 252
    s_cbranch_scc0 L_ffn
    s_waitcnt vmcnt(0)
    """)
    prep()
    E("s_cmp_lt_u32 s3, 7\n s_cbranch_scc1 L_sent")
    cand_issue(); cand_check("l", 8)
    E(f"""
    v_mov_b32 v113, {M_BEST}
    v_mov_b32 v112, s12
    ds_write_b32 v113, v112
    s_branch L_epi
    L_sent:
    s_lshl3_add_u32 s12, s6, s3
    s_mul_i32 s12, s12, 7
    s_lshr_b32 s12, s12, 3
    s_lshl_b32 s12, s12, 6
    s_add_u32 s12, s12, 0x{WS_Y + 4*opt.get('sentblk', 55)*YSG:x}
    v_mov_b32 v40, 0
    L_sentl:
    buffer_load_dword v41, v40, s[60:63], s12 offen sc1
    s_add_u32 s9, s9, 1
    s_waitcnt vmcnt(0)
    v_and_b32 v41, 0xff, v41
    v_cmp_eq_u32 vcc, s76, v41
    s_cmp_gt_u32 s9, {SPIN}
    s_cbranch_scc1 L_epi
    s_cbranch_vccnz L_epi
    s_sleep 2
    s_branch L_sentl
    L_ffn:
    s_mov_b32 s80, s38
    s_mov_b32 s81, s39
    s_mov_b32 s82, 1605632
    s_mov_b32 s83, 0x20000
    v_lshrrev_b32 v16, 3, v1
    v_mul_u32_u24 v16, 3584, v16
    v_bfe_u32 v17, v1, 4, 1
    v_and_b32 v18, 7, v1
    v_xor_b32 v17, v17, v18
    s_and_b32 s8, s3, 1
    s_lshl_b32 s8, s8, 1
    v_xor_b32 v17, s8, v17
    v_lshl_add_u32 v4, v17, 4, v16
    v_xor_b32 v5, 64, v4
    s_mul_i32 s12, s3, 28672
    s_lshl_b32 s13, s6, 7
    s_add_u32 s12, s12, s13
    s_lshl_b32 s13, s3, 10
    s_mov_b32 s11, s12
    s_barrier
    """)
    for i in range(7):
        E(f"s_add_u32 m0, s13, {i*8192}")
        E(f"buffer_load_dwordx4 v4, s[80:83], s11 offen lds")
        if i < 6: E(f"s_add_u32 s11, s11, {8*28672}")
    E("s_mov_b32 s80, s40\n s_mov_b32 s81, s41")
    for i in range(7):
        E(f"s_add_u32 m0, s13, {57344 + i*8192}")
        E(f"buffer_load_dwordx4 v5, s[80:83], s12 offen lds")
        if i < 6: E(f"s_add_u32 s12, s12, {8*28672}")
    E("""
    s_cmp_ge_u32 s3, 4
    s_cbranch_scc1 L_nowd
    s_mov_b32 s80, s42
    s_mov_b32 s81, s43
    v_lshrrev_b32 v4, 4, v1
    v_mul_u32_u24 v4, 7168, v4
    v_and_b32 v5, 15, v1
    v_lshl_add_u32 v4, v5, 4, v4
    s_mul_i32 s12, s6, 57344
    s_lshl_b32 s13, s3, 8
    s_add_u32 s12, s12, s13
    """)
    for s in range(2):
        for i in range(8):
            r = 128 + 32*s + 4*i
            if i % 4 == 0 and (s, i) != (0, 0): E(f"s_add_u32 s12, s12, {3584 if i == 4 else 28672-3584}")
            E(f"buffer_load_dwordx4 v[{r}:{r+3}], v4, s[80:83], s12 offen offset:{896*(i%4)}")
    E("s_waitcnt vmcnt(30)\n s_branch L_wd2\n L_nowd:\n s_waitcnt vmcnt(14)\n L_wd2:")
    prep()
    E(f"""
    v_lshrrev_b32 v4, 4, v1
    v_bfe_u32 v5, v1, 2, 2
    v_lshl_add_u32 v6, v4, 3, v5
    v_lshlrev_b32 v6, 7, v6
    v_bfe_u32 v7, v1, 1, 1
    v_mov_b32 v8, 57344
    v_mad_u32_u24 v6, v7, v8, v6
    v_bfe_u32 v8, v1, 3, 2
    v_lshl_add_u32 v8, v7, 2, v8
    v_xor_b32 v8, s3, v8
    v_lshl_add_u32 v6, v8, 4, v6
    v_and_b32 v8, 1, v1
    v_lshl_add_u32 v6, v8, 3, v6
    v_and_b32 v7, 15, v1
    v_lshlrev_b32 v39, 5, v8
    v_lshl_add_u32 v39, v4, 4, v39
    v_min_u32 v8, 13, v7
    v_lshl_add_u32 v8, v8, 2, v4
    v_lshlrev_b32 v8, 4, v8
    s_lshl_b32 s12, s3, 4
    s_add_u32 s12, s12, {M_H}
    v_lshl_add_u32 v37, v1, 1, s12
    v_mov_b32 v38, {M_H-8}
    v_cmp_gt_u32 vcc, 8, v1
    v_cndmask_b32 v37, v38, v37, vcc
    v_lshlrev_b32 v38, 4, v4
    v_add_u32 v38, {M_H}, v38
    v_lshrrev_b32 v5, 1, v7
    s_lshl_b32 s12, s3, 3
    v_add_u32 v5, s12, v5
    v_cmp_gt_u32 vcc, 28, v5
    v_cmp_gt_u32 s[12:13], 32, v1
    s_and_b64 vcc, vcc, s[12:13]
    v_lshl_add_u32 v39, v5, 11, v39
    v_mov_b32 v5, {OOB}
    v_cndmask_b32 v39, v5, v39, vcc
    s_mov_b32 s14, 0x05040100
    s_mov_b32 s15, 0x07060302
    s_waitcnt vmcnt(0)
    s_barrier
    """)
    stamp(3, "f")
    cand_issue()
    for s in range(14):
        E(f"ds_read_b64_tr_b16 v[{56+4*s}:{57+4*s}], v6 offset:{4096*s}")
        E(f"ds_read_b64_tr_b16 v[{58+4*s}:{59+4*s}], v6 offset:{4096*s+512}")
    E("s_cmp_ge_u32 s3, 4\n s_cbranch_scc1 L_cchkf")
    for s in range(2):
        for m in range(4):
            for ip in range(4):
                a = 128 + 32*s + 4*(2*ip) + m; b = 128 + 32*s + 4*(2*ip+1) + m
                E(f"v_perm_b32 v{192+32*s+4*(2*m)+ip}, v{b}, v{a}, s14")
                E(f"v_perm_b32 v{192+32*s+4*(2*m+1)+ip}, v{b}, v{a}, s15")
    cand_check("f")
    E(f"""
    s_mov_b32 s8, s12
    s_andn2_b32 s11, 0x7ff, s12
    s_lshr_b32 s13, s11, 5
    s_and_b32 s12, s11, 3
    s_lshl2_add_u32 s10, s13, s12
    s_lshl_b32 s12, s10, 10
    s_add_u32 s12, s12, 0x{WS_BEST:x}
    s_mov_b32 s13, 0x42000000
    """)
    stamp(4, "f")
    E(f"""
    L_xchk:
    buffer_load_dwordx4 v[40:43], v8, s[60:63], s12 offen sc1
    s_add_u32 s9, s9, 1
    s_waitcnt vmcnt(0)
    v_xor_b32 v40, s72, v40
    v_xor_b32 v41, s73, v41
    v_xor_b32 v42, s74, v42
    v_xor_b32 v43, s75, v43
    v_or3_b32 v44, v40, v41, v42
    v_or_b32 v44, v44, v43
    v_and_b32 v44, v3, v44
    v_cmp_ne_u32 vcc, 0, v44
    s_cmp_gt_u32 s9, {SPIN}
    s_cbranch_scc1 L_xok
    s_cbranch_vccnz L_xchk
    L_xok:
    """)
    for i in range(4):
        E(f"v_fma_mix_f32 v{44+2*i}, v{40+i}, s13, 0 op_sel_hi:[1,0,0]")
        E(f"v_fma_mix_f32 v{45+2*i}, v{40+i}, s13, 0 op_sel:[1,0,0] op_sel_hi:[1,0,0]")
    for i in range(4): E(f"v_cvt_pk_bf16_f32 v{40+i}, v{44+2*i}, v{45+2*i}")
    E("v_mov_b32 v44, 0\n v_mov_b32 v45, 0\n s_waitcnt lgkmcnt(0)")
    def pick(s): return f"v_add_f32_dpp v{44+(s&1)}, v{128+4*s+(s&3)}, v{44+(s&1)} {IDQ} row_mask:0x{1<<(s>>2):x} bank_mask:0xf"
    for s in range(14):
        E(f"v_mfma_f32_16x16x32_bf16 v[{128+4*s}:{131+4*s}], v[40:43], v[{56+4*s}:{59+4*s}], 0")
        if s >= 5: E(pick(s-5))
    for s in range(9, 14): E(pick(s))
    E(f"""
    v_add_f32 v44, v44, v45
    v_mov_b32 v45, v44
    v_permlane16_swap_b32 v44, v45
    v_add_f32 v44, v44, v45
    v_mov_b32 v45, v44
    v_permlane32_swap_b32 v44, v45
    v_add_f32 v44, v44, v45
    v_cvt_pk_bf16_f32 v44, 0, v44
    v_mul_f32 v45, 0x{LOG2E | 0x80000000:x}, v44
    v_exp_f32 v45, v45
    v_mov_b32 v46, {M_BEST}
    v_add_f32 v45, 1.0, v45
    v_rcp_f32 v45, v45
    v_mov_b32 v47, s8
    v_mul_f32 v45, v45, v44
    v_cvt_pk_bf16_f32 v45, 0, v45
    v_mul_f32_dpp v45, v44, v45 row_ror:8 {DPPF}
    v_cvt_pk_bf16_f32 v45, v45, v45
    ds_write_b16 v37, v45
    ds_write_b32 v46, v47
    s_cmp_ge_u32 s3, 4
    s_waitcnt lgkmcnt(0)
    s_barrier
    s_cbranch_scc1 L_ffn4
    ds_read_b128 v[40:43], v38
    ds_read_b128 v[44:47], v38 offset:64
    s_lshl_b32 s12, s6, 6
    s_add_u32 s12, s12, 0x{WS_PART:x}
    v_mov_b32 v48, 0xff
    s_waitcnt lgkmcnt(1)
    """)
    for e in range(8): E(f"v_mfma_f32_16x16x32_bf16 v[{128+4*e}:{131+4*e}], v[40:43], v[{192+4*e}:{195+4*e}], 0")
    E("s_waitcnt lgkmcnt(0)")
    for e in (0,4,1,5,2,6,3,7): E(f"v_mfma_f32_16x16x32_bf16 v[{128+4*e}:{131+4*e}], v[44:47], v[{224+4*e}:{227+4*e}], v[{128+4*e}:{131+4*e}]")
    for m in range(4): E(f"v_mov_b32_dpp v{128+4*m}, v{144+4*m} {IDQ} row_mask:0x2 bank_mask:0xf")
    for m in range(4): E(f"v_bfi_b32 v{52+m}, v48, s{76+m}, v{128+4*m}")
    E("buffer_store_dwordx4 v[52:55], v39, s[60:63], s12 offen sc1")
    stamp(5, "f")
    E("s_branch L_sent")
    E.label("L_ffn4"); E.flush()
    E(f"""
    s_cmp_lt_u32 s3, 7
    s_cbranch_scc1 L_sent
    s_lshl_b32 s13, s6, 5
    v_lshl_add_u32 v40, v7, 1, s13
    s_mul_i32 s14, s11, 896
    buffer_load_ushort v41, v40, s[52:55], s14 offen
    buffer_load_ushort v42, v40, s[60:63], s12 offen sc1
    buffer_load_ushort v43, v40, s[56:59], 0 offen
    s_bfe_u32 s13, s11, 0x10002
    v_cmp_eq_u32 vcc, s13, v4
    v_mov_b32 v44, {OOB}
    v_cndmask_b32 v40, v44, v40, vcc
    v_lshlrev_b32 v44, 2, v1
    v_and_b32 v45, 3, v1
    v_lshlrev_b32 v45, 3, v45
    v_lshrrev_b32 v45, v45, s68
    v_and_b32 v45, 0xff, v45
    v_and_b32 v46, 1, v4
    v_and_b32 v47, 1, v1
    v_lshl_add_u32 v46, v46, 1, v47
    v_lshlrev_b32 v47, 3, v46
    v_lshrrev_b32 v47, v47, s68
    v_and_b32 v47, 0xff, v47
    v_lshrrev_b32 v48, 1, v7
    v_lshlrev_b32 v48, 6, v48
    v_lshl_add_u32 v46, v46, 2, v48
    s_mul_i32 s10, s10, {YSG}
    s_lshl_b32 s13, s6, 9
    s_add_u32 s10, s10, s13
    s_bfe_u32 s13, s11, 0x20003
    s_lshl_b32 s13, s13, 4
    s_add_u32 s10, s10, s13
    s_add_u32 s10, s10, 0x{WS_Y:x}
    s_lshl_b32 s12, s6, 11
    s_add_u32 s12, s12, 0x{WS_PART:x}
    s_and_b32 s13, s8, 0xffff0000
    s_not_b32 s15, s13
    s_ashr_i32 s15, s15, 31
    s_and_b32 s15, s15, 0x7fff0000
    s_or_b32 s15, s15, 0x80000000
    s_xor_b32 s13, s13, s15
    v_mov_b32 v48, 0x{LOG2E | 0x80000000:x}
    v_mul_f32 v49, s13, v48
    v_exp_f32 v49, v49
    v_add_f32 v49, 1.0, v49
    v_rcp_f32 v49, v49
    v_cvt_pk_bf16_f32 v49, 0, v49
    s_waitcnt vmcnt(0)
    v_lshlrev_b32 v41, 16, v41
    v_and_b32 v42, 0xbff8, v42
    v_cvt_f32_f16 v42, v42
    v_mul_f32 v42, 0x42000000, v42
    v_lshlrev_b32 v43, 16, v43
    v_mul_f32 v43, v43, v42
    L_pchk:
    s_sleep 4
    """)
    for i in range(7): E(f"buffer_load_dword v{56+i}, v44, s[60:63], s12 offen offset:{256*i} sc1")
    E("s_add_u32 s9, s9, 1\n s_waitcnt vmcnt(0)")
    for i in range(7): E(f"v_xor_b32 v{56+i}, v{56+i}, v45")
    E(f"""
    v_or3_b32 v50, v56, v57, v58
    v_or3_b32 v50, v50, v59, v60
    v_or3_b32 v50, v50, v61, v62
    v_and_b32 v50, 0xff, v50
    v_cmp_ne_u32 vcc, 0, v50
    s_cmp_gt_u32 s9, {SPIN}
    s_cbranch_scc1 L_pok
    s_cbranch_vccnz L_pchk
    L_pok:
    v_add_f32 v56, v56, v57
    v_add_f32 v58, v58, v59
    v_add_f32 v60, v60, v61
    v_add_f32 v56, v56, v58
    v_add_f32 v60, v60, v62
    v_add_f32 v56, v56, v60
    v_mov_b32 v57, v56
    v_permlane16_swap_b32 v56, v57
    v_add_f32 v56, v56, v57
    v_mov_b32 v57, v56
    v_permlane32_swap_b32 v56, v57
    v_add_f32 v56, v56, v57
    v_cvt_pk_bf16_f32 v56, 0, v56
    v_mul_f32 v56, v56, v49
    v_cvt_pk_bf16_f32 v56, 0, v56
    v_add_f32 v56, v56, v42
    v_cvt_pk_bf16_f32 v56, 0, v56
    v_mul_f32 v57, v56, v48
    v_exp_f32 v57, v57
    v_add_f32 v57, 1.0, v57
    v_rcp_f32 v57, v57
    v_mul_f32 v56, v56, v57
    v_fmac_f32 v41, v43, v56
    v_mul_f32 v56, 0x3d000000, v56
    """)
    stamp(5, "r")
    E(f"""
    L_rchk:
    buffer_load_dword v57, v46, s[60:63], s10 offen sc1
    s_add_u32 s9, s9, 1
    s_waitcnt vmcnt(0)
    v_xor_b32 v57, v57, v47
    v_and_b32 v50, 0xff, v57
    v_cmp_ne_u32 vcc, 0, v50
    s_cmp_gt_u32 s9, {SPIN}
    s_cbranch_scc1 L_rok
    s_cbranch_vccz L_rok
    s_sleep 2
    s_branch L_rchk
    L_rok:
    v_fmac_f32 v41, v57, v56
    v_cvt_pk_bf16_f32 v41, v41, v41
    buffer_store_short v41, v40, s[64:67], s14 offen {OSTF}
    s_branch L_epi
    """)
    E.label("L_codeend")
    E.raw('.section .rodata,"a"'); E.raw(".p2align 6"); E.raw(f".amdhsa_kernel {KN}")
    for l in ("next_free_vgpr 256","next_free_sgpr 102","accum_offset 256","group_segment_fixed_size 0","kernarg_size 136",
              "user_sgpr_count 2","user_sgpr_kernarg_segment_ptr 1","system_sgpr_workgroup_id_x 1","ieee_mode 0"):
        E.raw("  .amdhsa_" + l)
    E.raw(".end_amdhsa_kernel")
    return E.text(), E

if __name__ == "__main__":
    out = sys.argv[1]
    opt = {}
    for a in sys.argv[2:]:
        k, _, v = a.partition("=")
        opt[k] = True if not v else (int(v) if v.lstrip("-").isdigit() else v)
    hdr = open("recurrent_scan__ssm_conv_s4__moe_arch_mod__prompt.s.ref").read().split("; Override launch")[0]
    t, E = gen(opt)
    open(out, "w").write(hdr + t)
    print("wrote", out, "lines", len(E.lines), "nops", E.nops)
```

```python
import sys, os
sys.path.insert(0, os.path.dirname(__file__))
from asm import Emit
from align import align
KN = "recurrent_scan__ssm_conv_s4__moe_arch_mod__prompt_kernel"

WS_CAND = 0x1000; WS_PART = 0x2000; WS_BEST = 0x10000; WS_U = 0x50000; WS_Y = 0x240000; WS_DBG = 0x800000; WS_SZ = 0x1000000
YSG = 7168
TABW = 15232; ROW = 272
YB = 0; EB = 16384; ERS = 912
UB = 121856; USTR = 4672; KB = UB + 2*USTR; KSTR = 4160; LNB = KB + 2*KSTR; LNS = 960
MISC = LNB + 8*LNS; M_KEYS = MISC; M_SC = MISC+64; M_BEST = MISC+72; M_H = MISC+128
M_FL = MISC + 256; M_MX = M_FL + 256
LDS_SZ = MISC + 768
XB = 1835008
OOB = "0x80000000"
TAGM = 0x40074007
LOG2E = 0x3fb8aa3b; INV2PI = 0x3e22f983; INV448 = 0x3b124925; EPS = 0x3727c5ac
SPIN = 400000
TILES = {0: [-6, 2, 10, 48, 56], 1: [17, 25, 33, 41]}
ACC = {0: [64, 80, 96, 112, 64], 1: [64, 80, 96, 112]}
DPPF = "row_mask:0xf bank_mask:0xf"
IDQ = "quad_perm:[0,1,2,3]"


def gen(opt):
    stamps = opt.get("stamps", False)
    dump = opt.get("dump", None)
    USG = opt.get("usg", 8192)
    OSTF = opt.get("ostf", "sc1").replace("_", " ").replace("none", "")
    E = Emit()
    def stamp(i, who="c"):
        if opt.get("cst"):
            if i == 4 and who == "c": E("s_memtime s[84:85]")
            if i == 5 and who == "c": E("s_memtime s[98:99]")
            return
        if opt.get("span") and opt.get("at") == i and who in opt.get("who", "c"): E("s_memrealtime s[84:85]")
        if stamps: E(f"{'s_memtime' if stamps == 'cyc' else 's_memrealtime'} s[{84+2*i}:{85+2*i}]")
    STEPS = ["row_shr:1 "+DPPF, "row_shr:2 "+DPPF, "row_shr:4 "+DPPF, "row_shr:8 "+DPPF,
             "row_bcast:15 row_mask:0xa bank_mask:0xf", "row_bcast:31 row_mask:0xc bank_mask:0xf"]
    def dpp_reduce(op, regs, fill=()):
        fill = list(fill)
        per = 3 - len(regs)
        for s in STEPS:
            for r in regs: E(f"{op}_dpp {r}, {r}, {r} {s}")
            for _ in range(per):
                if fill: E(fill.pop(0))
        for f in fill: E(f)
    def cand_issue():
        E("buffer_load_dwordx4 v[112:115], v11, s[60:63], s10 offen sc1\n buffer_load_dwordx4 v[116:119], v11, s[60:63], s10 offen offset:1024 sc1")
    def cand_check(tag, sleep=0):
        E(f"""
        L_cchk{tag}:
        s_waitcnt vmcnt(0)
        v_cmp_ne_u32 vcc, s69, v113
        v_cmp_ne_u32 s[12:13], s69, v115
        v_cmp_ne_u32 s[14:15], s69, v117
        s_or_b64 s[12:13], s[12:13], vcc
        v_cmp_ne_u32 vcc, s69, v119
        s_or_b64 s[12:13], s[12:13], s[14:15]
        s_add_u32 s9, s9, 1
        s_or_b64 s[12:13], s[12:13], vcc
        s_cbranch_scc0 L_cok{tag}
        s_cmp_gt_u32 s9, {SPIN}
        s_cbranch_scc1 L_cok{tag}
        """)
        if sleep: E(f"s_sleep {sleep}")
        cand_issue()
        E(f"""
        s_branch L_cchk{tag}
        L_cok{tag}:
        v_max3_u32 v112, v112, v114, v116
        v_max_u32 v112, v112, v118
        """)
        dpp_reduce("v_max_u32", ["v112"])
        E("v_readlane_b32 s12, v112, 63")
    def prep():
        E("""
        ds_read_b128 v[40:43], v36
        s_mov_b32 s12, 0x00004480
        s_mov_b32 s13, 0x44800000
        s_mov_b32 s14, 0xc238aa3b
        """)
        for i in range(4):
            E(f"v_lshlrev_b32 v{12+2*i}, 16, v{28+i}\n v_and_b32 v{13+2*i}, 0xffff0000, v{28+i}")
        for i in range(4):
            E(f"v_dot2_f32_bf16 v{44+2*i}, v{32+i}, s12, 0\n v_dot2_f32_bf16 v{45+2*i}, v{32+i}, s13, 0")
        E("s_waitcnt lgkmcnt(0)")
        for i in range(4): E(f"v_and_b32 v{40+i}, 0x{~TAGM & 0xffffffff:x}, v{40+i}")
        sel = lambda e: "op_sel_hi:[1,0,0]" if e % 2 == 0 else "op_sel:[1,0,0] op_sel_hi:[1,0,0]"
        for e in range(8): E(f"v_fma_mix_f32 v{20+e}, v{40+e//2}, s14, 0 {sel(e)}")
        for e in range(8): E(f"v_exp_f32 v{20+e}, v{20+e}")
        for e in range(8): E(f"v_add_f32 v{20+e}, 1.0, v{20+e}")
        for e in range(8): E(f"v_rcp_f32 v{20+e}, v{20+e}")
        for e in range(8): E(f"v_fma_mix_f32 v{44+e}, v{40+e//2}, v{44+e}, 0 {sel(e)}")
        for e in range(8): E(f"v_fma_mix_f32 v{20+e}, v{40+e//2}, v{20+e}, 0 {sel(e)}")
        for e in range(0,8,2): E(f"v_pk_fma_f32 v[{12+e}:{13+e}], v[{44+e}:{45+e}], v[{20+e}:{21+e}], v[{12+e}:{13+e}]")

    E.raw(f"; @launch grid=(256,1,1) block=(512,1,1) lds={LDS_SZ}")
    E.raw('.amdgcn_target "amdgcn-amd-amdhsa--gfx950"')
    E.raw(".text"); E.raw(f".globl {KN}"); E.raw(".p2align 8"); E.raw(f".type {KN},@function"); E.raw(f"{KN}:")
    if opt.get("span"): E("s_memrealtime s[84:85]")
    if stamps: stamp(0)
    E(f"""
    s_load_dwordx16 s[16:31], s[0:1], 0
    s_load_dwordx16 s[32:47], s[0:1], 64
    s_load_dwordx2 s[36+12:37+12], s[0:1], 128
    s_cmp_lt_u32 s2, 224
    s_cbranch_scc1 L_pro1
    s_cmp_ge_u32 s2, 256
    s_cbranch_scc1 L_end
    s_getpc_b64 s[50:51]
    L_pc:
    v_lshlrev_b32 v16, 6, v0
    v_min_u32 v16, L_codeend-L_pc-4, v16
    global_load_dword v2, v16, s[50:51]
    L_pro1:
    v_lshrrev_b32 v4, 6, v0
    v_and_b32 v1, 63, v0
    v_readfirstlane_b32 s3, v4
    v_lshlrev_b32 v11, 4, v1
    v_cmp_gt_u32 vcc, 56, v1
    v_bfrev_b32 v9, 1
    s_and_b32 s10, s2, 0xfc
    s_and_b32 s11, s2, 3
    s_lshl3_add_u32 s10, s10, s11
    v_cndmask_b32 v9, v9, v11, vcc
    v_cndmask_b32 v10, 0, -1.0, vcc
    s_lshl2_add_u32 s7, s3, s10
    s_mul_i32 s5, s7, 896
    s_mov_b32 s54, {XB}
    s_mov_b32 s55, 0x20000
    s_movk_i32 s58, 896
    s_mov_b32 s59, s55
    s_mov_b32 s62, 0x{WS_SZ:x}
    s_mov_b32 s63, s55
    s_and_b32 s9, s3, 6
    s_lshl_b32 s9, s9, 1
    s_and_b32 s10, s3, 1
    s_lshl1_add_u32 s8, s2, s10
    s_lshl4_add_u32 s8, s8, s9
    s_lshl_b32 s8, s8, 5
    v_lshl_add_u32 v16, v1, 1, s8
    s_lshl_b32 s11, s2, 2
    s_mul_i32 s12, s2, {YSG}
    s_add_u32 s12, s12, 0x{WS_Y:x}
    s_cmp_eq_u32 s3, 7
    s_cselect_b32 s12, s62, s12
    v_lshlrev_b32 v17, 4, v0
    v_mov_b32 v20, -1
    v_mov_b32 v21, -1
    v_mov_b32 v22, -1
    v_mov_b32 v23, -1
    v_mov_b32 v48, 0
    v_mov_b32 v49, 0
    v_mov_b32 v50, 0
    v_mov_b32 v51, 0
    v_mov_b32 v52, 0
    v_mov_b32 v53, 0
    v_mov_b32 v5, v9
    s_waitcnt lgkmcnt(0)
    s_mov_b64 s[52:53], s[16:17]
    s_mov_b64 s[56:57], s[36:37]
    buffer_load_dwordx4 v[28:31], v9, s[52:55], s5 offen
    buffer_load_dwordx4 v[12:15], v11, s[56:59], 0 offen
    s_load_dwordx4 s[68:71], s[48:49], 0
    s_load_dword s101, s[48:49], s9
    s_mov_b64 s[60:61], s[48:49]
    s_cmp_ge_u32 s2, 224
    s_barrier
    buffer_store_dwordx4 v[20:23], v17, s[60:63], s12 offen sc1
    s_cbranch_scc1 L_pro2
    global_load_short_d16_hi v48, v16, s[18:19]
    global_load_short_d16_hi v49, v16, s[20:21]
    global_load_short_d16_hi v50, v16, s[22:23]
    global_load_short_d16_hi v51, v16, s[24:25]
    global_load_short_d16_hi v52, v16, s[26:27]
    global_load_short_d16_hi v53, v16, s[28:29]
    s_load_dword s100, s[30:31], s11
    """.replace("s[36+12:37+12]", "s[48:49]"))
    def wpf():
        E(f"""
        s_and_b32 s12, s2, 0xf8
        s_and_b32 s9, s3, 6
        s_add_u32 s12, s12, s9
        s_mul_i32 s12, s12, 7168
        s_and_b32 s13, s2, 7
        s_lshl_b32 s13, s13, 7
        s_add_u32 s12, s12, s13
        v_and_b32 v16, 3, v1
        v_mul_u32_u24 v16, 3584, v16
        v_bfe_u32 v17, v1, 2, 2
        v_lshl_add_u32 v16, v17, 10, v16
        v_add_u32 v16, s12, v16
        v_min_u32 v16, 1605628, v16
        s_bitcmp1_b32 s3, 0
        s_cselect_b64 s[14:15], s[40:41], s[38:39]
        global_load_dword v2, v16, s[14:15]
        """)
    WPF = opt.get("wpf", 2)
    if WPF == 1: wpf()
    NPF = 1 if WPF == 1 else 0
    E(f"""
    L_pro2:
    s_mov_b64 s[56:57], s[32:33]
    v_lshlrev_b32 v16, 3, v1
    v_add_u32 v16, {M_FL}, v16
    v_mov_b32 v24, 0
    v_mov_b32 v25, 0
    ds_write_b64 v16, v[24:25]
    v_mov_b32 v3, 0x{TAGM:x}
    v_min_u32 v36, 56, v1
    s_mul_i32 s13, s3, {LNS}
    s_add_u32 s13, s13, {LNB}
    v_lshl_add_u32 v36, v36, 4, s13
    s_lshl_b32 s12, s3, 2
    s_add_u32 s12, s12, {M_KEYS}
    v_mov_b32 v37, s12
    v_bfe_u32 v38, v1, 2, 2
    v_mul_u32_u24 v38, {LNS}, v38
    v_and_b32 v17, 3, v1
    v_lshl_add_u32 v38, v17, 3, v38
    v_lshrrev_b32 v18, 4, v0
    v_lshl_add_u32 v38, v18, 5, v38
    v_add_u32 v38, {LNB}, v38
    v_lshrrev_b32 v39, 1, v0
    v_mul_u32_u24 v39, {USG}, v39
    v_and_b32 v17, 1, v1
    v_lshl_add_u32 v39, v17, 4, v39
    s_lshl_b32 s8, s2, 5
    s_add_u32 s8, s8, 0x{WS_U:x}
    s_sub_u32 s4, 2047, s7
    s_mov_b32 s10, 0x3f803f80
    s_mov_b32 s11, 0x3f80
    s_mov_b32 s15, 0x3f800000
    s_cmp_ge_u32 s2, 224
    s_cbranch_scc0 L_w6
    s_waitcnt vmcnt(1)
    L_w6:
    s_waitcnt vmcnt({8+NPF})
    """)
    stamp(1, "cf")
    E("""
    v_dot2_f32_bf16 v16, v28, s10, 0
    v_dot2_f32_bf16 v16, v29, s10, v16
    v_dot2_f32_bf16 v16, v30, s10, v16
    v_dot2_f32_bf16 v16, v31, s10, v16
    """)
    dpp_reduce("v_add_f32", ["v16"])
    E(f"""
    v_mul_f32 v16, 0x{INV448:x}, v16
    v_cvt_pk_bf16_f32 v17, 0, v16
    v_readlane_b32 s13, v17, 63
    v_sub_f32 v16, v16, v17
    v_mul_f32 v16, v16, v16
    v_mul_f32 v17, s13, v10
    """)
    for i in range(4):
        E(f"v_dot2_f32_bf16 v{40+2*i}, v{28+i}, s11, v17\n v_dot2_f32_bf16 v{41+2*i}, v{28+i}, s15, v17")
    for i in range(4): E(f"v_cvt_pk_bf16_f32 v{20+i}, v{40+2*i}, v{41+2*i}")
    E(f"s_waitcnt vmcnt({7+NPF})")
    E("v_dot2_f32_bf16 v18, v20, v20, 0"); E("v_dot2_f32_bf16 v19, v20, v12, 0")
    for i in range(1,4):
        E(f"v_dot2_f32_bf16 v18, v{20+i}, v{20+i}, v18"); E(f"v_dot2_f32_bf16 v19, v{20+i}, v{12+i}, v19")
    E("v_lshlrev_b32 v40, 16, v20"); E("v_and_b32 v41, 0xffff0000, v20")
    dpp_reduce("v_add_f32", ["v18","v19"], ["v_lshlrev_b32 v42, 16, v21", "v_and_b32 v43, 0xffff0000, v21", "v_lshlrev_b32 v44, 16, v22",
                                            "v_and_b32 v45, 0xffff0000, v22", "v_lshlrev_b32 v46, 16, v23", "v_and_b32 v47, 0xffff0000, v23"])
    E(f"""
    v_mul_f32 v18, 0x{INV448:x}, v18
    v_sub_f32 v18, v18, v16
    v_max_f32 v18, 0, v18
    v_cvt_pk_bf16_f32 v18, 0, v18
    v_add_f32 v18, 0x{EPS:x}, v18
    v_cvt_pk_bf16_f32 v18, 0, v18
    v_sqrt_f32 v18, v18
    s_waitcnt lgkmcnt(0)
    v_cvt_pk_bf16_f32 v18, 0, v18
    v_rcp_f32 v18, v18
    s_add_u32 s101, s101, 1
    v_mul_f32 v19, v19, v18
    v_mul_f32 v18, 0x3d000000, v18
    v_cvt_pk_bf16_f32 v19, 0, v19
    v_readlane_b32 s12, v18, 63
    v_readlane_b32 s14, v19, 63
    s_pack_ll_b32_b16 s10, s101, s101
    s_pack_hh_b32_b16 s11, s101, s101
    v_pk_mul_f32 v[40:41], v[40:41], s[12:13] op_sel_hi:[1,0]
    v_pk_mul_f32 v[42:43], v[42:43], s[12:13] op_sel_hi:[1,0]
    v_pk_mul_f32 v[44:45], v[44:45], s[12:13] op_sel_hi:[1,0]
    v_pk_mul_f32 v[46:47], v[46:47], s[12:13] op_sel_hi:[1,0]
    s_bitcmp1_b32 s3, 0
    s_cselect_b32 s10, s11, s10
    v_cvt_pkrtz_f16_f32 v24, v40, v41
    v_cvt_pkrtz_f16_f32 v25, v42, v43
    v_cvt_pkrtz_f16_f32 v26, v44, v45
    v_cvt_pkrtz_f16_f32 v27, v46, v47
    s_ashr_i32 s15, s14, 31
    s_or_b32 s15, s15, 0x80000000
    v_add_u32 v24, 0x40004, v24
    v_add_u32 v25, 0x40004, v25
    v_add_u32 v26, 0x40004, v26
    v_add_u32 v27, 0x40004, v27
    s_xor_b32 s14, s14, s15
    s_pack_lh_b32_b16 s4, s4, s14
    v_bfi_b32 v24, v3, s10, v24
    v_bfi_b32 v25, v3, s10, v25
    v_bfi_b32 v26, v3, s10, v26
    v_bfi_b32 v27, v3, s10, v27
    v_mov_b32 v16, s4
    ds_write_b128 v36, v[24:27]
    ds_write_b32 v37, v16
    s_add_u32 s68, s68, 1
    s_add_u32 s69, s69, 1
    s_add_u32 s70, s70, 1
    s_add_u32 s71, s71, 1
    s_cmp_ge_u32 s2, 224
    s_cbranch_scc0 L_w7
    s_waitcnt vmcnt(0)
    L_w7:
    s_cmp_eq_u32 s3, 7
    s_waitcnt vmcnt({NPF}) lgkmcnt(0)
    s_barrier
    s_cbranch_scc1 L_pub7
    ds_read_b64_tr_b16 v[24:25], v38
    ds_read_b64_tr_b16 v[26:27], v38 offset:{4*LNS}
    s_waitcnt lgkmcnt(0)
    buffer_store_dwordx4 v[24:27], v39, s[60:63], s8 offen sc1
    L_pubdone:
    buffer_load_dwordx4 v[32:35], v11, s[56:59], 0 offen
    """)
    stamp(2, "cf")
    E(f"""
    s_mov_b64 s[64:65], s[44:45]
    s_mov_b64 s[66:67], s[54:55]
    s_cmp_ge_u32 s2, 224
    s_cbranch_scc1 L_other
    """)
    if WPF == 2: wpf()
    if opt.get("prio", 1): E("s_cmp_lt_u32 s3, 4\n s_cbranch_scc1 L_kgen\n s_setprio 1")
    E(f"""
    L_kgen:
    s_mul_i32 s8, s3, {TABW}
    s_mov_b32 m0, s8
    s_lshl_b32 s10, s100, 16
    s_and_b32 s9, s100, 0xffff0000
    s_bitcmp1_b32 s3, 0
    s_cselect_b32 s9, s9, s10
    v_mov_b32 v20, 0x{LOG2E:x}
    v_mul_f32 v18, s9, v20
    v_exp_f32 v18, v18
    v_mov_b32 v21, 0x3c00
    v_mul_f32 v12, v53, v51
    ds_write_addtid_b32 v21
    v_cvt_pk_bf16_f32 v18, 0, v18
    v_mul_f32 v13, v53, v50
    v_mul_f32 v20, v18, v20
    v_mul_f32 v21, 0x{INV2PI:x}, v18
    v_mul_f32 v48, v48, v20
    v_mul_f32 v49, v49, v21
    v_exp_f32 v58, v48
    v_rndne_f32 v20, v49
    v_fma_f32 v60, v52, v50, -v12
    v_sub_f32 v49, v49, v20
    v_fma_f32 v61, -v52, v51, -v13
    v_cos_f32 v54, v49
    v_sin_f32 v55, v49
    v_max_f32_e64 v19, |v60|, |v61|
    v_pk_mul_f32 v[54:55], v[54:55], v[58:59] op_sel_hi:[1,0]
    v_or_b32 v19, 1, v19
    """)
    def wr(reg, row): return f"ds_write_addtid_b32 v{reg} offset:{row*ROW}"
    def cp(d, p, q, conj):
        ng = "neg_hi:[0,1,0]" if conj else "neg_lo:[0,1,0]"
        return (f"v_pk_mul_f16 v{d}, v{p}, v{q} op_sel:[0,0] op_sel_hi:[1,0]",
                f"v_pk_fma_f16 v{d}, v{p}, v{q}, v{d} op_sel:[1,1,0] op_sel_hi:[0,1,1] {ng}")
    def cp32(d, p, q, conj):
        ng = "neg_hi:[0,1,0]" if conj else "neg_lo:[0,1,0]"
        pr = lambda r: f"v[{r}:{r+1}]"
        return (f"v_pk_mul_f32 {pr(d)}, {pr(p)}, {pr(q)} op_sel_hi:[1,0]",
                f"v_pk_fma_f32 {pr(d)}, {pr(p)}, {pr(q)}, {pr(d)} op_sel:[1,1,0] op_sel_hi:[0,1,1] {ng}")
    FR = lambda j: 192 + j
    cur, nxt = 54, 56
    h16 = {1: 14, 2: 15, 4: 16, 8: FR(1), 16: FR(2), 32: FR(4), 64: FR(8), 128: FR(16)}
    fill = [f"v_max_u32_dpp v19, v19, v19 {s}" for s in STEPS] + ["v_readlane_b32 s9, v19, 63", "v_mov_b32 v19, s9"]
    for k in (1,2,4,8,16,32,64,128):
        a, b = cp32(nxt, cur, cur, False)
        E(a); E(f"v_cvt_pk_f16_f32 v{h16[k]}, v{cur}, v{cur+1}"); E(b); E(fill.pop(0))
        if k >= 8: E(wr(h16[k], k//8))
        cur, nxt = nxt, cur
    e256 = cur
    E(f"""
    s_and_b32 s9, s3, 1
    s_lshl_b32 s10, s9, 4
    s_add_u32 s10, s10, {M_MX}
    s_lshr_b32 s11, s3, 1
    s_lshl2_add_u32 s11, s11, s10
    v_mov_b32 v111, s11
    ds_write_b32 v111, v19
    v_mov_b32 v112, s10
    v_and_b32 v22, 31, v1
    v_lshrrev_b32 v23, 5, v1
    v_mul_u32_u24 v110, {ROW}, v22
    v_lshl_add_u32 v110, v23, 4, v110
    v_add_u32 v110, s8, v110
    s_lshl_b32 s10, s3, 5
    s_add_u32 s10, s10, {M_FL}
    v_mov_b32 v10, s10
    """)
    order = [3,5,6,9,7,10,11,12,13,14,15] + list(range(17,32))
    def fdst(j): return FR(j) if j <= 16 else 212 + (j & 3)
    def uaddr():
        E(f"""
        v_and_b32 v4, 255, v0
        s_mul_i32 s12, s2, {USG}
        s_add_u32 s12, s12, 0x{WS_U:x}
        v_lshl_add_u32 v4, v4, 4, s12
        v_add_u32 v5, 4096, v4
        """)
    def uload():
        E("s_cmp_lt_u32 s3, 4\n s_cbranch_scc1 L_nouload")
        uaddr()
        E(f"""
        buffer_load_dwordx4 v[96:99], v4, s[60:63], 0 offen sc1
        buffer_load_dwordx4 v[100:103], v5, s[60:63], 0 offen sc1
        L_nouload:
        """)
    upos = opt.get("upos", 99)
    for a in range(0, 26, 2):
        j1, j2 = order[a], order[a+1]
        f = lambda j: cp(fdst(j), FR(1 << (j.bit_length()-1)), FR(j - (1 << (j.bit_length()-1))), False)
        p1, p2 = f(j1), f(j2)
        for s in (p1[0], p2[0], p1[1], p2[1], wr(fdst(j1), j1), wr(fdst(j2), j2)): E(s)
        if a == 16: E("ds_read_b128 v[24:27], v112")
        if a == 24:
            E(f"""
            s_waitcnt lgkmcnt(8)
            L_mxchk:
            v_min3_u32 v22, v24, v25, v26
            v_max3_u32 v24, v24, v25, v26
            v_min_u32 v22, v22, v27
            v_max_u32 v24, v24, v27
            v_cmp_eq_u32 vcc, 0, v22
            v_lshrrev_b32 v24, 23, v24
            s_cbranch_vccnz L_mxretry
            v_max_u32 v24, 8, v24
            v_sub_u32 v22, 258, v24
            v_lshlrev_b32 v22, 23, v22
            v_add_u32 v24, -121, v24
            v_pk_mul_f32 v[60:61], v[60:61], v[22:23] op_sel_hi:[1,0]
            v_ldexp_f32 v18, v18, v24
            """)
    for k in range(8): E(f"ds_read_b128 v[{128+4*k}:{131+4*k}], v110 offset:{32*k}")
    if upos == 0: uload()
    xs = {0:0, 1:8, 2:12, 3:16, 4:20, 5:18, 6:22, 7:19, 8:23}
    xh = {k: 216+k for k in range(9)}
    g = {n: 226+i for i, n in enumerate((1,2,3,4,5,6,7,258,260,262,516,772))}
    slot = {1:1,2:2,3:3,4:4,5:5,6:6,7:7,258:9,260:10,262:11,516:14,772:17}
    defs = [(1,xh[0],14),(2,xh[0],15),(4,xh[0],16),(258,xh[1],15),(3,g[2],14),(260,xh[1],16),(5,g[4],14),(6,g[4],15),
            (516,xh[2],16),(262,g[260],15),(7,g[6],14),(772,xh[3],16)]
    E(f"v_cvt_pk_f16_f32 v{xh[0]}, v60, v61")
    src = 60
    for k in range(1, 9):
        dst = 62 if k & 1 else 12
        a, b = cp32(dst, src, e256, True)
        n, p, q = defs[k-1]
        c = cp(g[n], p, q, True)
        E(a)
        if k == 1: E(wr(xh[0], 32))
        E(c[0]); E(b); E(c[1]); E(f"v_cvt_pk_f16_f32 v{xh[k]}, v{dst}, v{dst+1}"); E(wr(g[n], 32+slot[n])); E(wr(xh[k], 32+xs[k]))
        if k in (2,4): E(wr(xh[k], 32+xs[k]+1))
        if upos == k: uload()
        src = dst
    for a in (8, 10):
        (n1,p1,q1),(n2,p2,q2) = defs[a], defs[a+1]
        c1, c2 = cp(g[n1],p1,q1,True), cp(g[n2],p2,q2,True)
        for s in (c1[0], c2[0], c1[1], c2[1], wr(g[n1], 32+slot[n1]), wr(g[n2], 32+slot[n2])): E(s)
    for k in range(8): E(f"ds_read_b128 v[{160+4*k}:{163+4*k}], v110 offset:{32*ROW+32*k}")
    if upos == 99: uload()
    for k in range(8):
        E(f"s_waitcnt lgkmcnt({7-k})")
        E(f"v_mfma_f32_32x32x16_f16 v[64:79], v[{160+4*k}:{163+4*k}], v[{128+4*k}:{131+4*k}], {'0' if k == 0 else 'v[64:79]'}")
    stamp(3, "c")
    E("s_cmp_ge_u32 s3, 4\n s_cbranch_scc1 L_help")
    E(f"""
    s_mul_i32 s10, s9, {TABW}
    s_add_u32 s10, s10, {4*TABW}
    v_lshl_add_u32 v113, v1, 2, s10
    s_lshl_b32 s11, s9, 5
    s_add_u32 s11, s11, {M_FL+128+28}
    v_mov_b32 v120, s11
    s_xor_b32 s11, s3, 2
    s_mul_i32 s10, s11, {TABW}
    v_lshl_add_u32 v114, v1, 2, s10
    s_lshl_b32 s11, s11, 5
    s_add_u32 s11, s11, {M_FL+28}
    v_mov_b32 v117, s11
    s_mul_i32 s10, s9, {KSTR}
    s_add_u32 s10, s10, {KB}
    v_add_u32 v115, s10, v11
    s_cmp_ge_u32 s3, 2
    s_cbranch_scc1 L_expB
    """)
    def caddr():
        E(f"""
        v_and_b32 v4, 31, v1
        v_lshrrev_b32 v6, 5, v1
        v_lshlrev_b32 v4, 4, v4
        v_lshl_add_u32 v116, v6, 3, v4
        v_lshlrev_b32 v5, 6, v6
        v_sub_u32 v4, v4, v5
        s_mul_i32 s12, s9, {USTR}
        s_add_u32 s12, s12, {UB+64}
        v_add_u32 v4, s12, v4
        v_lshrrev_b32 v5, 4, v1
        v_lshlrev_b32 v5, 2, v5
        v_and_b32 v6, 3, v1
        v_add_u32 v5, v5, v6
        v_bfe_u32 v6, v1, 2, 2
        v_sub_u32 v5, v5, v6
        s_add_u32 s12, s10, 32
        v_lshl_add_u32 v5, v5, 3, s12
        v_sub_u32 v6, 62, v1
        v_sub_u32 v7, 61, v1
        v_sub_u32 v8, 60, v1
        v_ashrrev_i32 v6, 31, v6
        v_ashrrev_i32 v7, 31, v7
        v_ashrrev_i32 v8, 31, v8
        """)
    def hread(tag, ks):
        E(f"L_hp{tag}:\n ds_read2_b32 v[12:13], v120 offset0:0 offset1:16")
        for k in ks: E(f"ds_read2st64_b32 v[{80+2*(k-ks[0])}:{81+2*(k-ks[0])}], v113 offset0:{k} offset1:{119+k}")
        E(f"""
        s_waitcnt lgkmcnt({len(ks)})
        v_min_u32 v12, v12, v13
        v_cmp_eq_u32 vcc, 0, v12
        s_cbranch_vccnz L_hp{tag}
        """)
    caddr()
    E(f"""
    v_add_u32 v116, s10, v116
    s_lshl2_add_u32 s12, s9, {M_SC}
    v_mov_b32 v118, s12
    """)
    hread("A", list(range(9)))
    for k in range(8, 12): E(f"ds_write_addtid_b32 v{64+k} offset:{256*k}")
    E("ds_write_b32 v10, v3 offset:28\n ds_write_b32 v118, v18\n s_waitcnt lgkmcnt(6)")
    for k in range(9): E(f"v_add_f32 v{80+2*k}, v{80+2*k}, v{81+2*k}")
    for k in range(9): E(f"v_add_f32 v{64+k}, v{64+k}, v{80+2*k}")
    E("L_ppA:\n ds_read_b32 v12, v117")
    for k in range(0, 8, 2): E(f"ds_read2st64_b32 v[{100+k}:{101+k}], v114 offset0:{k} offset1:{k+1}")
    E(f"""
    ds_read_b32 v108, v114 offset:2048
    s_waitcnt lgkmcnt(5)
    v_cmp_eq_u32 vcc, 0, v12
    s_cbranch_vccnz L_ppA
    s_waitcnt lgkmcnt(3)
    v_pk_add_f32 v[64:65], v[64:65], v[100:101]
    v_pk_add_f32 v[66:67], v[66:67], v[102:103]
    s_waitcnt lgkmcnt(0)
    v_add_f32 v72, v72, v108
    v_pk_add_f32 v[68:69], v[68:69], v[104:105]
    v_pk_add_f32 v[70:71], v[70:71], v[106:107]
    v_cvt_pk_f16_f32 v20, v64, v65
    v_cvt_pk_f16_f32 v21, v66, v67
    v_mov_b32_dpp v80, v72 wave_rol:1 {DPPF}
    ds_write_b64 v116, v[20:21] offset:64
    v_cvt_pk_f16_f32 v24, v68, v68
    v_mov_b32_dpp v80, v68 wave_shl:1 {DPPF}
    v_cvt_pk_f16_f32 v25, v69, v70
    v_cvt_pk_f16_f32 v26, v70, v70
    v_mov_b32_dpp v71, v80 {IDQ} row_mask:0xc bank_mask:0xf
    v_cvt_pk_f16_f32 v27, v71, v80
    ds_write_b128 v115, v[24:27] offset:{64+512}
    s_lshl_b32 m0, s3, 13
    s_waitcnt lgkmcnt(0)
    s_barrier
    """)
    stamp(4, "c")
    def kread(b):
        return [f"ds_read_b64_tr_b16 v[{128+4*b}:{129+4*b}], v5 offset:{128*b+32}", f"ds_read_b64_tr_b16 v[{130+4*b}:{131+4*b}], v5 offset:{128*b}"]
    def dumpK():
        if dump != "K": return
        E(f"""
        s_lshl2_add_u32 s12, s2, s3
        s_lshl_b32 s12, s12, 12
        s_add_u32 s12, s12, 0x{WS_DBG+0x100000:x}
        """)
        for k in range(4):
            E(f"ds_read_b128 v[24:27], v115 offset:{64+1024*k}\n s_waitcnt lgkmcnt(0)\n buffer_store_dwordx4 v[24:27], v11, s[60:63], s12 offen offset:{1024*k}\n s_waitcnt vmcnt(0)")
    def reduce_ops(ty, ti, first, gs):
        A = ACC[ty][ti]; P = ACC[ty][ti-1]; I0 = TILES[ty][ti]
        L = []
        src = {}
        for g_ in gs:
            for c in (1,2,3):
                cur_ = A + 4*g_ + c
                prev = (A + 4*(g_-1) + c) if g_ > 0 else (P + 12 + c)
                dst = 12 + 3*g_ + (c-1)
                if g_ == 0 and first: src[(g_,c)] = cur_
                else:
                    L.append(f"v_bfi_b32 v{dst}, v{5+c}, v{prev}, v{cur_}"); src[(g_,c)] = dst
        for g_ in gs: L.append(f"v_add_f32_dpp v{12+3*g_+1}, v{src[(g_,3)]}, v{src[(g_,2)]} wave_ror:1 {DPPF}")
        for g_ in gs: L.append(f"v_add_f32_dpp v{12+3*g_}, v{12+3*g_+1}, v{src[(g_,1)]} wave_ror:1 {DPPF}")
        for g_ in gs: L.append(f"v_add_f32_dpp v{24+g_}, v{12+3*g_}, v{A+4*g_} wave_ror:1 {DPPF}")
        for g_ in gs:
            w = f"ds_write_addtid_b32 v{24+g_} offset:{4*(32*I0+64*g_)}"
            if g_ == 0 and first: w = "s_mov_b32 exec_lo, 0\n" + w + "\ns_mov_b32 exec_lo, -1"
            L.append(w)
        L.append(f"ds_write_b32 v10, v3 offset:{4*ti}")
        return L
    NEED = {0: [{0,1,2}, {2}, {3}], 1: [set(), {0,1}, {1,2}]}
    def conv_stream(ty, barpos, emit):
        out = E if emit else (lambda s: None)
        tiles = TILES[ty]
        jobs = []
        for ti, I0 in enumerate(tiles):
            nb = (I0 + 9)//2
            for b in range(nb): jobs.append((ti, I0, b, nb))
        N = len(jobs); D = 5; RING = 6; NPRE = 5; CAP = opt.get("cap", 4)
        q = []; covered = {}
        firstuse = {}
        for n, j in enumerate(jobs): firstuse.setdefault(j[2], n)
        kmax = max(j[3] for j in jobs)
        def issue(text, tag): out(text); q.append(tag)
        def waitfor(tags, n):
            last = -1
            for i, t in enumerate(q):
                if t in tags: last = i
            if last < 0: return 0
            k = min(len(q) - 1 - last, 15)
            out(f"s_waitcnt lgkmcnt({k})")
            for t in q[:len(q)-k]: covered[t] = n
            del q[:len(q)-k]
            return 1
        def uread(n):
            ti, I0, b, nb = jobs[n]
            r = 40 + 4*(n % RING)
            issue(f"ds_read_b128 v[{r}:{r+3}], v4 offset:{448 + (I0-2*b)*64}", "u%d" % n)
        out('; noalign')
        for n in range(D):
            uread(n)
            for s in kread(n): issue(s, "k%d" % n)
        kl = NPRE
        side = []; nbar = 0; left = {}
        ready = [None]*3
        waitfor({"u0", "k%d" % jobs[0][2]}, 0)
        for n, (ti, I0, b, nb) in enumerate(jobs):
            A = ACC[ty][ti]; r = 40 + 4*(n % RING)
            out(f"v_mfma_f32_32x32x16_f16 v[{A}:{A+15}], v[{r}:{r+3}], v[{128+4*b}:{131+4*b}], {'0' if b == 0 else f'v[{A}:{A+15}]'}")
            if emit and opt.get("cst") and n in (0, 14, 28, 42, 56, 70): E(f"s_memtime s[{86+2*(n//14)}:{87+2*(n//14)}]")
            if b == nb - 1:
                first = ti == 0 or tiles[ti-1] + 8 != I0
                gs = [3] if I0 < 0 else [0,1,2,3]
                ops = reduce_ops(ty, ti, first, gs)
                side += [(n + 3, ti, s) for s in ops]; left[ti] = len(ops)
            cap = CAP
            dowait = (n % 2 == 0) or n < 2
            if dowait: cap -= 1
            if n + D < N: uread(n + D); cap -= 1
            avail = side and side[0][0] <= n
            if kl < kmax and (firstuse[kl] - n <= D + 1 or not avail):
                for s in kread(kl): issue(s, "k%d" % kl)
                kl += 1; cap -= 2
            else: cap += opt.get("vbonus", 1)
            while side and side[0][0] <= n and cap > 0:
                _, tj, s = side.pop(0); left[tj] -= 1
                if "ds_" in s:
                    issue(s, "y%d_%d" % (tj, left[tj])); cap -= s.count("\n") + 1
                else: out(s); cap -= 1
            if dowait:
                tags = set()
                for m in (n+1, n+2):
                    if m < N: tags |= {"u%d" % m, "k%d" % jobs[m][2]}
                if n == 0: tags = {"u1", "k%d" % jobs[1][2]}
                if n == 1: tags = {"u2", "k%d" % jobs[2][2]}
                waitfor(tags, n)
            for r_ in range(3):
                if ready[r_] is None and all(("y%d_0" % t) in covered for t in NEED[ty][r_]): ready[r_] = n + 1
        out('; align')
        for _, tj, s in side: out(s)
        return ready
    bp = None
    print("ready", conv_stream(0, bp, False), conv_stream(1, bp, False))
    dumpK()
    if opt.get("cprio", 1): E("s_setprio 2")
    conv_stream(0, bp, True)
    E("s_branch L_convdone")
    E.label("L_expB"); E.flush()
    caddr()
    E(f"""
    v_and_b32 v121, 1, v1
    v_sub_u32 v121, 0, v121
    v_and_b32 v16, 15, v1
    v_lshl_add_u32 v16, v16, 2, s10
    v_mov_b32 v17, 0
    ds_write_b32 v16, v17
    """)
    hread("B", [8, 9, 10, 11])
    for k in range(9): E(f"ds_write_addtid_b32 v{64+k} offset:{256*k}")
    E("ds_write_b32 v10, v3 offset:28\n s_waitcnt lgkmcnt(10)")
    for k in range(4): E(f"v_add_f32 v{80+2*k}, v{80+2*k}, v{81+2*k}")
    for k in range(4): E(f"v_add_f32 v{72+k}, v{72+k}, v{80+2*k}")
    E(f"""
    s_and_b32 s9, s3, 1
    s_lshl_b32 m0, s9, 13
    L_ppB:
    ds_read_b32 v12, v117
    ds_read2st64_b32 v[104:105], v114 offset0:8 offset1:9
    ds_read2st64_b32 v[106:107], v114 offset0:10 offset1:11
    s_waitcnt lgkmcnt(2)
    v_cmp_eq_u32 vcc, 0, v12
    s_cbranch_vccnz L_ppB
    s_waitcnt lgkmcnt(0)
    v_pk_add_f32 v[74:75], v[74:75], v[106:107]
    v_pk_add_f32 v[72:73], v[72:73], v[104:105]
    v_mov_b32_dpp v81, v74 wave_rol:1 {DPPF}
    v_mov_b32_dpp v82, v75 wave_rol:1 {DPPF}
    v_mov_b32_dpp v83, v75 wave_rol:1 {DPPF}
    v_mov_b32_dpp v81, v72 wave_shl:1 {DPPF}
    v_mov_b32_dpp v82, v74 wave_shl:1 {DPPF}
    v_cvt_pk_f16_f32 v85, v73, v73
    v_bfi_b32 v84, v121, v81, v72
    v_cvt_pk_f16_f32 v22, v84, v81
    v_cvt_pk_f16_f32 v20, v72, v72
    v_cvt_pk_f16_f32 v21, v72, v73
    v_cvt_pk_f16_f32 v23, v81, v81
    v_mov_b32_dpp v22, v85 {IDQ} row_mask:0x3 bank_mask:0xf
    ds_write_b128 v115, v[20:23] offset:{64+512*3}
    v_bfi_b32 v84, v121, v82, v74
    v_cvt_pk_f16_f32 v88, v74, v74
    v_cvt_pk_f16_f32 v90, v84, v82
    v_cvt_pk_f16_f32 v91, v82, v82
    v_mov_b32 v89, v88
    ds_write_b128 v115, v[88:91] offset:{64+512*5}
    v_bfi_b32 v84, v121, v83, v75
    v_cvt_pk_f16_f32 v92, v75, v75
    v_cvt_pk_f16_f32 v94, v84, v83
    v_cvt_pk_f16_f32 v95, v83, v83
    v_mov_b32 v93, v92
    s_mov_b32 exec_hi, 0
    ds_write_b128 v115, v[92:95] offset:{64+512*7}
    s_mov_b32 exec_hi, -1
    s_waitcnt lgkmcnt(0)
    s_barrier
    """)
    stamp(4, "c")
    dumpK()
    if opt.get("cprio", 1): E("s_setprio 2")
    conv_stream(1, bp, True)
    E.label("L_convdone"); E.flush()
    stamp(5, "c")
    E(f"""
    s_setprio 0
    s_waitcnt vmcnt(0)
    L_cand0:
    s_mov_b32 s10, 0x{WS_CAND:x}
    s_mov_b32 s9, 0
    s_cmp_lg_u32 s3, 0
    s_cbranch_scc1 L_cd1
    """)
    cand_issue()
    E.label("L_cd1")
    prep()
    E("s_cmp_lg_u32 s3, 0\n s_cbranch_scc1 L_ebar")
    cand_check("h", 4)
    E(f"""
    v_mov_b32 v113, {M_BEST}
    s_cmp_lg_u32 s2, 0
    v_mov_b32 v112, s12
    ds_write_b32 v113, v112
    s_cbranch_scc1 L_ebar
    v_mov_b32 v112, s68
    v_mov_b32 v113, s69
    v_mov_b32 v114, s70
    v_mov_b32 v115, s71
    v_mov_b32 v116, 0
    buffer_store_dwordx4 v[112:115], v116, s[60:63], 0 offen sc1
    s_branch L_ebar
    """)
    E.label("L_help"); E.flush()
    E(f"""
    s_and_b32 s72, s68, 0x{TAGM:x}
    s_and_b32 s73, s69, 0x{TAGM:x}
    s_and_b32 s74, s70, 0x{TAGM:x}
    s_and_b32 s75, s71, 0x{TAGM:x}
    v_and_b32 v7, 1, v0
    v_mul_u32_u24 v7, {USTR}, v7
    v_bfe_u32 v8, v0, 1, 7
    v_lshl_add_u32 v7, v8, 4, v7
    v_add_u32 v7, {UB+512}, v7
    s_mul_i32 s10, s9, {USTR}
    s_add_u32 s10, s10, {UB}
    v_lshl_add_u32 v8, v1, 3, s10
    v_mov_b32 v12, 0
    v_mov_b32 v13, 0
    ds_write_b64 v8, v[12:13]
    s_mov_b32 s9, 0
    """)
    for k in range(12): E(f"ds_write_addtid_b32 v{64+k} offset:{256*k}")
    E("ds_write_b32 v10, v3 offset:28")
    if upos == 100: uaddr()
    if upos == 100: E("buffer_load_dwordx4 v[96:99], v4, s[60:63], 0 offen sc1\n buffer_load_dwordx4 v[100:103], v5, s[60:63], 0 offen sc1")
    E("s_setprio 0\n s_waitcnt vmcnt(2)")
    def yaddr():
        E(f"""
        v_and_b32 v56, 255, v0
        v_min_u32 v56, 223, v56
        s_mul_i32 s12, s2, {YSG}
        s_add_u32 s12, s12, 0x{WS_Y:x}
        v_lshl_add_u32 v126, v56, 4, s12
        v_and_b32 v57, 1, v56
        v_mul_u32_u24 v57, {4*ERS}, v57
        v_lshrrev_b32 v56, 1, v56
        v_lshl_add_u32 v57, v56, 2, v57
        v_add_u32 v127, {EB}, v57
        """)
    def yissue():
        E("buffer_load_dwordx4 v[40:43], v126, s[60:63], 0 offen sc1\n buffer_load_dwordx4 v[44:47], v126, s[60:63], 0 offen offset:3584 sc1")
    E(f"""
    v_lshlrev_b32 v8, 2, v1
    v_add_u32 v8, {M_FL}, v8
    v_bfe_u32 v70, v0, 3, 5
    v_bfe_u32 v71, v1, 1, 2
    v_and_b32 v72, 1, v1
    v_lshl_add_u32 v73, v72, 4, v71
    v_lshlrev_b32 v73, 2, v73
    v_mul_u32_u24 v71, {YSG}, v71
    v_lshl_add_u32 v71, v72, 4, v71
    s_mov_b32 s12, {4*YSG}
    v_lshl_add_u32 v113, v70, 7, v73
    v_mad_u32_u24 v115, v70, s12, v71
    v_add_u32 v114, 8192, v113
    s_cmp_eq_u32 s3, 6
    s_cselect_b32 s13, 25, 32
    s_mov_b32 s80, 0x0303
    s_mov_b32 s81, 0x06060000
    s_cselect_b32 s80, 0x01010404, s80
    s_cselect_b32 s81, 0x08080000, s81
    s_cmp_eq_u32 s3, 7
    s_cselect_b32 s80, 0x03030000, s80
    s_cselect_b32 s81, 0x1010, s81
    s_cmp_eq_u32 s3, 5
    s_cselect_b32 s80, 0x0606, s80
    s_cselect_b32 s81, 0x04040808, s81
    s_cselect_b32 s13, 40, s13
    v_add_u32 v70, s13, v70
    v_cmp_eq_u32 vcc, 48, v70
    s_cselect_b64 vcc, vcc, 0
    s_lshl_b32 s8, s2, 5
    s_add_u32 s8, s8, 0x{WS_Y:x}
    v_cndmask_b32 v70, v70, 40, vcc
    v_lshl_add_u32 v116, v70, 7, v73
    v_mad_u32_u24 v118, v70, s12, v71
    v_add_u32 v117, 8192, v116
    """)
    yaddr()
    prep()
    E("s_mov_b32 s9, 0")
    E.label("L_uchk")
    E("s_waitcnt vmcnt(0)")
    for k in range(8): E(f"v_xor_b32 v{96+k}, s{72+(k&3)}, v{96+k}")
    E(f"""
    v_or3_b32 v56, v96, v97, v98
    v_or3_b32 v57, v99, v100, v101
    v_or3_b32 v56, v56, v102, v103
    v_or_b32 v56, v56, v57
    v_and_b32 v56, v3, v56
    v_cmp_ne_u32 vcc, 0, v56
    s_add_u32 s9, s9, 1
    s_cbranch_vccz L_uok
    s_cmp_gt_u32 s9, {SPIN}
    s_cbranch_scc1 L_uok
    {"s_sleep %d" % opt["usleep"] if opt.get("usleep") else ""}
    buffer_load_dwordx4 v[96:99], v4, s[60:63], 0 offen sc1
    buffer_load_dwordx4 v[100:103], v5, s[60:63], 0 offen sc1
    s_branch L_uchk
    L_uok:
    ds_write_b128 v7, v[96:99]
    ds_write_b128 v7, v[100:103] offset:2048
    s_mov_b32 s99, s9
    v_mov_b32 v64, {M_SC}
    s_waitcnt lgkmcnt(0)
    """)
    stamp(4, "h")
    E("""
    s_barrier
    s_setprio 3
    ds_read_b64 v[66:67], v64
    """)
    def flagwait(tag, mask):
        E(f"""
        L_fl{tag}:
        {"s_sleep %d" % opt.get("fsleep", 1) if opt.get("fsleep", 1) else ""}
        ds_read_b32 v68, v8
        s_waitcnt lgkmcnt(0)
        v_cmp_eq_u32 vcc, 0, v68
        s_and_b32 s12, vcc_lo, {mask}
        s_cbranch_scc1 L_fl{tag}
        """)
    for r_, a0 in enumerate((113, 116)):
        o = 88
        flagwait(r_, f"s{80+r_}")
        E(f"""
        ds_read2_b32 v[{o}:{o+1}], v{a0} offset0:0 offset1:4
        ds_read2_b32 v[{o+4}:{o+5}], v{a0+1} offset0:0 offset1:4
        ds_read2_b32 v[{o+2}:{o+3}], v{a0} offset0:8 offset1:12
        ds_read2_b32 v[{o+6}:{o+7}], v{a0+1} offset0:8 offset1:12
        s_waitcnt lgkmcnt(2)
        v_pk_mul_f32 v[{o}:{o+1}], v[{o}:{o+1}], v[66:67] op_sel_hi:[1,0]
        v_pk_mul_f32 v[{o+4}:{o+5}], v[{o+4}:{o+5}], v[66:67] op_sel:[0,1] op_sel_hi:[1,1]
        s_waitcnt lgkmcnt(0)
        v_pk_mul_f32 v[{o+2}:{o+3}], v[{o+2}:{o+3}], v[66:67] op_sel_hi:[1,0]
        v_pk_mul_f32 v[{o+6}:{o+7}], v[{o+6}:{o+7}], v[66:67] op_sel:[0,1] op_sel_hi:[1,1]
        v_cvt_pk_bf16_f32 v{100+4*r_}, v{o}, v{o+4}
        v_cvt_pk_bf16_f32 v{101+4*r_}, v{o+1}, v{o+5}
        v_cvt_pk_bf16_f32 v{102+4*r_}, v{o+2}, v{o+6}
        v_cvt_pk_bf16_f32 v{103+4*r_}, v{o+3}, v{o+7}
        buffer_store_dwordx4 v[{100+4*r_}:{103+4*r_}], v{a0+2}, s[60:63], s8 offen sc1
        """)
    stamp(5, "h")
    flagwait(2, "0x08081010")
    E(f"""
    s_mov_b32 s9, 0
    s_cmp_lt_u32 s2, {opt.get('early', 128)}
    s_cbranch_scc1 L_yearly
    s_sleep {opt.get('hsleep', 12)}
    L_yearly:
    """)
    if opt.get("esleep", 0): E(f"s_sleep {opt['esleep']}")
    E.label("L_yld"); E.flush()
    if opt.get("est"): E("s_memrealtime s[86:87]")
    yissue()
    E(f"""
    L_ychk:
    s_waitcnt vmcnt(0)
    v_max3_u32 v58, v40, v41, v42
    v_max3_u32 v59, v43, v44, v45
    v_max3_u32 v58, v58, v46, v47
    v_max_u32 v58, v58, v59
    v_cmp_eq_u32 vcc, -1, v58
    s_add_u32 s9, s9, 1
    s_cbranch_vccz L_yok
    s_cmp_gt_u32 s9, {SPIN}
    s_cbranch_scc1 L_yok
    """)
    if opt.get("ysleep", 0): E(f"s_sleep {opt['ysleep']}")
    if opt.get("ymask", 1): E("s_mov_b64 exec, vcc")
    yissue()
    if opt.get("ymask", 1): E("s_mov_b64 exec, -1")
    E(f"""
    s_branch L_ychk
    L_yok:
    {"s_memrealtime s[88:89]" if opt.get("est") else ""}
    """)
    for k in range(8): E(f"ds_write_b32 v127, v{40+k} offset:{(k&3)*ERS + (448 if k >= 4 else 0)}")
    E(f"""
    L_ebar:
    s_mul_i32 s13, s3, {ERS}
    s_add_u32 s13, s13, {EB}
    v_add_u32 v61, s13, v11
    v_mov_b32 v62, {M_BEST}
    s_waitcnt lgkmcnt(0)
    s_barrier
    ds_read_b128 v[40:43], v61
    ds_read_b32 v63, v62
    s_waitcnt lgkmcnt(1)
    """)
    for i in range(4):
        E(f"v_lshlrev_b32 v{44+2*i}, 16, v{40+i}\n v_and_b32 v{45+2*i}, 0xffff0000, v{40+i}")
    for i in range(4): E(f"v_pk_fma_f32 v[{12+2*i}:{13+2*i}], v[{44+2*i}:{45+2*i}], v[{20+2*i}:{21+2*i}], v[{12+2*i}:{13+2*i}]")
    E(f"""
    s_waitcnt lgkmcnt(0)
    v_cmp_eq_u32 vcc, s4, v63
    v_cvt_pk_bf16_f32 v40, v12, v13
    v_cvt_pk_bf16_f32 v41, v14, v15
    v_cvt_pk_bf16_f32 v42, v16, v17
    v_cvt_pk_bf16_f32 v43, v18, v19
    s_cbranch_vccnz L_fin
    buffer_store_dwordx4 v[40:43], v9, s[64:67], s5 offen {OSTF}
    """)
    stamp(6, "cf")
    E.label("L_fin"); E.flush()
    if opt.get("span"):
        E(f"""
        s_waitcnt vmcnt(0)
        L_spanw:
        s_memrealtime s[86:87]
        s_waitcnt lgkmcnt(0)
        s_sub_u32 s86, s86, s84
        s_cmp_lt_u32 s86, {opt["span"]}
        s_cbranch_scc1 L_spanw
        """)
    if stamps:
        E("s_waitcnt vmcnt(0)\n s_mov_b32 s100, s99")
        stamp(7)
        E(f"""
        s_waitcnt lgkmcnt(0)
        s_lshl_b32 s8, s2, 3
        s_add_u32 s8, s8, s3
        s_lshl_b32 s8, s8, 6
        s_add_u32 s8, s8, 0x{WS_DBG:x}
        v_mov_b32 v4, 0
        """)
        for i in range(8):
            E(f"v_mov_b32 v5, s{84+2*i}\n buffer_store_dword v5, v4, s[60:63], s8 offen offset:{4*i}")
        E("v_mov_b32 v5, s9\n buffer_store_dword v5, v4, s[60:63], s8 offen offset:32")
        E("v_mov_b32 v5, s100\n buffer_store_dword v5, v4, s[60:63], s8 offen offset:36")
    E.label("L_end")
    E("s_endpgm")
    E.label("L_mxretry"); E.flush()
    E("ds_read_b128 v[24:27], v112\n s_waitcnt lgkmcnt(0)\n s_branch L_mxchk")
    E.label("L_pub7"); E.flush()
    E(f"""
    v_mov_b32 v16, {M_KEYS}
    ds_read_b128 v[20:23], v16
    ds_read_b128 v[24:27], v16 offset:16
    v_mov_b32 v19, s69
    s_lshl_b32 s13, s2, 3
    s_add_u32 s13, s13, 0x{WS_CAND:x}
    v_cmp_eq_u32 vcc, 0, v1
    v_mov_b32 v17, {OOB}
    v_cndmask_b32 v17, v17, v1, vcc
    v_add_u32 v16, {LNB}, v11
    s_movk_i32 s14, {LNS}
    s_lshl_b32 s12, s2, 10
    s_add_u32 s12, s12, 0x{WS_BEST:x}
    s_waitcnt lgkmcnt(0)
    v_max3_u32 v20, v20, v21, v22
    v_max3_u32 v24, v24, v25, v26
    v_max3_u32 v18, v20, v23, v24
    v_max_u32 v18, v18, v27
    buffer_store_dwordx2 v[18:19], v17, s[60:63], s13 offen sc1
    v_not_b32 v20, v18
    v_bfe_u32 v20, v20, 2, 3
    v_mad_u32_u24 v16, v20, s14, v16
    ds_read_b128 v[24:27], v16
    s_waitcnt lgkmcnt(0)
    v_bfi_b32 v24, v3, s68, v24
    v_bfi_b32 v25, v3, s69, v25
    v_bfi_b32 v26, v3, s70, v26
    v_bfi_b32 v27, v3, s71, v27
    buffer_store_dwordx4 v[24:27], v9, s[60:63], s12 offen sc1
    s_branch L_pubdone
    """)
    E.label("L_other"); E.flush()
    E(f"""
    s_and_b32 s72, s68, 0x{TAGM:x}
    s_and_b32 s73, s69, 0x{TAGM:x}
    s_and_b32 s74, s70, 0x{TAGM:x}
    s_and_b32 s75, s71, 0x{TAGM:x}
    s_and_b32 s76, s68, 0xff
    s_bfe_u32 s77, s68, 0x80008
    s_bfe_u32 s78, s68, 0x80010
    s_lshr_b32 s79, s68, 24
    s_mov_b32 s10, 0x{WS_CAND:x}
    s_mov_b32 s9, 0
    s_add_i32 s6, s2, -224
    s_cmp_ge_u32 s2, 252
    s_cbranch_scc0 L_ffn
    s_waitcnt vmcnt(0)
    s_sleep 30
    s_cmp_lt_u32 s3, 4
    s_cbranch_scc1 L_cand0
    """)
    prep()
    E.label("L_sent")
    yaddr()
    if opt.get("sentown", 0):
        E("v_readfirstlane_b32 s12, v126")
    else:
        E(f"""
        s_lshl2_add_u32 s12, s6, s3
        s_lshl_b32 s12, s12, 5
        s_add_u32 s12, s12, 0x{WS_Y + 4*opt.get('sentblk', 55)*YSG:x}
        """)
    E(f"""
    v_mov_b32 v40, 0
    L_sentl:
    buffer_load_dword v41, v40, s[60:63], s12 offen sc1
    s_add_u32 s9, s9, 1
    s_waitcnt vmcnt(0)
    v_cmp_ne_u32 vcc, -1, v41
    s_cmp_gt_u32 s9, {SPIN}
    s_cbranch_scc1 L_yld
    s_cbranch_vccnz L_sentok
    s_sleep 2
    s_branch L_sentl
    L_sentok:
    {"s_sleep %d" % opt["ssleep"] if opt.get("ssleep") else ""}
    s_mov_b32 s9, 0
    s_branch L_yld
    L_ffn:
    s_mov_b32 s80, s38
    s_mov_b32 s81, s39
    s_mov_b32 s82, 1605632
    s_mov_b32 s83, 0x20000
    v_lshrrev_b32 v16, 3, v1
    v_mul_u32_u24 v16, 3584, v16
    v_bfe_u32 v17, v1, 4, 1
    v_and_b32 v18, 7, v1
    v_xor_b32 v17, v17, v18
    s_and_b32 s8, s3, 1
    s_lshl_b32 s8, s8, 1
    v_xor_b32 v17, s8, v17
    v_lshl_add_u32 v4, v17, 4, v16
    v_xor_b32 v5, 64, v4
    s_mul_i32 s12, s3, 28672
    s_lshl_b32 s13, s6, 7
    s_add_u32 s12, s12, s13
    s_lshl_b32 s13, s3, 10
    s_mov_b32 s11, s12
    s_barrier
    """)
    for i in range(7):
        E(f"s_add_u32 m0, s13, {i*8192}")
        E(f"buffer_load_dwordx4 v4, s[80:83], s11 offen lds")
        if i < 6: E(f"s_add_u32 s11, s11, {8*28672}")
    E("s_mov_b32 s80, s40\n s_mov_b32 s81, s41")
    for i in range(7):
        E(f"s_add_u32 m0, s13, {57344 + i*8192}")
        E(f"buffer_load_dwordx4 v5, s[80:83], s12 offen lds")
        if i < 6: E(f"s_add_u32 s12, s12, {8*28672}")
    E("""
    s_cmp_ge_u32 s3, 4
    s_cbranch_scc1 L_nowd
    s_mov_b32 s80, s42
    s_mov_b32 s81, s43
    v_lshrrev_b32 v4, 4, v1
    v_mul_u32_u24 v4, 7168, v4
    v_and_b32 v5, 15, v1
    v_lshl_add_u32 v4, v5, 4, v4
    s_mul_i32 s12, s6, 57344
    s_lshl_b32 s13, s3, 8
    s_add_u32 s12, s12, s13
    """)
    for s in range(2):
        for i in range(8):
            r = 128 + 32*s + 4*i
            if i % 4 == 0 and (s, i) != (0, 0): E(f"s_add_u32 s12, s12, {3584 if i == 4 else 28672-3584}")
            E(f"buffer_load_dwordx4 v[{r}:{r+3}], v4, s[80:83], s12 offen offset:{896*(i%4)}")
    E("s_waitcnt vmcnt(30)\n s_branch L_wd2\n L_nowd:\n s_waitcnt vmcnt(14)\n L_wd2:")
    prep()
    E(f"""
    v_lshrrev_b32 v4, 4, v1
    v_bfe_u32 v5, v1, 2, 2
    v_lshl_add_u32 v6, v4, 3, v5
    v_lshlrev_b32 v6, 7, v6
    v_bfe_u32 v7, v1, 1, 1
    v_mov_b32 v8, 57344
    v_mad_u32_u24 v6, v7, v8, v6
    v_bfe_u32 v8, v1, 3, 2
    v_lshl_add_u32 v8, v7, 2, v8
    v_xor_b32 v8, s3, v8
    v_lshl_add_u32 v6, v8, 4, v6
    v_and_b32 v8, 1, v1
    v_lshl_add_u32 v6, v8, 3, v6
    v_and_b32 v7, 15, v1
    v_lshlrev_b32 v39, 5, v8
    v_lshl_add_u32 v39, v4, 4, v39
    v_min_u32 v8, 13, v7
    v_lshl_add_u32 v8, v8, 2, v4
    v_lshlrev_b32 v8, 4, v8
    s_lshl_b32 s12, s3, 4
    s_add_u32 s12, s12, {M_H}
    v_lshl_add_u32 v37, v1, 1, s12
    v_mov_b32 v38, {M_H-8}
    v_cmp_gt_u32 vcc, 8, v1
    v_cndmask_b32 v37, v38, v37, vcc
    v_lshlrev_b32 v38, 4, v4
    v_add_u32 v38, {M_H}, v38
    v_lshrrev_b32 v5, 1, v7
    s_lshl_b32 s12, s3, 3
    v_add_u32 v5, s12, v5
    v_cmp_gt_u32 vcc, 28, v5
    v_cmp_gt_u32 s[12:13], 32, v1
    s_and_b64 vcc, vcc, s[12:13]
    v_lshl_add_u32 v39, v5, 11, v39
    v_mov_b32 v5, {OOB}
    v_cndmask_b32 v39, v5, v39, vcc
    s_mov_b32 s14, 0x05040100
    s_mov_b32 s15, 0x07060302
    s_waitcnt vmcnt(0)
    s_barrier
    """)
    stamp(3, "f")
    cand_issue()
    for s in range(14):
        E(f"ds_read_b64_tr_b16 v[{56+4*s}:{57+4*s}], v6 offset:{4096*s}")
        E(f"ds_read_b64_tr_b16 v[{58+4*s}:{59+4*s}], v6 offset:{4096*s+512}")
    E("s_cmp_ge_u32 s3, 4\n s_cbranch_scc1 L_cchkf")
    for s in range(2):
        for m in range(4):
            for ip in range(4):
                a = 128 + 32*s + 4*(2*ip) + m; b = 128 + 32*s + 4*(2*ip+1) + m
                E(f"v_perm_b32 v{192+32*s+4*(2*m)+ip}, v{b}, v{a}, s14")
                E(f"v_perm_b32 v{192+32*s+4*(2*m+1)+ip}, v{b}, v{a}, s15")
    cand_check("f")
    E(f"""
    s_mov_b32 s8, s12
    s_andn2_b32 s11, 0x7ff, s12
    s_lshr_b32 s13, s11, 5
    s_and_b32 s12, s11, 3
    s_lshl2_add_u32 s10, s13, s12
    s_lshl_b32 s12, s10, 10
    s_add_u32 s12, s12, 0x{WS_BEST:x}
    s_mov_b32 s13, 0x42000000
    """)
    stamp(4, "f")
    E(f"""
    L_xchk:
    buffer_load_dwordx4 v[40:43], v8, s[60:63], s12 offen sc1
    s_add_u32 s9, s9, 1
    s_waitcnt vmcnt(0)
    v_xor_b32 v40, s72, v40
    v_xor_b32 v41, s73, v41
    v_xor_b32 v42, s74, v42
    v_xor_b32 v43, s75, v43
    v_or3_b32 v44, v40, v41, v42
    v_or_b32 v44, v44, v43
    v_and_b32 v44, v3, v44
    v_cmp_ne_u32 vcc, 0, v44
    s_cmp_gt_u32 s9, {SPIN}
    s_cbranch_scc1 L_xok
    s_cbranch_vccnz L_xchk
    L_xok:
    """)
    for i in range(4):
        E(f"v_fma_mix_f32 v{44+2*i}, v{40+i}, s13, 0 op_sel_hi:[1,0,0]")
        E(f"v_fma_mix_f32 v{45+2*i}, v{40+i}, s13, 0 op_sel:[1,0,0] op_sel_hi:[1,0,0]")
    for i in range(4): E(f"v_cvt_pk_bf16_f32 v{40+i}, v{44+2*i}, v{45+2*i}")
    E("v_mov_b32 v44, 0\n v_mov_b32 v45, 0\n s_waitcnt lgkmcnt(0)")
    def pick(s): return f"v_add_f32_dpp v{44+(s&1)}, v{128+4*s+(s&3)}, v{44+(s&1)} {IDQ} row_mask:0x{1<<(s>>2):x} bank_mask:0xf"
    for s in range(14):
        E(f"v_mfma_f32_16x16x32_bf16 v[{128+4*s}:{131+4*s}], v[40:43], v[{56+4*s}:{59+4*s}], 0")
        if s >= 5: E(pick(s-5))
    for s in range(9, 14): E(pick(s))
    E(f"""
    v_add_f32 v44, v44, v45
    v_mov_b32 v45, v44
    v_permlane16_swap_b32 v44, v45
    v_add_f32 v44, v44, v45
    v_mov_b32 v45, v44
    v_permlane32_swap_b32 v44, v45
    v_add_f32 v44, v44, v45
    v_cvt_pk_bf16_f32 v44, 0, v44
    v_mul_f32 v45, 0x{LOG2E | 0x80000000:x}, v44
    v_exp_f32 v45, v45
    v_mov_b32 v46, {M_BEST}
    v_add_f32 v45, 1.0, v45
    v_rcp_f32 v45, v45
    v_mov_b32 v47, s8
    v_mul_f32 v45, v45, v44
    v_cvt_pk_bf16_f32 v45, 0, v45
    v_mul_f32_dpp v45, v44, v45 row_ror:8 {DPPF}
    v_cvt_pk_bf16_f32 v45, v45, v45
    ds_write_b16 v37, v45
    ds_write_b32 v46, v47
    s_cmp_ge_u32 s3, 4
    s_waitcnt lgkmcnt(0)
    s_barrier
    s_cbranch_scc1 L_sent
    ds_read_b128 v[40:43], v38
    ds_read_b128 v[44:47], v38 offset:64
    s_lshl_b32 s13, s6, 6
    s_add_u32 s13, s13, 0x{WS_PART:x}
    v_mov_b32 v48, 0xff
    s_waitcnt lgkmcnt(1)
    """)
    for e in range(8): E(f"v_mfma_f32_16x16x32_bf16 v[{128+4*e}:{131+4*e}], v[40:43], v[{192+4*e}:{195+4*e}], 0")
    E("s_waitcnt lgkmcnt(0)")
    for e in (0,4,1,5,2,6,3,7): E(f"v_mfma_f32_16x16x32_bf16 v[{128+4*e}:{131+4*e}], v[44:47], v[{224+4*e}:{227+4*e}], v[{128+4*e}:{131+4*e}]")
    for m in range(4): E(f"v_mov_b32_dpp v{128+4*m}, v{144+4*m} {IDQ} row_mask:0x2 bank_mask:0xf")
    for m in range(4): E(f"v_bfi_b32 v{52+m}, v48, s{76+m}, v{128+4*m}")
    E("buffer_store_dwordx4 v[52:55], v39, s[60:63], s13 offen sc1")
    stamp(5, "f")
    E(f"""
    s_cmp_lg_u32 s3, 0
    s_cbranch_scc1 L_ebar
    s_lshl_b32 s13, s6, 5
    v_lshl_add_u32 v40, v7, 1, s13
    s_mul_i32 s14, s11, 896
    buffer_load_ushort v41, v40, s[52:55], s14 offen
    buffer_load_ushort v42, v40, s[60:63], s12 offen sc1
    buffer_load_ushort v43, v40, s[56:59], 0 offen
    v_cmp_gt_u32 vcc, 16, v1
    v_mov_b32 v44, {OOB}
    v_cndmask_b32 v40, v44, v40, vcc
    v_lshlrev_b32 v44, 2, v1
    v_and_b32 v45, 3, v1
    v_lshlrev_b32 v45, 3, v45
    v_lshrrev_b32 v45, v45, s68
    v_and_b32 v45, 0xff, v45
    v_lshrrev_b32 v46, 1, v7
    v_lshlrev_b32 v46, 5, v46
    v_not_b32 v47, v1
    v_and_b32 v47, 1, v47
    v_lshlrev_b32 v47, 4, v47
    s_mul_i32 s10, s10, {YSG}
    s_lshl_b32 s13, s6, 8
    s_add_u32 s10, s10, s13
    s_bfe_u32 s13, s11, 0x30002
    s_lshl2_add_u32 s10, s13, s10
    s_add_u32 s10, s10, 0x{WS_Y:x}
    s_lshl_b32 s12, s6, 11
    s_add_u32 s12, s12, 0x{WS_PART:x}
    s_and_b32 s13, s8, 0xffff0000
    s_not_b32 s15, s13
    s_ashr_i32 s15, s15, 31
    s_and_b32 s15, s15, 0x7fff0000
    s_or_b32 s15, s15, 0x80000000
    s_xor_b32 s13, s13, s15
    v_mov_b32 v48, 0x{LOG2E | 0x80000000:x}
    v_mul_f32 v49, s13, v48
    v_exp_f32 v49, v49
    v_add_f32 v49, 1.0, v49
    v_rcp_f32 v49, v49
    v_cvt_pk_bf16_f32 v49, 0, v49
    s_waitcnt vmcnt(0)
    v_lshlrev_b32 v41, 16, v41
    v_and_b32 v42, 0xbff8, v42
    v_cvt_f32_f16 v42, v42
    v_mul_f32 v42, 0x42000000, v42
    v_lshlrev_b32 v43, 16, v43
    v_mul_f32 v43, v43, v42
    L_pchk:
    s_sleep 4
    """)
    for i in range(7): E(f"buffer_load_dword v{56+i}, v44, s[60:63], s12 offen offset:{256*i} sc1")
    E("s_add_u32 s9, s9, 1\n s_waitcnt vmcnt(0)")
    for i in range(7): E(f"v_xor_b32 v{56+i}, v{56+i}, v45")
    E(f"""
    v_or3_b32 v50, v56, v57, v58
    v_or3_b32 v50, v50, v59, v60
    v_or3_b32 v50, v50, v61, v62
    v_and_b32 v50, 0xff, v50
    v_cmp_ne_u32 vcc, 0, v50
    s_cmp_gt_u32 s9, {SPIN}
    s_cbranch_scc1 L_pok
    s_cbranch_vccnz L_pchk
    L_pok:
    v_add_f32 v56, v56, v57
    v_add_f32 v58, v58, v59
    v_add_f32 v60, v60, v61
    v_add_f32 v56, v56, v58
    v_add_f32 v60, v60, v62
    v_add_f32 v56, v56, v60
    v_mov_b32 v57, v56
    v_permlane16_swap_b32 v56, v57
    v_add_f32 v56, v56, v57
    v_mov_b32 v57, v56
    v_permlane32_swap_b32 v56, v57
    v_add_f32 v56, v56, v57
    v_cvt_pk_bf16_f32 v56, 0, v56
    v_mul_f32 v56, v56, v49
    v_cvt_pk_bf16_f32 v56, 0, v56
    v_add_f32 v56, v56, v42
    v_cvt_pk_bf16_f32 v56, 0, v56
    v_mul_f32 v57, v56, v48
    v_exp_f32 v57, v57
    v_add_f32 v57, 1.0, v57
    v_rcp_f32 v57, v57
    v_mul_f32 v56, v56, v57
    v_fmac_f32 v41, v43, v56
    v_mul_f32 v56, 0x3d000000, v56
    """)
    stamp(1, "r")
    E(f"""
    L_rchk:
    buffer_load_dword v57, v46, s[60:63], s10 offen sc1
    s_add_u32 s9, s9, 1
    s_waitcnt vmcnt(0)
    v_cmp_eq_u32 vcc, -1, v57
    s_cmp_gt_u32 s9, {SPIN}
    s_cbranch_scc1 L_rok
    s_cbranch_vccz L_rok
    s_sleep 2
    s_branch L_rchk
    L_rok:
    v_lshlrev_b32 v57, v47, v57
    v_and_b32 v57, 0xffff0000, v57
    v_fmac_f32 v41, v57, v56
    v_cvt_pk_bf16_f32 v41, v41, v41
    buffer_store_short v41, v40, s[64:67], s14 offen {OSTF}
    s_branch L_ebar
    """)
    E.label("L_codeend")
    E.raw('.section .rodata,"a"'); E.raw(".p2align 6"); E.raw(f".amdhsa_kernel {KN}")
    for l in ("next_free_vgpr 256","next_free_sgpr 102","accum_offset 256","group_segment_fixed_size 0","kernarg_size 136",
              "user_sgpr_count 2","user_sgpr_kernarg_segment_ptr 1","system_sgpr_workgroup_id_x 1","ieee_mode 0"):
        E.raw("  .amdhsa_" + l)
    E.raw(".end_amdhsa_kernel")
    if opt.get("align", 1):
        E.lines, npro, nnop = align(E.lines, opt.get("minrun", 4))
        print("aligned: promoted", npro, "nops", nnop)
    return E.text(), E

if __name__ == "__main__":
    out = sys.argv[1]
    opt = {}
    for a in sys.argv[2:]:
        k, _, v = a.partition("=")
        opt[k] = True if not v else (int(v) if v.lstrip("-").isdigit() else v)
    hdr = open("recurrent_scan__ssm_conv_s4__moe_arch_mod__prompt.s.ref").read().split("; Override launch")[0]
    t, E = gen(opt)
    open(out, "w").write(hdr + t)
    print("wrote", out, "lines", len(E.lines), "nops", E.nops)
```
